```python
import torch

def _softmax(x, axis=-1):
    return torch.softmax(x, dim=axis)
def _gelu(x):
    return torch.nn.functional.gelu(x, approximate="tanh")
def _silu(x):
    return torch.nn.functional.silu(x)
def _sigmoid(x):
    return torch.sigmoid(x)
def _layernorm(x, axis=-1, eps=1e-5):
    m = x.mean(dim=axis, keepdim=True)
    v = x.var(dim=axis, keepdim=True, unbiased=False)
    return (x - m) / torch.sqrt(v + eps)
def _scatter_add(tgt, idx, src, axis=0):
    return tgt.clone().index_add_(axis, idx, src)
def _segment_sum(src, seg, n):
    out = torch.zeros((n,) + src.shape[1:], dtype=src.dtype)
    return out.index_add_(0, seg, src)
def _pad(x, pw):
    flat = tuple(v for pair in reversed(pw) for v in pair)
    return torch.nn.functional.pad(x, flat)

kernel_name = 'standalone__modern_conv_block_slak__vision'

def setup_inputs():

    _w = (lambda a: (lambda t: t.to(torch.bfloat16) if t.is_floating_point() else t)(torch.as_tensor(a)))
    H = W = 224
    C = 96
    K = 5
    return {
        "x": _w((lambda *s: torch.randn(*s, dtype=torch.bfloat16) * 0.05)(1, H, W, C)),
        "dw": _w((lambda *s: torch.randn(*s, dtype=torch.bfloat16) * 0.05)(K, K, C)),
        "w1": _w((lambda *s: torch.randn(*s, dtype=torch.bfloat16) * 0.05)(C, 4 * C)),
        "w2": _w((lambda *s: torch.randn(*s, dtype=torch.bfloat16) * 0.05)(4 * C, C)),
        "grn_g": _w((lambda *s: torch.randn(*s, dtype=torch.bfloat16) * 0.05)(4 * C)),
        "grn_b": _w((lambda *s: torch.randn(*s, dtype=torch.bfloat16) * 0.05)(4 * C)),
    }

def reference(x, dw, w1, w2, grn_g, grn_b):
    B, H, W, C = x.shape
    K = dw.shape[0]
    pad = K // 2
    xp = _pad(x, ((0,0),(pad,pad),(pad,pad),(0,0)))
    out = torch.zeros_like(x)
    for i in range(K):
        for j in range(K):
            out = out + xp[:, i:i+H, j:j+W, :] * dw[i, j][None, None, None, :]
    h = _layernorm(out, axis=-1)
    h = _gelu(h @ w1)
    gx = torch.sqrt((h * h).sum(axis=(1, 2), keepdims=True) + 1e-6)
    nx = gx / (gx.mean(axis=-1, keepdims=True) + 1e-6)
    h = grn_g[None, None, None, :] * (h * nx) + grn_b[None, None, None, :] + h
    return x + h @ w2
```

```python
import re

def expand(tok):
    tok = tok.strip()
    m = re.fullmatch(r'([vas])\[(\d+):(\d+)\]', tok)
    if m:
        return [f"{m.group(1)}{i}" for i in range(int(m.group(2)), int(m.group(3)) + 1)]
    m = re.fullmatch(r'([vas])(\d+)', tok)
    if m:
        return [tok]
    if tok in ('vcc', 'vcc_lo', 'vcc_hi'): return ['vcc']
    if tok in ('exec', 'exec_lo', 'exec_hi'): return ['exec']
    if tok == 'm0': return ['m0']
    if tok.startswith('-') or tok.startswith('abs(') or tok.startswith('|'):
        inner = tok.lstrip('-').replace('abs(', '').replace(')', '').replace('|', '')
        if re.fullmatch(r'[vas]\d+|[vas]\[\d+:\d+\]', inner): return expand(inner)
    return []

TRANS = ('v_exp_f32', 'v_rcp_f32', 'v_rsq_f32', 'v_sqrt_f32', 'v_log_f32', 'v_rcp_iflag_f32')

class Ins:
    def __init__(self, text):
        self.text = text
        t = text.split(';')[0].split('//')[0].strip()
        self.label = t.endswith(':')
        self.kind = 'other'; self.w = []; self.r = []; self.op = ''
        if self.label or not t or t.startswith('.'):
            self.kind = 'meta'; return
        parts = t.split(None, 1)
        op = parts[0]; self.op = op
        rest = parts[1] if len(parts) > 1 else ''
        ops = []; depth = 0; cur = ''
        for ch in rest:
            if ch == '[': depth += 1
            if ch == ']': depth -= 1
            if ch == ',' and depth == 0: ops.append(cur.strip()); cur = ''
            else: cur += ch
        if cur.strip(): ops.append(cur.strip())
        if ops:
            last = ops[-1].split()
            ops[-1] = last[0]; self.mods = ' '.join(last[1:])
        else: self.mods = ''
        self.ops = ops
        E = lambda i: expand(ops[i]) if i < len(ops) else []
        allr = lambda a: sum((E(i) for i in range(a, len(ops))), [])
        if op.startswith('v_mfma'):
            self.kind = 'mfma'; self.w = E(0); self.rA = E(1); self.rB = E(2); self.rC = E(3); self.r = self.rA + self.rB + self.rC
            self.passes = 8 if ('16x16x4_f32' in op or '32x32x16' in op) else 4
            self.sgemm = '16x16x4_f32' in op
        elif op.startswith('v_smfmac'):
            self.kind = 'mfma'; self.w = E(0); self.rA = E(1); self.rB = E(2) + E(3); self.rC = E(0); self.r = self.rA + self.rB + self.rC
            self.passes = 4; self.sgemm = False
        elif op.startswith('v_cmp'):
            self.kind = 'valu'; self.w = E(0); self.r = allr(1)
        elif op in ('v_readfirstlane_b32', 'v_readlane_b32'):
            self.kind = 'valu'; self.w = E(0); self.r = allr(1); self.lane_read = True
        elif op.startswith('v_permlane'):
            self.kind = 'valu'; self.w = E(0) + E(1); self.r = E(0) + E(1); self.perm = True
        elif op.startswith('v_'):
            self.kind = 'valu'; self.w = E(0); self.r = allr(1)
            if op.startswith(('v_fmac', 'v_dot2c', 'v_writelane')): self.r += E(0)
            if op.startswith('v_cndmask') and len(ops) == 3: self.r += ['vcc']
            if op in ('v_add_co_u32', 'v_sub_co_u32', 'v_addc_co_u32'): self.w = E(0) + E(1); self.r = allr(2)
            if 'dpp' in op or 'row_' in self.mods or 'quad_perm' in self.mods:
                self.dpp = True; self.dppsrc = E(1); self.r += E(0)
        elif op.startswith('ds_read') or op.startswith('ds_bpermute') or op.startswith('ds_swizzle'):
            self.kind = 'ds'; self.w = E(0); self.r = allr(1); self.ld = True
        elif op.startswith('ds_'):
            self.kind = 'ds'; self.r = allr(0); self.ld = False
        elif op.startswith(('buffer_load', 'global_load')):
            self.kind = 'vmem'; self.ld = True
            if ' lds' in (' ' + self.mods) : self.w = []; self.r = allr(0); self.ldslds = True
            else: self.w = E(0); self.r = allr(1)
        elif op.startswith(('buffer_store', 'global_store', 'buffer_atomic', 'global_atomic')):
            self.kind = 'vmem'; self.ld = False; self.r = allr(0)
            self.wide = ('x4' in op or 'x3' in op)
        elif op.startswith('s_load') or op.startswith('s_memtime') or op.startswith('s_memrealtime'):
            self.kind = 'smem'; self.w = E(0); self.r = allr(1)
        elif op == 's_waitcnt' or op == 's_barrier' or op == 's_nop' or op == 's_sleep' or op == 's_endpgm' or op == 's_setprio':
            self.kind = 'ctl'
        elif op.startswith(('s_cbranch', 's_branch')):
            self.kind = 'br'
        elif op.startswith('s_cmp') or op.startswith('s_bitcmp'):
            self.kind = 'salu'; self.r = allr(0)
        elif op.startswith('s_'):
            self.kind = 'salu'; self.w = E(0); self.r = allr(1)
            if 'saveexec' in op: self.w += ['exec']
    def states(self):
        if self.kind == 'meta': return 0
        if self.op == 's_nop': return int(self.ops[0]) + 1
        return 1

class Asm:
    def __init__(self):
        self.lines = []
        self.nops_inserted = []
    def __call__(self, text):
        for l in text.split('\n'):
            l = l.rstrip()
            if l.strip(): self.lines.append(l)
    def comment(self, c): self.lines.append(f"; {c}")
    def check_waits(self, lines, take):
        vq = []; lq = []; errors = []; skip_to = None; sec = ''
        labels = {l.strip()[:-1]: i for i, l in enumerate(lines) if l.strip().endswith(':') and not l.strip().startswith(';')}
        for idx, text in enumerate(lines):
            t = text.strip()
            if t.startswith(';'): sec = t; continue
            if skip_to is not None:
                if t == skip_to + ':': skip_to = None
                continue
            ins = Ins('  ' + t)
            if ins.kind == 'meta': continue
            if ins.kind == 'br':
                tgt = ins.ops[0]
                if labels.get(tgt, -1) > idx and (take or ins.op == 's_branch') and tgt != 'L_end': skip_to = tgt
                continue
            R = set(ins.r); W = set(ins.w)
            if ins.op == 's_waitcnt':
                m = re.search(r'vmcnt\((\d+)\)', t)
                if m:
                    n = int(m.group(1))
                    while len(vq) > n: vq.pop(0)
                m = re.search(r'lgkmcnt\((\d+)\)', t)
                if m:
                    n = int(m.group(1))
                    if n == 0: lq.clear()
                    else:
                        if any(k == 'smem' for k, _ in lq): errors.append(f"counted lgkmcnt with smem outstanding: {t}")
                        while len(lq) > n: lq.pop(0)
            else:
                use = R | W
                for dst in vq:
                    if dst & use: errors.append(f"[{sec} take={take}] vm RAW/WAW: '{t}' touches {sorted(dst & use)[:4]}")
                for k, dst in lq:
                    if dst & use: errors.append(f"[{sec} take={take}] lgkm RAW/WAW: '{t}' touches {sorted(dst & use)[:4]}")
                if ins.kind == 'vmem': vq.append(set(ins.w))
                if ins.kind == 'ds': lq.append(('ds', set(ins.w)))
                if ins.kind == 'smem': lq.append(('smem', set(ins.w)))
                if len(vq) > 63: errors.append(f"[{sec}] vmcnt overflow at {t}")
                if len(lq) > 15 and ins.kind == 'ds': errors.append(f"[{sec}] lgkmcnt overflow ({len(lq)}) at {t}")
        return errors
    def finalize(self, verbose=True, check_wait=True):
        out = []
        hist = []
        def dist_back(pred, maxd):
            d = 0
            for ins in reversed(hist):
                if ins.kind == 'meta': continue
                if pred(ins): return d
                d += ins.states()
                if d > maxd: return None
            return None
        vq = []
        lq = []
        errors = []
        cur_section = ''
        for text in self.lines:
            ins = Ins('  ' + text.strip())
            if ins.kind == 'meta':
                if text.strip().startswith(';'): cur_section = text.strip()
                out.append(text); hist.append(ins); continue
            need = 0
            R = set(ins.r); W = set(ins.w)
            def req(pred, n):
                nonlocal need
                d = dist_back(pred, n)
                if d is not None and d < n: need = max(need, n - d)
            isv = lambda i: i.kind == 'valu'
            if ins.kind == 'mfma':
                req(lambda i: i.kind == 'valu' and set(i.w) & R, 2)
                AB = set(ins.rA) | set(ins.rB)
                req(lambda i: i.kind == 'mfma' and set(i.w) & AB, 12)
                for i4 in (4, 8): pass
                need0 = 0
                d = 0
                for p in reversed(hist):
                    if p.kind == 'meta': continue
                    if p.kind == 'mfma':
                        pw = set(p.w)
                        if pw & AB:
                            n = {(4, False): 8, (8, False): 12, (8, True): 10, (4, True): 6}[(p.passes, p.sgemm)]
                            if d < n: need0 = max(need0, n - d)
                        C = set(ins.rC)
                        if pw & C:
                            if pw == C and p.passes == ins.passes and p.sgemm == ins.sgemm: n = 0
                            else: n = {4: 6, 8: 10}[p.passes] if not (p.sgemm and not ins.sgemm) else 0
                            if d < n: need0 = max(need0, n - d)
                        if (pw & W) and not (pw & C):
                            n = {4: 6, 8: 10}[p.passes]
                            if d < n: need0 = max(need0, n - d)
                    d += p.states()
                    if d > 20: break
                need = 0
                dd = dist_back(lambda i: i.kind == 'valu' and set(i.w) & R, 2)
                if dd is not None and dd < 2: need = 2 - dd
                need = max(need, need0)
            if ins.kind in ('valu', 'ds', 'vmem'):
                d = 0
                for p in reversed(hist):
                    if p.kind == 'meta': continue
                    if p.kind == 'mfma':
                        pw = set(p.w)
                        if pw & (R | W):
                            n = {(4, False): 8, (8, False): 12, (8, True): 10, (4, True): 6}[(p.passes, p.sgemm)]
                            if d < n: need = max(need, n - d)
                        if ins.kind == 'valu' and (set(p.rC) & W) and not p.sgemm:
                            n = {4: 3, 8: 7}[p.passes]
                            if d < n: need = max(need, n - d)
                    d += p.states()
                    if d > 14: break
            if ins.kind == 'valu':
                if ins.op not in TRANS:
                    req(lambda i: i.kind == 'valu' and i.op.replace('_e32','').replace('_e64','') in TRANS and set(i.w) & R, 1)
                if getattr(ins, 'dpp', False):
                    DS = set(ins.dppsrc)
                    req(lambda i: i.kind == 'valu' and set(i.w) & DS, 2)
                if getattr(ins, 'perm', False):
                    req(lambda i: i.kind == 'valu' and set(i.w) & R, 2)
                if getattr(ins, 'lane_read', False):
                    req(lambda i: i.kind == 'valu' and set(i.w) & R, 1)
                    req(lambda i: i.kind == 'valu' and any(x[0] == 's' for x in set(i.w) & R), 4)
                req(lambda i: i.kind == 'valu' and any((x[0] == 's' or x == 'vcc') for x in set(i.w) & R), 2)
                req(lambda i: i.kind == 'vmem' and not i.ld and getattr(i, 'wide', False) and set(i.r) & W, 2)
            if ins.kind == 'vmem':
                req(lambda i: i.kind == 'valu' and any(x[0] == 's' for x in set(i.w) & R), 5)
                if getattr(ins, 'ldslds', False):
                    req(lambda i: i.kind == 'salu' and 'm0' in i.w, 1)
            if ins.kind in ('salu', 'br'):
                RR = set(ins.r)
                if ins.op in ('s_cbranch_vccz', 's_cbranch_vccnz'): RR |= {'vcc'}
                req(lambda i: i.kind == 'valu' and any((x[0] == 's' or x == 'vcc') for x in set(i.w) & RR), 2)
            if need > 0:
                self.nops_inserted.append((cur_section, text.strip(), need))
                while need > 0:
                    k = min(need, 16)
                    nop = Ins(f"  s_nop {k-1}"); out.append(f"  s_nop {k-1}"); hist.append(nop); need -= k
            if False:
                if ins.op == 's_waitcnt':
                    m = re.search(r'vmcnt\((\d+)\)', text)
                    if m:
                        n = int(m.group(1))
                        while len(vq) > n: vq.pop(0)
                    m = re.search(r'lgkmcnt\((\d+)\)', text)
                    if m:
                        n = int(m.group(1))
                        if n == 0: lq.clear()
                        else:
                            if any(k == 'smem' for k, _ in lq): errors.append(f"counted lgkmcnt with smem outstanding: {text}")
                            while len(lq) > n: lq.pop(0)
                else:
                    use = (R | W) if ins.kind != 'meta' else set()
                    for dst in vq:
                        if dst & use: errors.append(f"[{cur_section}] vm RAW/WAW: '{text.strip()}' touches {sorted(dst & use)[:4]} with load outstanding")
                    for k, dst in lq:
                        if dst & use: errors.append(f"[{cur_section}] lgkm RAW/WAW: '{text.strip()}' touches {sorted(dst & use)[:4]} with load outstanding")
                    if ins.kind == 'vmem': vq.append(set(ins.w))
                    if ins.kind == 'ds': lq.append(('ds', set(ins.w)))
                    if ins.kind == 'smem': lq.append(('smem', set(ins.w)))
                    if len(vq) > 63: errors.append(f"vmcnt overflow at {text}")
            out.append(text); hist.append(ins)
            if len(hist) > 200: hist = hist[-100:]
        if verbose:
            tot = {}
            for sec, t, n in self.nops_inserted:
                tot.setdefault(sec, [0, 0]); tot[sec][0] += 1; tot[sec][1] += n
            for sec, (c, n) in tot.items(): print(f"  nops in {sec}: {c} sites, {n} states")
        errors = self.check_waits(out, False) + self.check_waits(out, True)
        if errors:
            for e in errors[:40]: print("ERROR:", e)
            raise RuntimeError(f"{len(errors)} waitcnt errors")
        return "\n".join(out) + "\n"
```

```python
import sys, struct, math, argparse
from asmlib import Asm

def f2u(x): return struct.unpack('<I', struct.pack('<f', x))[0]
KNAME = "standalone__modern_conv_block_slak__vision_kernel"

C1 = -2.0 * math.sqrt(2.0 / math.pi) * math.log2(math.e)
C2 = C1 * 0.044715
ALPHA = -((-C2) ** (1.0 / 3.0))
BETA = C1 / ALPHA
W1F = 0
YB = 73728
XB = YB + 7680
XROW = 3840
DWT = XB + 18 * XROW
PS = YB
SP = YB + 6144
CP = SP + 1536
LP = CP + 1536
CV = LP + 6144
W2F = 0
LDS_BYTES = 163840
EPOCH_OFF = 0
L1_OFF = 4096
FIN_OFF = L1_OFF + 128 * 4096
NREP = 16
TAG_STEP = 0x9E3779B1
DBG_OFF = 0x200000

sX, sDW, sW1, sW2, sO = 24, 28, 32, 36, 40
sW, sX0, sY0, sTAG = 44, 45, 46, 47
sBETA = 50
sM0, sM1, sM2, sM3 = 52, 54, 56, 58
sDIAG = 60
sLEFT = 62
sBIG = 64
sT = 66
def srd(b): return f"s[{b}:{b+3}]"
def sp(b): return f"s[{b}:{b+1}]"
def v(a, n=1): return f"v{a}" if n == 1 else f"v[{a}:{a+n-1}]"
def a_(a, n=1): return f"a{a}" if n == 1 else f"a[{a}:{a+n-1}]"

vLANE16 = 1
vN = 2; vQ = 3
vAADR = 4
vTMP = 5
YH = [8, 20, 32]
P0, P1 = 44, 56
TT = 68
AS = 80
DP = 84
ST = 87
H = [100, 148, 196]
HL = 244
YL = [140, 144, 188]
P0L, P1L, TTL = 192, 236, 240
aNAT = 0
aFR = 72
aSEL = 84
aONE = 92
aH = 100

class G:
    def __init__(self, opts):
        self.o = opts
        self.A = Asm()

    def setup(self):
        A = self.A
        A("; ==== setup")
        A(f"""
  s_cmp_ge_u32 s2, 256
  s_cbranch_scc1 L_end
  s_load_dwordx16 s[4:19], s[0:1], 0
  s_load_dwordx2 s[20:21], s[0:1], 64
  v_lshrrev_b32 v5, 6, v0
  v_and_b32 v6, 63, v0
  v_readfirstlane_b32 s{sW}, v5
  v_lshlrev_b32 v{vLANE16}, 4, v6
  v_and_b32 v{vN}, 15, v6
  v_lshrrev_b32 v{vQ}, 4, v6
  s_and_b32 s{sT}, s2, 7
  s_lshr_b32 s{sT+1}, s2, 3
  s_and_b32 s{sT+2}, s{sT}, 3
  s_lshl_b32 s{sT+2}, s{sT+2}, 2
  s_and_b32 s{sT+3}, s{sT+1}, 3
  s_add_u32 s{sT+2}, s{sT+2}, s{sT+3}
  s_mul_i32 s{sX0}, s{sT+2}, 14
  s_lshr_b32 s{sT}, s{sT}, 2
  s_lshl_b32 s{sT}, s{sT}, 3
  s_lshr_b32 s{sT+1}, s{sT+1}, 2
  s_add_u32 s{sT}, s{sT}, s{sT+1}
  s_mul_i32 s{sY0}, s{sT}, 14
  s_mov_b32 s{sBIG}, 0x40000000
  ; x lane offsets: i=tid, col=i/13, k=i%13
  v_mul_u32_u24 v7, 5042, v0
  v_lshrrev_b32 v7, 16, v7
  v_mul_u32_u24 v8, 13, v7
  v_sub_u32 v8, v0, v8
  s_sub_i32 s{sT}, s{sX0}, 2
  v_add_u32 v9, s{sT}, v7
  v_mul_u32_u24 v10, 192, v9
  v_lshl_add_u32 v10, v8, 4, v10
  s_movk_i32 s{sT+1}, 224
  v_cmp_gt_u32 vcc, s{sT+1}, v9
  v_cmp_gt_u32 s[{sT+2}:{sT+3}], 12, v8
  s_movk_i32 s{sT+1}, 234
  v_cmp_gt_u32 s[{sT+4}:{sT+5}], s{sT+1}, v0
  v_mov_b32 v11, s{sBIG}
  s_and_b64 vcc, vcc, s[{sT+2}:{sT+3}]
  s_and_b64 vcc, vcc, s[{sT+4}:{sT+5}]
  v_cndmask_b32 v10, v11, v10, vcc
  v_lshlrev_b32 v12, 4, v0
  v_subrev_u32 v13, 960, v12
  v_cmp_le_u32 vcc, 60, v0
  v_add_u32 v12, 3136, v12
  s_nop 0
  v_cndmask_b32 v13, v11, v13, vcc
  v_mul_u32_u24 v14, 768, v{vN}
  v_lshl_add_u32 v14, v{vQ}, 4, v14
  s_mul_i32 s{sT}, s{sW}, 192
  v_add_u32 v14, s{sT}, v14
  s_waitcnt lgkmcnt(0)
  s_load_dword s{sTAG}, s[20:21], {EPOCH_OFF}
""")
        for base, ptr, n in ((sX, 4, 9633792), (sDW, 6, 4800), (sW1, 8, 73728), (sW2, 10, 73728), (sO, 16, 9633792)):
            A(f"""  s_mov_b32 s{base}, s{ptr}
  s_and_b32 s{base+1}, s{ptr+1}, 0xffff
  s_mov_b32 s{base+2}, {n}
  s_mov_b32 s{base+3}, 0x20000""")
        A(f"""  s_lshl_b32 s{sT}, s{sW}, 10
  s_add_u32 s{sT+1}, s{sT}, {DWT}
  s_mov_b32 m0, s{sT+1}
  s_add_u32 s{sT+1}, s{sT+1}, 4096
  buffer_load_dwordx4 v13, {srd(sDW)}, 0 offen lds
  s_mov_b32 m0, s{sT+1}
  s_add_u32 s{sT+1}, s{sT+1}, 4096
  buffer_load_dwordx4 v12, {srd(sDW)}, 0 offen lds
  s_mov_b32 m0, s{sT+1}
  s_movk_i32 s{sT+2}, 4096
  buffer_load_dwordx4 v12, {srd(sDW)}, s{sT+2} offen lds
  s_add_u32 s{sT+6}, s{sT}, {XB}
  s_cmp_eq_u32 s{sW}, 3
  s_cselect_b32 s{sT+9}, 0xffff, -1
""")
        def xrow(r):
            A(f"""  s_add_i32 s{sT}, s{sY0}, {r-2}
  s_mul_i32 s{sT+1}, s{sT}, 43008
  s_cmp_lt_u32 s{sT}, 224
  s_cselect_b32 s{sT+1}, s{sT+1}, s{sBIG}
  s_add_u32 m0, s{sT+6}, {r*XROW}
  s_nop 0
  buffer_load_dwordx4 v10, {srd(sX)}, s{sT+1} offen lds""")
        A(f"  s_mov_b32 exec_hi, s{sT+9}")
        for r in range(9): xrow(r)
        A("  s_mov_b32 exec_hi, -1")
        for g in range(6):
            A(f"  s_mov_b32 s{sT}, {g*12288}")
            for ul in range(3):
                A(f"  buffer_load_dwordx4 {a_(aNAT + (g*3+ul)*4, 4)}, v14, {srd(sW1)}, s{sT} offen offset:{64*ul}")
        A(f"  s_mov_b32 exec_hi, s{sT+9}")
        for r in range(9, 18): xrow(r)
        A("  s_mov_b32 exec_hi, -1")
        A(f"""
  s_mov_b32 s{sBETA}, {hex(f2u(BETA))}
  s_mov_b32 s{sBETA+1}, {hex(f2u(BETA))}
  s_mov_b32 s{sM0}, 0x11111111
  s_mov_b32 s{sM0+1}, 0x11111111
  s_mov_b32 s{sM1}, 0x22222222
  s_mov_b32 s{sM1+1}, 0x22222222
  s_mov_b32 s{sM2}, 0x44444444
  s_mov_b32 s{sM2+1}, 0x44444444
  s_mov_b32 s{sM3}, 0x88888888
  s_mov_b32 s{sM3+1}, 0x88888888
  s_mov_b32 s{sDIAG}, 0x00f0000f
  s_mov_b32 s{sDIAG+1}, 0xf0000f00
  s_mov_b32 s{sLEFT}, 0x000f000f
  s_mov_b32 s{sLEFT+1}, 0x000f000f
""")
        A(f"""
  v_and_b32 v15, 1, v{vN}
  v_lshlrev_b32 v15, 4, v15
  v_mov_b32 v16, 0x3f80
  v_lshlrev_b32 v15, v15, v16
  v_bfe_u32 v16, v{vN}, 1, 2
  v_lshrrev_b32 v17, 3, v{vN}
  v_sub_u32 v17, v{vQ}, v17
""")
        for b in range(2):
            for j in range(4):
                A(f"""  v_cmp_eq_u32 vcc, {2*b}, v17
  v_cmp_eq_u32 s[{sT}:{sT+1}], {j}, v16
  s_and_b64 vcc, vcc, s[{sT}:{sT+1}]
  v_cndmask_b32 v18, 0, v15, vcc
  v_accvgpr_write_b32 {a_(aSEL+4*b+j)}, v18""")
        A(f"  v_mov_b32 v18, 0x3f803f80")
        for j in range(4): A(f"  v_accvgpr_write_b32 {a_(aONE+j)}, v18")

    cA = 44
    cIDX = 92
    cBF, cBG0, cBG1, cYW = 93, 94, 95, 96
    cF = 196
    def conv_regs(self):
        self.cF = {}
        pool = list(range(100, 140, 8)) + list(range(148, 188, 8))
        k = 0
        for gl in range(3):
            for s in range(3):
                self.cF[(gl, s)] = pool[k]; k += 1
        self.cG = [pool[9], 192, 200]
        self.cD = [208, 212, 216]
        self.cT = 220

    def a_build(self):
        A = self.A
        self.conv_regs()
        t = self.cT
        A(f"""
  s_waitcnt vmcnt(36)
  s_barrier
  v_lshrrev_b32 v{t}, 3, v{vN}            ; ro
  v_and_b32 v{t+1}, 7, v{vN}              ; c
  v_lshrrev_b32 v{t+2}, 1, v{vQ}          ; a = q>>1
  v_sub_u32 v{t+2}, v{t+2}, v{t}          ; a - ro
  v_add_u32 v{t+2}, 1, v{t+2}
  v_mul_u32_u24 v{t+2}, 960, v{t+2}
  v_and_b32 v{t+3}, 1, v{vQ}
  v_mul_u32_u24 v{t+3}, 384, v{t+3}
  v_add_u32 v{t+2}, v{t+2}, v{t+3}
  v_lshl_add_u32 v{t+2}, v{t+1}, 1, v{t+2}
  s_mul_i32 s{sT}, s{sW}, 48
  s_add_u32 s{sT+1}, s{sT}, {DWT}
  v_add_u32 v{t+2}, s{sT+1}, v{t+2}       ; vF
  v_lshlrev_b32 v{t+3}, 1, v{vQ}
  v_sub_u32 v{t+3}, v{t+3}, v{t}
  v_add_u32 v{t+3}, 1, v{t+3}
  v_mul_u32_u24 v{t+3}, 960, v{t+3}
  v_lshl_add_u32 v{t+3}, v{t+1}, 1, v{t+3}
  s_add_u32 s{sT+1}, s{sT+1}, 768
  v_add_u32 v{t+3}, s{sT+1}, v{t+3}       ; vG
""")
        W = t + 8
        cnt = 0
        for gl in range(3):
            for f in range(4):
                for z in range(2):
                    r = W + (gl * 4 + f) * 2 + z
                    if f < 3: A(f"  ds_read_u16 v{r}, v{t+2} offset:{f*1920 + z*192 + 16*gl}")
                    else: A(f"  ds_read_u16 v{r}, v{t+3} offset:{z*960 + 16*gl}")
                    cnt += 1
                    if cnt == 12: A("  s_waitcnt lgkmcnt(0)")
        A(f"""
  v_cmp_gt_u32 vcc, 4, v{t+1}
  v_and_b32 v{t+4}, 3, v{t+1}
  v_add_u32 v{t+5}, 1, v{t+4}
  v_and_b32 v{t+5}, 3, v{t+5}
  v_lshl_or_b32 v{t+4}, v{t+5}, 2, v{t+4}
  s_movk_i32 s{sT+2}, 0x1111
  v_mul_u32_u24 v{self.cIDX}, s{sT+2}, v{t+4}
  v_cndmask_b32 v{t+4}, 0, -1, vcc        ; mlo
  v_not_b32 v{t+5}, v{t+4}                ; mhi
  v_add_u32 v{t+6}, v{vN}, v{vQ}
  v_mul_u32_u24 v{t+6}, 208, v{t+6}
  s_add_u32 s{sT+1}, s{sT}, {XB}
  v_add_u32 v{self.cBF}, s{sT+1}, v{t+6}
  v_mul_u32_u24 v{t+6}, 208, v{vN}
  s_add_u32 s{sT+2}, s{sT+1}, {4*208}
  v_add_u32 v{t+6}, s{sT+2}, v{t+6}        ; XB + 48w + (n+4)*208
  v_mul_u32_u24 v{t+7}, {XROW}, v{vQ}
  v_add_u32 v{self.cBG0}, v{t+6}, v{t+7}
  v_min_u32 v{t+7}, 1, v{vQ}
  v_add_u32 v{t+7}, 4, v{t+7}
  v_mul_u32_u24 v{t+7}, {XROW}, v{t+7}
  v_add_u32 v{self.cBG1}, v{t+6}, v{t+7}
  v_mul_u32_u24 v{t+6}, 208, v{vN}
  v_lshrrev_b32 v{t+7}, 1, v{vQ}
  v_mul_u32_u24 v{t+7}, 3328, v{t+7}
  v_add_u32 v{t+6}, v{t+6}, v{t+7}
  v_and_b32 v{t+7}, 1, v{vQ}
  v_lshl_add_u32 v{t+6}, v{t+7}, 3, v{t+6}
  s_add_u32 s{sT+1}, s{sT}, {YB}
  v_add_u32 v{self.cYW}, s{sT+1}, v{t+6}
  s_waitcnt lgkmcnt(0)
""")
        for gl in range(3):
            for f in range(4):
                r = W + (gl * 4 + f) * 2
                d = self.cA + (gl * 4 + f) * 4
                A(f"""  v_and_b32 v{d}, v{r}, v{t+4}
  v_and_b32 v{d+1}, v{r}, v{t+5}
  v_and_b32 v{d+2}, v{r+1}, v{t+4}
  v_and_b32 v{d+3}, v{r+1}, v{t+5}""")

    def conv_block(self, b, wait_vm):
        A = self.A
        Y = 2 * b
        A(f"  s_waitcnt vmcnt({wait_vm}) lgkmcnt(0)\n  s_barrier")
        Areg = lambda gl, f: v(self.cA + (gl * 4 + f) * 4, 4)
        def rdF(gl, rho):
            s = (rho // 2) % 3; r = self.cF[(gl, s)]
            A(f"  ds_read_b128 {v(r,4)}, v{self.cBF} offset:{rho*XROW + 16*gl}")
            A(f"  ds_read_b128 {v(r+4,4)}, v{self.cBF} offset:{(rho+1)*XROW + 16*gl}")
        def rdG(gl):
            r = self.cG[gl]
            A(f"  ds_read_b128 {v(r,4)}, v{self.cBG0} offset:{Y*XROW + 16*gl}")
            A(f"  ds_read_b128 {v(r+4,4)}, v{self.cBG1} offset:{Y*XROW + 16*gl}")
        if b == 0:
            for gl in range(3): rdF(gl, 0); rdF(gl, 2)
            for gl in range(3):
                for j in range(4): A(f"  v_mov_b32 v{self.cD[gl]+j}, 0")
            A("  s_waitcnt lgkmcnt(0)")
        for gl in range(3): rdF(gl, Y + 4); rdG(gl)
        if b != 0:
            for gl in range(3):
                for j in range(4): A(f"  v_mov_b32 v{self.cD[gl]+j}, 0")
        Freg = lambda gl, rho: v(self.cF[(gl, (rho // 2) % 3)], 8)
        for gl in range(3):
            A(f"  v_smfmac_f32_16x16x64_bf16 {v(self.cD[gl],4)}, {Areg(gl,0)}, {Freg(gl,Y)}, v{self.cIDX}")
            A(f"  v_smfmac_f32_16x16x64_bf16 {v(self.cD[gl],4)}, {Areg(gl,1)}, {Freg(gl,Y+2)}, v{self.cIDX}")
        for gl in range(3):
            A(f"  s_waitcnt lgkmcnt({(2-gl)*4 + 2})")
            A(f"  v_smfmac_f32_16x16x64_bf16 {v(self.cD[gl],4)}, {Areg(gl,2)}, {Freg(gl,Y+4)}, v{self.cIDX}")
            A(f"  s_waitcnt lgkmcnt({(2-gl)*4})")
            A(f"  v_smfmac_f32_16x16x64_bf16 {v(self.cD[gl],4)}, {Areg(gl,3)}, {v(self.cG[gl],8)}, v{self.cIDX}")
        t = self.cT
        for gl in range(3):
            d = self.cD[gl]
            A(f"  v_cvt_pk_bf16_f32 v{t+2*gl}, v{d}, v{d+1}")
            A(f"  v_cvt_pk_bf16_f32 v{t+2*gl+1}, v{d+2}, v{d+3}")
            A(f"  ds_write_b64 v{self.cYW}, {v(t+2*gl,2)} offset:{b*7680 + 16*gl}")

    def w1_prep(self):
        A = self.A
        A("; ==== w1 prep")
        t = self.cT + 8
        A(f"""  s_waitcnt vmcnt(9)
  s_mul_i32 s{sT}, s{sW}, 18432
  v_add_u32 v{t}, s{sT}, v{vLANE16}""")
        D = t + 4
        Fr = t + 20
        k = 0
        jobs = [(ul, b, s) for ul in range(3) for b in range(2) for s in range(3)]
        def mf(job, buf):
            ul, b, s = job
            for gp in range(2):
                g = 2 * s + gp
                A(f"  v_mfma_f32_16x16x32_bf16 {v(D+8*buf+4*gp,4)}, {a_(aNAT+(g*3+ul)*4,4)}, {a_(aSEL+4*b,4)}, 0")
        mf(jobs[0], 0)
        for k, job in enumerate(jobs):
            buf = k & 1
            if k + 1 < len(jobs): mf(jobs[k + 1], buf ^ 1)
            else: A("  s_nop 1")
            ul, b, s = job
            d = D + 8 * buf; f = Fr + 4 * buf
            A(f"  s_nop 3")
            for j in range(4):
                A(f"  v_cvt_pk_bf16_f32 v{f+j}, v{d+2*j}, v{d+2*j+1}")
            A(f"  ds_write_b128 v{t}, {v(f,4)} offset:{((2*ul+b)*3+s)*1024}")
            if k % 8 == 7: A("  s_waitcnt lgkmcnt(4)")

    def ln_addr(self, slot, dst):
        A = self.A
        if slot == 'L':
            A(f"  v_min_u32 v{dst}, 3, v{vN}")
        else:
            A(f"""  s_lshl_b32 s{sT}, s{sW}, 4
  s_add_u32 s{sT}, s{sT}, {4 + 64*slot}
  v_add_u32 v{dst}, s{sT}, v{vN}""")
        A(f"""  v_mul_u32_u24 v{dst+1}, 4682, v{dst}
  v_lshrrev_b32 v{dst+1}, 16, v{dst+1}       ; R
  v_mul_u32_u24 v{dst+2}, 14, v{dst+1}
  v_sub_u32 v{dst}, v{dst}, v{dst+2}         ; x
  v_mul_u32_u24 v{dst}, 208, v{dst}
  v_lshl_add_u32 v{dst}, v{vQ}, 4, v{dst}
  v_lshrrev_b32 v{dst+2}, 1, v{dst+1}
  v_mul_u32_u24 v{dst+2}, 7680, v{dst+2}
  v_add_u32 v{dst}, v{dst}, v{dst+2}
  v_and_b32 v{dst+1}, 1, v{dst+1}
  v_mul_u32_u24 v{dst+1}, 3328, v{dst+1}
  v_add_u32 v{dst}, v{dst}, v{dst+1}
  v_add_u32 v{dst}, {YB}, v{dst}""")

    def ln_tile(self, slot):
        A = self.A
        adr = 220; st = 224; Yr = 232; Ds = 244; Dg = 248
        dest = (lambda k: YH[slot] + k) if slot != 'L' else (lambda k: YL[k // 4] + k % 4)
        self.ln_addr(slot, adr)
        for s in range(3): A(f"  ds_read_b128 {v(Yr+4*s,4)}, v{adr} offset:{64*s}")
        A("  s_waitcnt lgkmcnt(0)")
        for s in range(3):
            A(f"  v_mfma_f32_16x16x32_bf16 {v(Dg,4)}, {v(Yr+4*s,4)}, {v(Yr+4*s,4)}, " + ("0" if s == 0 else v(Dg,4)))
        for s in range(3):
            A(f"  v_mfma_f32_16x16x32_bf16 {v(Ds,4)}, {a_(aONE,4)}, {v(Yr+4*s,4)}, " + ("0" if s == 0 else v(Ds,4)))
        return dict(Yr=Yr, Ds=Ds, Dg=Dg, st=st, dest=dest, slot=slot)

    def ln_tile_full(self, slot, Du=192):
        A = self.A
        c = self.ln_tile(slot)
        Yr, Ds, Dg, st, dest = c['Yr'], c['Ds'], c['Dg'], c['st'], c['dest']
        for s in range(3):
            for b in range(2):
                A(f"  v_mfma_f32_16x16x32_bf16 {v(Du+8*s+4*b,4)}, {a_(aSEL+4*b,4)}, {v(Yr+4*s,4)}, 0")
        A(f"""  v_cndmask_b32 v{st}, v{Dg}, v{Dg+1}, {sp(sM1)}
  v_cndmask_b32 v{st}, v{st}, v{Dg+2}, {sp(sM2)}
  v_cndmask_b32 v{st}, v{st}, v{Dg+3}, {sp(sM3)}
  v_cndmask_b32 v{st}, 0, v{st}, {sp(sDIAG)}
  v_mov_b32 v{st+1}, 1.0
  s_nop 0
  v_mfma_f32_16x16x4_f32 {v(Dg,4)}, v{st+1}, v{st}, 0
  v_mul_f32 v{st+2}, {hex(f2u(1.0/96))}, v{Ds}          ; mean
  s_nop 7
  s_nop 1
  v_mul_f32 v{st+3}, {hex(f2u(1.0/96))}, v{Dg}          ; E[y^2]
  v_fma_f32 v{st+3}, -v{st+2}, v{st+2}, v{st+3}
  v_max_f32 v{st+3}, 0, v{st+3}
  v_add_f32 v{st+3}, {hex(f2u(1e-5))}, v{st+3}
  v_rsq_f32 v{st+3}, v{st+3}
  s_nop 0
  v_mul_f32 v{st+4}, {hex(f2u(ALPHA))}, v{st+3}          ; rho
""")
        if slot == 'L': A(f"  v_cndmask_b32 v{st+4}, 0, v{st+4}, {sp(sLEFT)}")
        A(f"  v_mul_f32 v{st}, v{st+2}, v{st+4}\n  v_sub_f32 v{st}, 0, v{st}")
        assert (st % 2) == 0
        for k in range(12):
            A(f"  v_pk_fma_f32 {v(Du+2*k,2)}, {v(Du+2*k,2)}, {v(st+4,2)}, {v(st,2)} op_sel_hi:[1,0,0]")
        for k in range(12):
            A(f"  v_cvt_pk_bf16_f32 v{dest(k)}, v{Du+2*k}, v{Du+2*k+1}")

    def prologue(self):
        A = self.A
        self.setup()
        self.a_build()
        self.conv_block(0, 30)
        self.conv_block(1, 28)
        self.w1_prep()
        self.w2_loads()
        self.conv_block(2, 8 + 18)
        self.conv_block(3, 6 + 18)
        self.ln_tile_full('L')
        self.ln_tile_full(0)
        self.conv_block(4, 4 + 18)
        self.conv_block(5, 2 + 18)
        self.ln_tile_full(1)
        self.conv_block(6, 0 + 18)
        A("  s_waitcnt lgkmcnt(0)\n  s_barrier")
        self.ln_tile_full(2)

    def a_addr(self, seg):
        self.A(f"""  s_add_u32 s{sT}, s{sW}, {seg}
  s_and_b32 s{sT}, s{sT}, 3
  s_mul_i32 s{sT}, s{sT}, 18432
  v_add_u32 v{vAADR}, s{sT}, v{vLANE16}""")
    def a_loads(self, i):
        return [f"  ds_read_b128 {a_(aFR+4*s,4)}, v{vAADR} offset:{(i%6)*3072 + s*1024}" for s in range(3)]
    def tiles(self, i): return 4 if i < 6 else 3
    def accregs(self, i):
        base = P0 if i % 2 == 0 else P1
        l = [base, base + 4, base + 8]
        if i < 6: l.append(P0L if i % 2 == 0 else P1L)
        return l
    def gemm1_mfmas(self, i):
        acc = self.accregs(i)
        out = []
        for s in range(3):
            for tl in range(self.tiles(i)):
                B = v(YH[tl] + 4 * s, 4) if tl < 3 else v(YL[s], 4)
                C = "0" if s == 0 else v(acc[tl], 4)
                out.append(f"  v_mfma_f32_16x16x32_bf16 {v(acc[tl],4)}, {a_(aFR+4*s,4)}, {B}, {C}")
        return out
    def dpp_tail(self, i):
        b0, b1, c = DP, DP + 1, DP + 2
        mj = [sM0, sM1, sM2, sM3][i % 4]
        return [
            f"  v_add_f32_dpp v{b0}, v{AS}, v{AS} row_ror:8 row_mask:0xf bank_mask:0x3",
            f"  v_add_f32_dpp v{b0}, v{AS+1}, v{AS+1} row_ror:8 row_mask:0xf bank_mask:0xc",
            f"  v_add_f32_dpp v{b1}, v{AS+2}, v{AS+2} row_ror:8 row_mask:0xf bank_mask:0x3",
            f"  v_add_f32_dpp v{b1}, v{AS+3}, v{AS+3} row_ror:8 row_mask:0xf bank_mask:0xc",
            f"  v_add_f32_dpp v{c}, v{b0}, v{b0} row_half_mirror row_mask:0xf bank_mask:0x5",
            f"  v_add_f32_dpp v{c}, v{b1}, v{b1} row_half_mirror row_mask:0xf bank_mask:0xa",
            f"  v_add_f32_dpp v{c}, v{c}, v{c} quad_perm:[1,0,3,2] row_mask:0xf bank_mask:0xf",
            f"  v_add_f32_dpp v{c}, v{c}, v{c} quad_perm:[2,3,0,1] row_mask:0xf bank_mask:0xf",
            f"  v_cndmask_b32 v{ST + i//4}, v{ST + i//4}, v{c}, {sp(mj)}",
        ]
    def hdst(self, i, tl, j):
        if tl < 3: return H[tl] + 2 * i + j
        return HL + 2 * i + j
    def gelu_iter(self, i, pend):
        A = self.A
        A(f"; ==== gelu iter {i}")
        nt = self.tiles(i)
        acc = self.accregs(i)
        T = [TT, TT + 4, TT + 8] + ([TTL] if nt == 4 else [])
        pairs = [(tl, h) for tl in range(nt) for h in range(2)]
        U = lambda tl, h: v(acc[tl] + 2 * h, 2)
        TP = lambda tl, h: v(T[tl] + 2 * h, 2)
        s1 = [f"  v_pk_fma_f32 {TP(tl,h)}, {U(tl,h)}, {U(tl,h)}, {sp(sBETA)}" for tl, h in pairs]
        s2 = [f"  v_pk_mul_f32 {TP(tl,h)}, {TP(tl,h)}, {U(tl,h)}" for tl, h in pairs]
        seq = s1 + s2
        out = []
        pend = list(pend)
        slots = {0: [0, 1], 1: [2, 3], 3: [4, 5], 6: [6], 9: [7], 11: [8]} if pend else {}
        for k, ins in enumerate(seq):
            out.append(ins)
            for x in slots.get(k, []): out.append(pend[x])
        done = set(x for k, l in slots.items() if k < len(seq) for x in l)
        for x in range(len(pend)):
            if x not in done: out.append(pend[x])
        for l in out: A(l)
        exps = [f"  v_exp_f32 v{T[tl]+j}, v{T[tl]+j}" for tl in range(nt) for j in range(4)]
        if i + 1 < 24:
            mf = self.gemm1_mfmas(i + 1)
            A("  s_waitcnt lgkmcnt(0)")
            e = 0
            for k, m in enumerate(mf):
                A(m)
                if k < len(mf) - 1:
                    A(exps[e]); e += 1
            if i + 2 < 24:
                if (i + 2) % 6 == 0: self.a_addr((i + 2) // 6)
                for l in self.a_loads(i + 2): A(l)
            while e < len(exps): A(exps[e]); e += 1
        else:
            for x in exps: A(x)
        for tl, h in pairs: A(f"  v_pk_add_f32 {TP(tl,h)}, {TP(tl,h)}, 1.0 op_sel_hi:[1,0]")
        for tl in range(nt):
            for j in range(4): A(f"  v_rcp_f32 v{T[tl]+j}, v{T[tl]+j}")
        for tl, h in pairs: A(f"  v_pk_mul_f32 {TP(tl,h)}, {TP(tl,h)}, {U(tl,h)}")
        for tl in range(nt):
            for h in range(2):
                if tl == 0: A(f"  v_pk_mul_f32 {v(AS+2*h,2)}, {TP(tl,h)}, {TP(tl,h)}")
                else: A(f"  v_pk_fma_f32 {v(AS+2*h,2)}, {TP(tl,h)}, {TP(tl,h)}, {v(AS+2*h,2)}")
        for tl, h in pairs:
            A(f"  v_cvt_pk_bf16_f32 v{self.hdst(i,tl,h)}, v{T[tl]+2*h}, v{T[tl]+2*h+1}")
        return self.dpp_tail(i)
    def gelu(self):
        A = self.A
        A("; ==== gelu prologue")
        self.a_addr(0)
        for l in self.a_loads(0): A(l)
        for k in range(6): A(f"  v_mov_b32 v{ST+k}, 0")
        A("  s_waitcnt lgkmcnt(0)")
        for m in self.gemm1_mfmas(0): A(m)
        for l in self.a_loads(1): A(l)
        A("  s_nop 7")
        pend = []
        for i in range(24): pend = self.gelu_iter(i, pend)
        A("; ==== gelu tail")
        for l in pend: A(l)

    def w2_loads(self):
        A = self.A
        t = 228
        A(f"""  s_mul_i32 s{sT}, s{sW}, 96
  v_add_u32 v{t}, s{sT}, v{vN}
  v_mul_u32_u24 v{t}, 192, v{t}
  v_lshl_add_u32 v{t}, v{vQ}, 4, v{t}""")
        for tl in range(6):
            A(f"  s_mov_b32 s{sT}, {tl*3072}")
            for a in range(3):
                A(f"  buffer_load_dwordx4 {a_(aNAT+(tl*3+a)*4,4)}, v{t}, {srd(sW2)}, s{sT} offen offset:{64*a}")

    def publish(self):
        A = self.A
        t = TT
        A(f"""  v_and_b32 v{t}, 3, v{vN}                 ; j
  s_mul_i32 s{sT}, s{sW}, 6
  v_add_u32 v{t}, s{sT}, v{t}               ; idx0 = 6w + j
  v_lshrrev_b32 v{t+1}, 2, v{vN}            ; bank b
  v_and_b32 v{t+2}, 1, v{t+1}
  v_lshrrev_b32 v{t+1}, 1, v{t+1}
  v_lshl_or_b32 v{t+1}, v{t+2}, 1, v{t+1}   ; r(b)
  v_lshl_add_u32 v{t+1}, v{vQ}, 2, v{t+1}   ; 4q + r
  v_lshlrev_b32 v{t+1}, 2, v{t+1}
  s_mul_i32 s{sT}, s{sW}, 1536
  s_add_u32 s{sT}, s{sT}, {PS}
  v_add_u32 v{t+1}, s{sT}, v{t+1}""")
        for k in range(6):
            A(f"""  v_add_u32 v{t+2}, {4*k}, v{t}
  v_subrev_u32 v{t+3}, 24, v{t+2}
  v_min_u32 v{t+2}, v{t+2}, v{t+3}
  v_lshl_add_u32 v{t+2}, v{t+2}, 6, v{t+1}
  ds_write_b32 v{t+2}, v{ST+k}""")
        A(f"""  s_waitcnt lgkmcnt(0)
  s_barrier
  ; tag
  s_add_u32 s{sTAG}, s{sTAG}, {hex(TAG_STEP)}
  s_cmp_eq_u32 s{sTAG}, 0
  s_cselect_b32 s{sT}, {hex(TAG_STEP)}, 0
  s_add_u32 s{sTAG}, s{sTAG}, s{sT}
  s_cmp_ge_u32 s{sW}, 2
  s_cbranch_scc1 L_nopub
  v_lshlrev_b32 v{t}, 2, v0
  v_add_u32 v{t}, {PS}, v{t}""")
        r = P0
        for w in range(4):
            A(f"  ds_read2st64_b32 {v(r+2*w,2)}, v{t} offset0:{6*w} offset1:{6*w+2}")
        A(f"  ds_read2st64_b32 {v(r+8,2)}, v{t} offset0:4 offset1:10")
        A(f"  ds_read2st64_b32 {v(r+10,2)}, v{t} offset0:16 offset1:22")
        A(f"""  v_lshlrev_b32 v{t+1}, 12, v0
  s_lshl_b32 s{sT}, s2, 4
  s_add_u32 s{sT}, s{sT}, {L1_OFF}
  v_add_u32 v{t+1}, s{sT}, v{t+1}
  s_waitcnt lgkmcnt(0)
  v_add_f32 v{t+4}, v{r}, v{r+2}
  v_add_f32 v{t+5}, v{r+1}, v{r+3}
  v_add_f32 v{t+6}, v{r+8}, v{r+9}
  v_add_f32 v{r+4}, v{r+4}, v{r+6}
  v_add_f32 v{r+5}, v{r+5}, v{r+7}
  v_add_f32 v{r+10}, v{r+10}, v{r+11}
  v_add_f32 v{t+4}, v{t+4}, v{r+4}
  v_add_f32 v{t+5}, v{t+5}, v{r+5}
  v_add_f32 v{t+6}, v{t+6}, v{r+10}
  v_mov_b32 v{t+7}, s{sTAG}
  global_store_dwordx4 v{t+1}, {v(t+4,4)}, s[20:21] sc1
L_nopub:""")

    def reducer(self):
        A = self.A
        t = TT
        r = P0
        A(f"""  s_cmp_lg_u32 s{sW}, 3
  s_cbranch_scc1 L_nored
  s_cmp_ge_u32 s2, 128
  s_cbranch_scc1 L_nored
  s_lshl_b32 s{sT}, s2, 12
  s_add_u32 s{sT}, s{sT}, {L1_OFF}
  v_add_u32 v{t}, s{sT}, v{vLANE16}
  s_mov_b32 s{sT+2}, 0
L_poll1:""")
        for k in range(4):
            A(f"  global_load_dwordx4 {v(r+4*k,4)}, v{t}, s[20:21] offset:{1024*k} sc1")
        A(f"""  s_add_u32 s{sT+2}, s{sT+2}, 1
  s_waitcnt vmcnt(0)
  v_cmp_eq_u32 vcc, s{sTAG}, v{r+3}
  v_cmp_eq_u32 s[{sT+4}:{sT+5}], s{sTAG}, v{r+7}
  v_cmp_eq_u32 s[{sT+6}:{sT+7}], s{sTAG}, v{r+11}
  v_cmp_eq_u32 s[{sT+8}:{sT+9}], s{sTAG}, v{r+15}
  s_and_b64 vcc, vcc, s[{sT+4}:{sT+5}]
  s_and_b64 s[{sT+6}:{sT+7}], s[{sT+6}:{sT+7}], s[{sT+8}:{sT+9}]
  s_and_b64 vcc, vcc, s[{sT+6}:{sT+7}]
  s_cmp_eq_u64 vcc, exec
  s_cbranch_scc1 L_red_go
  s_cmp_lt_u32 s{sT+2}, {self.o.spin}
  s_cbranch_scc1 L_poll1
L_red_go:""")
        for c in range(3):
            A(f"  v_add_f32 v{r+c}, v{r+c}, v{r+4+c}\n  v_add_f32 v{r+8+c}, v{r+8+c}, v{r+12+c}")
        for c in range(3): A(f"  v_add_f32 v{r+c}, v{r+c}, v{r+8+c}")
        for d in ("row_shr:1 row_mask:0xf", "row_shr:2 row_mask:0xf", "row_shr:4 row_mask:0xf", "row_shr:8 row_mask:0xf", "row_bcast:15 row_mask:0xa", "row_bcast:31 row_mask:0xc"):
            for c in range(3): A(f"  v_add_f32_dpp v{r+c}, v{r+c}, v{r+c} {d} bank_mask:0xf")
        for c in range(3): A(f"  v_readlane_b32 s{sT+4+c}, v{r+c}, 63")
        A(f"""  s_lshl_b32 s{sT}, s2, 4
  s_add_u32 s{sT}, s{sT}, {FIN_OFF}
  v_lshlrev_b32 v{t}, 11, v{vN}
  v_add_u32 v{t}, s{sT}, v{t}
  v_mov_b32 v{r}, s{sT+4}
  v_mov_b32 v{r+1}, s{sT+5}
  v_mov_b32 v{r+2}, s{sT+6}
  v_mov_b32 v{r+3}, s{sTAG}
  s_mov_b64 exec, {(1<<NREP)-1}
  global_store_dwordx4 v{t}, {v(r,4)}, s[20:21] sc1
  s_mov_b64 exec, -1
L_nored:""")

    DW2 = 100
    XR = 8; CC = 44; SPR = 68
    vOUT = 92; vB2 = 95
    def dw2(self, tl, a, b): return self.DW2 + ((tl * 3 + a) * 2 + b) * 4

    def px_addr(self, slot, dst):
        A = self.A
        t1, t2 = 244, 245
        A(f"""  s_lshl_b32 s{sT}, s{sW}, 4
  s_add_u32 s{sT}, s{sT}, {4 + 64*slot}
  v_add_u32 v{dst}, s{sT}, v{vN}
  v_mul_u32_u24 v{t1}, 4682, v{dst}
  v_lshrrev_b32 v{t1}, 16, v{t1}
  v_mul_u32_u24 v{t2}, 14, v{t1}
  v_sub_u32 v{dst}, v{dst}, v{t2}
  v_add_u32 v{t1}, s{sY0}, v{t1}
  v_mul_u32_u24 v{t1}, 224, v{t1}
  v_add_u32 v{dst}, v{dst}, v{t1}
  v_add_u32 v{dst}, s{sX0}, v{dst}
  v_mul_u32_u24 v{dst}, 192, v{dst}
  v_lshl_add_u32 v{dst}, v{vQ}, 4, v{dst}""")

    def wait_work(self):
        A = self.A
        for k in range(100, 256): A(f"  v_accvgpr_write_b32 a{k}, v{k}")
        for sl in range(3): self.px_addr(sl, self.vOUT + sl)
        for sl in range(3):
            for a in range(3):
                A(f"  buffer_load_dwordx4 {v(self.XR + (sl*3+a)*4, 4)}, v{self.vOUT+sl}, {srd(sX)}, 0 offen offset:{64*a}")
        A(f"""  s_mul_i32 s{sT}, s{sW}, 192
  v_lshlrev_b32 v244, 3, v{vQ}
  v_add_u32 v244, s{sT}, v244""")
        for ul in range(3):
            for z in range(2):
                A(f"  global_load_dwordx2 {a_(aFR+4*ul+2*z,2)}, v244, s[14:15] offset:{64*ul + 32*z}")
        A(f"  v_lshrrev_b32 v245, 3, v{vLANE16}")
        for z in range(2):
            for c in range(3):
                A(f"  global_load_ushort v{246 + z*3 + c}, v245, s[12:13] offset:{128*z + 256*c}")
        A(f"""  v_and_b32 v244, 1, v{vN}
  v_lshlrev_b32 v244, 4, v244
  v_mov_b32 v245, 0x3f80
  v_lshlrev_b32 v244, v244, v245
  v_bfe_u32 v245, v{vN}, 1, 1
  v_lshrrev_b32 v252, 2, v{vN}
  v_cmp_eq_u32 s[{sT+2}:{sT+3}], v252, v{vQ}""")
        for b in range(2):
            for j in range(4):
                if j // 2 == b:
                    A(f"""  v_cmp_eq_u32 vcc, {j % 2}, v245
  s_and_b64 vcc, vcc, s[{sT+2}:{sT+3}]
  v_cndmask_b32 v252, 0, v244, vcc
  v_accvgpr_write_b32 {a_(aSEL+4*b+j)}, v252""")
                else:
                    A(f"  v_accvgpr_write_b32 {a_(aSEL+4*b+j)}, 0")
        A("  s_waitcnt vmcnt(21)")
        for tl in range(6):
            for a in range(3):
                for b in range(2):
                    A(f"  v_mfma_f32_16x16x32_bf16 {v(self.dw2(tl,a,b),4)}, {a_(aNAT+(tl*3+a)*4,4)}, {a_(aSEL+4*b,4)}, 0")
        for k in range(4):
            A(f"""  s_add_u32 s{sT}, s{sW}, {k}
  s_and_b32 s{sT}, s{sT}, 3
  s_mul_i32 s{sT}, s{sT}, 3072
  v_add_u32 v{self.vB2+k}, s{sT}, v{vLANE16}""")
        A("  s_waitcnt vmcnt(6)")
        Q = 252
        for t in range(6):
            a, b = t // 2, t % 2
            for ul in range(3):
                d0, d1 = self.dw2(2*ul, a, b), self.dw2(2*ul+1, a, b)
                A(f"""  v_cvt_pk_bf16_f32 v{Q}, v{d0}, v{d0+1}
  v_cvt_pk_bf16_f32 v{Q+1}, v{d0+2}, v{d0+3}
  v_cvt_pk_bf16_f32 v{Q+2}, v{d1}, v{d1+1}
  v_cvt_pk_bf16_f32 v{Q+3}, v{d1+2}, v{d1+3}""")
                C = "0" if ul == 0 else v(self.CC+4*t, 4)
                A(f"  v_mfma_f32_16x16x32_bf16 {v(self.CC+4*t,4)}, {v(Q,4)}, {a_(aFR+4*ul,4)}, {C}")
        A(f"""  s_mul_i32 s{sT}, s{sW}, 384
  s_add_u32 s{sT}, s{sT}, {CP}
  v_lshlrev_b32 v244, 5, v{vQ}
  v_add_u32 v245, {CP}, v244
  v_add_u32 v244, s{sT}, v244
  s_mov_b32 exec_lo, 0x00010001
  s_mov_b32 exec_hi, 0x00010001
  s_nop 4""")
        for t in range(6):
            a, b = t // 2, t % 2
            A(f"  ds_write_b128 v244, {v(self.CC+4*t,4)} offset:{128*a + 16*b}")
        A("  s_mov_b64 exec, -1\n  s_waitcnt lgkmcnt(0)\n  s_barrier")
        tmp = self.SPR
        for t in range(6):
            a, b = t // 2, t % 2
            for w in range(4):
                dst = self.CC + 4*t if w == 0 else tmp + 4*(w-1) + (12 if t % 2 else 0)
                A(f"  ds_read_b128 {v(dst,4)}, v245 offset:{w*384 + 128*a + 16*b}")
            A("  s_waitcnt lgkmcnt(0)")
            o = tmp + (12 if t % 2 else 0)
            for r in range(4):
                A(f"""  v_add_f32 v{self.CC+4*t+r}, v{self.CC+4*t+r}, v{o+r}
  v_add_f32 v{o+4+r}, v{o+4+r}, v{o+8+r}
  v_add_f32 v{self.CC+4*t+r}, v{self.CC+4*t+r}, v{o+4+r}""")
        A(f"""  s_cmp_lg_u32 s{sW}, 0
  s_cbranch_scc1 L_nocv
  v_lshlrev_b32 v244, 5, v{vQ}
  v_add_u32 v244, {CV}, v244
  s_mov_b32 exec_lo, 0x00010001
  s_mov_b32 exec_hi, 0x00010001""")
        for t in range(6):
            a, b = t // 2, t % 2
            A(f"  ds_write_b128 v244, {v(self.CC+4*t,4)} offset:{128*a + 16*b}")
        A("  s_mov_b64 exec, -1\nL_nocv:\n  s_waitcnt vmcnt(0)")

    def final_poll(self):
        A = self.A
        r = self.SPR
        t = 76
        inv_a2 = 1.0 / (ALPHA * ALPHA)
        A(f"""  s_cmp_lg_u32 s{sW}, 0
  s_cbranch_scc1 L_nofin
  s_and_b32 s{sT}, s2, {NREP-1}
  s_lshl_b32 s{sT}, s{sT}, 11
  s_add_u32 s{sT}, s{sT}, {FIN_OFF}
  v_add_u32 v{t}, s{sT}, v{vLANE16}
  s_mov_b32 s{sT+2}, 0
L_poll2:
  global_load_dwordx4 {v(r,4)}, v{t}, s[20:21] sc1
  global_load_dwordx4 {v(r+4,4)}, v{t}, s[20:21] offset:1024 sc1
  s_add_u32 s{sT+2}, s{sT+2}, 1
  s_waitcnt vmcnt(0)
  v_cmp_eq_u32 vcc, s{sTAG}, v{r+3}
  v_cmp_eq_u32 s[{sT+4}:{sT+5}], s{sTAG}, v{r+7}
  s_and_b64 vcc, vcc, s[{sT+4}:{sT+5}]
  s_cmp_eq_u64 vcc, exec
  s_cbranch_scc1 L_fin_go
  s_cmp_lt_u32 s{sT+2}, {self.o.spin}
  s_cbranch_scc1 L_poll2
L_fin_go:""")
        vals = [r, r+1, r+2, r+4, r+5, r+6]
        A(f"  s_mov_b32 s{sT+4}, {hex(f2u(inv_a2))}\n  v_mov_b32 v{t+1}, {hex(f2u(1e-6))}")
        for x in vals: A(f"  v_fma_f32 v{x}, v{x}, s{sT+4}, v{t+1}")
        for x in vals: A(f"  v_sqrt_f32 v{x}, v{x}")
        A(f"""  v_add_f32 v{t+2}, v{r}, v{r+1}
  v_add_f32 v{t+3}, v{r+2}, v{r+4}
  v_add_f32 v{t+4}, v{r+5}, v{r+6}
  v_add_f32 v{t+2}, v{t+2}, v{t+3}
  v_add_f32 v{t+2}, v{t+2}, v{t+4}""")
        for d in ("row_shr:1 row_mask:0xf", "row_shr:2 row_mask:0xf", "row_shr:4 row_mask:0xf", "row_shr:8 row_mask:0xf", "row_bcast:15 row_mask:0xa", "row_bcast:31 row_mask:0xc"):
            A(f"  v_add_f32_dpp v{t+2}, v{t+2}, v{t+2} {d} bank_mask:0xf")
        A(f"""  v_readlane_b32 s{sT+4}, v{t+2}, 63
  v_mov_b32 v{t+3}, {hex(f2u(1e-6))}
  v_mov_b32 v{t+4}, {hex(f2u(1.0/384))}
  v_fma_f32 v{t+2}, s{sT+4}, v{t+4}, v{t+3}
  v_rcp_f32 v{t+2}, v{t+2}""")
        gmap = {r: 246, r+1: 247, r+2: 248, r+4: 249, r+5: 250, r+6: 251}
        A(f"  v_mov_b32 v{t+3}, {hex(f2u(1.0/ALPHA))}")
        for x in vals:
            g = gmap[x]
            A(f"""  v_lshlrev_b32 v{g}, 16, v{g}
  v_mul_f32 v{x}, v{x}, v{t+2}
  v_fma_f32 v{x}, v{x}, v{g}, 1.0
  v_mul_f32 v{x}, v{x}, v{t+3}""")
        A(f"  v_lshrrev_b32 v{t+4}, 2, v{vLANE16}\n  v_add_u32 v{t+4}, {SP}, v{t+4}")
        for z in range(2):
            for c in range(3):
                A(f"  ds_write_b32 v{t+4}, v{r+4*z+c} offset:{256*z + 512*c}")
        A(f"""  s_cmp_lg_u32 s2, 0
  s_cbranch_scc1 L_noepoch
  v_mov_b32 v{t}, {EPOCH_OFF}
  v_mov_b32 v{t+1}, s{sTAG}
  s_mov_b64 exec, 1
  global_store_dword v{t}, v{t+1}, s[20:21] sc1
  s_mov_b64 exec, -1
L_noepoch:
L_nofin:
  s_waitcnt lgkmcnt(0)
  s_barrier""")

    def w2_prep(self):
        A = self.A
        A("; ==== w2' prep")
        A(f"""  s_mul_i32 s{sT}, s{sW}, 384
  s_add_u32 s{sT}, s{sT}, {SP}
  v_lshlrev_b32 v244, 4, v{vQ}
  v_add_u32 v244, s{sT}, v244""")
        for tl in range(6): A(f"  ds_read_b128 {v(self.SPR+4*tl,4)}, v244 offset:{64*tl}")
        A(f"""  s_mul_i32 s{sT}, s{sW}, 3072
  v_add_u32 v245, s{sT}, v{vLANE16}
  s_waitcnt lgkmcnt(0)""")
        k = 0
        for a in range(3):
            for b in range(2):
                t = 2*a + b
                for ul in range(3):
                    Q = 248 + 4 * (k & 1); k += 1
                    for z in range(2):
                        d = self.dw2(2*ul+z, a, b); s_ = self.SPR + 4*(2*ul+z)
                        A(f"  v_pk_mul_f32 {v(d,2)}, {v(d,2)}, {v(s_,2)}")
                        A(f"  v_pk_mul_f32 {v(d+2,2)}, {v(d+2,2)}, {v(s_+2,2)}")
                    for z in range(2):
                        d = self.dw2(2*ul+z, a, b)
                        A(f"  v_cvt_pk_bf16_f32 v{Q+2*z}, v{d}, v{d+1}")
                        A(f"  v_cvt_pk_bf16_f32 v{Q+2*z+1}, v{d+2}, v{d+3}")
                    A(f"  ds_write_b128 v245, {v(Q,4)} offset:{t*12288 + ul*1024}")
                    if k % 8 == 0: A("  s_waitcnt lgkmcnt(2)")
        A("  s_waitcnt lgkmcnt(0)\n  s_barrier")

    def gemm2(self):
        A = self.A
        ACC = [100, 124]
        ACL = [148, 156]
        RING = 164
        NR = 4
        TMP = 180
        vLP = 196
        A("; ==== gemm2")
        A(f"""  s_mul_i32 s{sT}, s{sW}, 1536
  s_add_u32 s{sT}, s{sT}, {LP}
  v_mul_u32_u24 v{vLP}, 384, v{vN}
  v_lshl_add_u32 v{vLP}, v{vQ}, 5, v{vLP}
  v_add_u32 v{vLP}, s{sT}, v{vLP}""")
        steps = [(a, u, b) for a in range(3) for u in range(12) for b in range(2)]
        def rd(k):
            a, u, b = steps[k]
            return f"  ds_read_b128 {v(RING+4*(k%NR),4)}, v{self.vB2+u//3} offset:{(2*a+b)*12288 + (u%3)*1024}"
        def epilogue(a):
            L = []
            acc = ACC[a % 2]
            for sl in range(3):
                x = self.XR + (sl*3+a)*4
                o = TMP + 4 * (sl % 2)
                u = TMP + 8
                for j in range(4):
                    lo, hi = 2*j, 2*j+1
                    rl = acc + sl*8 + lo; rh = acc + sl*8 + hi
                    L.append(f"  v_lshlrev_b32 v{u}, 16, v{x+j}")
                    L.append(f"  v_and_b32 v{u+1}, 0xffff0000, v{x+j}")
                    L.append(f"  v_add_f32 v{rl}, v{rl}, v{u}")
                    L.append(f"  v_add_f32 v{rh}, v{rh}, v{u+1}")
                    L.append(f"  v_cvt_pk_bf16_f32 v{o+j}, v{rl}, v{rh}")
                L.append(f"  buffer_store_dwordx4 {v(o,4)}, v{self.vOUT+sl}, {srd(sO)}, 0 offen offset:{64*a}")
            return L
        def leftover_write(a):
            l = ACL[a % 2]
            return ["  s_mov_b32 exec_lo, 0x000f000f", "  s_mov_b32 exec_hi, 0x000f000f",
                    f"  ds_write_b128 v{vLP}, {v(l,4)} offset:{128*a}",
                    f"  ds_write_b128 v{vLP}, {v(l+4,4)} offset:{128*a+16}",
                    "  s_mov_b64 exec, -1"]
        for k in range(NR - 1): A(rd(k))
        pending = []
        nlds_extra = 0
        for k, (a, u, b) in enumerate(steps):
            if u == 0 and b == 0: A(f"; ---- gemm2 round {a}")
            if k + NR - 1 < len(steps):
                A(rd(k + NR - 1)); A(f"  s_waitcnt lgkmcnt({NR-1})")
            else:
                A(f"  s_waitcnt lgkmcnt({len(steps)-1-k})")
            acc = ACC[a % 2]
            fr = v(RING + 4*(k % NR), 4)
            for sl in range(3):
                d = acc + sl*8 + 4*b
                C = v(self.CC + 4*(2*a+b), 4) if u == 0 else v(d, 4)
                A(f"  v_mfma_f32_16x16x32_bf16 {v(d,4)}, {fr}, {a_(H[sl]+4*u,4)}, {C}")
                for _ in range(2):
                    if pending and not (u == 0): A(pending.pop(0))
            if u < 3:
                d = ACL[a % 2] + 4*b
                C = "0" if u == 0 else v(d, 4)
                A(f"  v_mfma_f32_16x16x32_bf16 {v(d,4)}, {fr}, {a_(HL+4*u,4)}, {C}")
            if u == 4 and b == 1:
                A("  s_waitcnt lgkmcnt(0)")
                for l in leftover_write(a): A(l)
                A("  s_waitcnt lgkmcnt(0)")
            if u == 11 and b == 1:
                while pending: A(pending.pop(0))
                pending = epilogue(a)
        A("  s_nop 7")
        while pending: A(pending.pop(0))
        A(f"""  s_waitcnt lgkmcnt(0)
  s_barrier
  v_lshrrev_b32 v200, 4, v{vLANE16}          ; lane
  s_mul_i32 s{sT}, s{sW}, 384
  s_add_u32 s{sT}, s{sT}, {LP}
  v_lshlrev_b32 v201, 5, v200
  v_add_u32 v202, {CV}, v201
  v_add_u32 v201, s{sT}, v201
  s_mul_i32 s{sT}, s{sY0}, 224
  s_add_u32 s{sT}, s{sT}, s{sX0}
  s_add_u32 s{sT}, s{sT}, s{sW}
  s_mul_i32 s{sT}, s{sT}, 192
  v_add_u32 v203, s{sT}, v{vLANE16}
  s_mov_b64 exec, 0xfff
  buffer_load_dwordx4 v[204:207], v203, {srd(sX)}, 0 offen""")
        for w in range(4):
            A(f"  ds_read_b128 {v(208+8*w,4)}, v201 offset:{w*1536}\n  ds_read_b128 {v(212+8*w,4)}, v201 offset:{w*1536+16}")
        A("  ds_read_b128 v[240:243], v202\n  ds_read_b128 v[244:247], v202 offset:16\n  s_waitcnt lgkmcnt(0)")
        for j in range(8):
            A(f"""  v_add_f32 v{208+j}, v{208+j}, v{216+j}
  v_add_f32 v{224+j}, v{224+j}, v{232+j}
  v_add_f32 v{208+j}, v{208+j}, v{240+j}
  v_add_f32 v{208+j}, v{208+j}, v{224+j}""")
        A("  s_waitcnt vmcnt(0)")
        for j in range(4):
            A(f"""  v_lshlrev_b32 v216, 16, v{204+j}
  v_and_b32 v217, 0xffff0000, v{204+j}
  v_add_f32 v{208+2*j}, v{208+2*j}, v216
  v_add_f32 v{209+2*j}, v{209+2*j}, v217
  v_cvt_pk_bf16_f32 v{220+j}, v{208+2*j}, v{209+2*j}""")
        A(f"  buffer_store_dwordx4 v[220:223], v203, {srd(sO)}, 0 offen")

    def dump_lds(self, label, off, nbytes, wsoff):
        A = self.A
        A("  s_waitcnt vmcnt(0) lgkmcnt(0)\n  s_barrier")
        n = (nbytes + 4095) // 4096
        A(f"""  v_lshlrev_b32 v5, 4, v0
  s_mul_i32 s{sT}, s2, {n*4096}
  s_add_u32 s{sT}, s{sT}, {wsoff}
  v_add_u32 v6, s{sT}, v5
  v_add_u32 v5, {off}, v5""")
        for k in range(n):
            A(f"""  ds_read_b128 v[220:223], v5
  s_waitcnt lgkmcnt(0)
  global_store_dwordx4 v6, v[220:223], s[20:21]
  s_waitcnt vmcnt(0)
  v_add_u32 v5, 4096, v5
  v_add_u32 v6, 4096, v6""")

    def dump_regs(self, label, regs, wsoff, acc=False):
        A = self.A
        n = len(regs)
        A(f"""  s_waitcnt vmcnt(0) lgkmcnt(0)
  v_lshlrev_b32 v5, 2, v0
  s_mul_i32 s{sT}, s2, {n*1024}
  s_add_u32 s{sT}, s{sT}, {wsoff}
  v_add_u32 v5, s{sT}, v5""")
        for k, r in enumerate(regs):
            if acc: A(f"  v_accvgpr_read_b32 v6, a{r}\n  global_store_dword v5, v6, s[20:21]")
            else: A(f"  global_store_dword v5, v{r}, s[20:21]")
            A("  v_add_u32 v5, 1024, v5")
            if k % 32 == 31: A("  s_waitcnt vmcnt(0)")
        A("  s_waitcnt vmcnt(0)")

    def build(self):
        o = self.o; A = self.A
        self.prologue()
        if o.stop == 'ln':
            self.dump_regs('yhat', list(range(YH[0], YH[0]+36)) + [YL[0]+k for k in range(4)] + [YL[1]+k for k in range(4)] + [YL[2]+k for k in range(4)], DBG_OFF)
            self.dump_lds('lds', 0, 151552, DBG_OFF + (16 << 20))
            A("  s_branch L_end")
        self.gelu()
        if o.stop == 'gelu':
            self.dump_regs('h', list(range(100, 256)) + list(range(ST, ST+6)), DBG_OFF)
            A("  s_branch L_end")
        self.publish()
        self.reducer()
        self.wait_work()
        self.final_poll()
        self.w2_prep()
        if o.stop == 'prep':
            self.dump_lds('lds', 0, 90112, DBG_OFF)
            A("  s_branch L_end")
        self.gemm2()
        A("L_end:\n  s_endpgm")
        body = A.finalize(verbose=not o.quiet)
        hdr = f"""; Fused SLaK-style block: 5x5 depthwise conv + LayerNorm + GEMM(96->384) + GELU + GRN + GEMM(384->96) + residual.
; @launch grid=(256,1,1) block=(256,1,1) lds={LDS_BYTES}
.amdgcn_target "amdgcn-amd-amdhsa--gfx950"
.text
.globl {KNAME}
.p2align 8
.type {KNAME},@function
{KNAME}:
"""
        tail = f""".section .rodata,"a"
.p2align 6
.amdhsa_kernel {KNAME}
  .amdhsa_next_free_vgpr 512
  .amdhsa_next_free_sgpr 96
  .amdhsa_accum_offset 256
  .amdhsa_group_segment_fixed_size 0
  .amdhsa_kernarg_size 72
  .amdhsa_user_sgpr_count 2
  .amdhsa_user_sgpr_kernarg_segment_ptr 1
  .amdhsa_system_sgpr_workgroup_id_x 1
  .amdhsa_float_denorm_mode_32 3
.end_amdhsa_kernel
"""
        return hdr + body + tail

if __name__ == '__main__':
    ap = argparse.ArgumentParser()
    ap.add_argument('-o', default='out.s')
    ap.add_argument('--stop', default='')
    ap.add_argument('--spin', type=int, default=200000)
    ap.add_argument('--quiet', action='store_true')
    o = ap.parse_args()
    g = G(o)
    open(o.o, 'w').write(g.build())
    print("wrote", o.o)
```

```python
import sys, struct, math, argparse
from asmlib import Asm

def f2u(x): return struct.unpack('<I', struct.pack('<f', x))[0]
KNAME = "standalone__modern_conv_block_slak__vision_kernel"

C1 = -2.0 * math.sqrt(2.0 / math.pi) * math.log2(math.e)
C2 = C1 * 0.044715
ALPHA = -((-C2) ** (1.0 / 3.0))
BETA = C1 / ALPHA
W1F = 0
YB = 73728
XB = YB + 7680
XROW = 3840
DWT = XB + 18 * XROW
PS = YB
SP = YB + 6144
CP = SP + 1536
LP = CP + 1536
CV = LP + 6144
W2F = 0
LDS_BYTES = 163840
EPOCH_OFF = 0
L1_OFF = 4096
FIN_OFF = L1_OFF + 128 * 4096
NREP = 16
TAG_STEP = 0x9E3779B1
DBG_OFF = 0x200000

sX, sDW, sW1, sW2, sO = 24, 28, 32, 36, 40
sW, sX0, sY0, sTAG = 44, 45, 46, 47
sBETA = 50
sM0, sM1, sM2, sM3 = 52, 54, 56, 58
sDIAG = 60
sLEFT = 62
sBIG = 64
sT = 66
def srd(b): return f"s[{b}:{b+3}]"
def sp(b): return f"s[{b}:{b+1}]"
def v(a, n=1): return f"v{a}" if n == 1 else f"v[{a}:{a+n-1}]"
def a_(a, n=1): return f"a{a}" if n == 1 else f"a[{a}:{a+n-1}]"

vLANE16 = 1
vN = 2; vQ = 3
vAADR = 4
vTMP = 5
YH = [8, 20, 32]
P0, P1 = 44, 56
TT = 68
AS = 80
DP = 84
ST = 87
H = [100, 148, 196]
HL = 244
YL = [140, 144, 188]
P0L, P1L, TTL = 192, 236, 240
aNAT = 0
aFR = 72
aSEL = 84
aONE = 92
aH = 100

class G:
    def __init__(self, opts):
        self.o = opts
        self.A = Asm()
        self.stamps = []
    def stamp(self, name):
        if not self.o.prof: return
        k = len(self.stamps); self.stamps.append(name)
        self.A(f"  s_memtime s[78:79]\n  s_waitcnt lgkmcnt(0)\n  s_mov_b32 s{80+k}, s78")
    def stamp_dump(self):
        if not self.o.prof: return
        A = self.A
        A(f"""  s_mov_b64 exec, -1
  s_memrealtime s[78:79]
  s_lshl_b32 s{sT}, s2, 2
  s_add_u32 s{sT}, s{sT}, s{sW}
  s_lshl_b32 s{sT}, s{sT}, 7
  s_add_u32 s{sT}, s{sT}, {DBG_OFF}
  v_mov_b32 v5, s{sT}
  s_waitcnt lgkmcnt(0)
  s_mov_b64 exec, 1""")
        for k in range(len(self.stamps)):
            A(f"  v_mov_b32 v6, s{80+k}\n  global_store_dword v5, v6, s[20:21] offset:{4*k}")
        if self.o.dbgstamp:
            A(f"  s_cmp_lg_u32 s2, 100\n  s_cbranch_scc1 L_nodbg\n  s_cmp_lg_u32 s{sW}, 0\n  s_cbranch_scc1 L_nodbg\n  v_mov_b32 v7, 0")
            sel = [1,2,3,4,5,6,8,9,11,12,13,14,16,17,18,19]
            for j, k in enumerate(sel):
                A(f"  s_sub_u32 s78, s{80+k}, s80\n  v_mov_b32 v6, s78\n  global_store_dword v7, v6, s[18:19] offset:{4*j}")
            A("L_nodbg:\n  s_memrealtime s[78:79]\n  s_waitcnt lgkmcnt(0)")
        A(f"  v_mov_b32 v6, s78\n  global_store_dword v5, v6, s[20:21] offset:{4*30}")
        A(f"  v_mov_b32 v6, s49\n  global_store_dword v5, v6, s[20:21] offset:{4*31}")

    def setup(self):
        A = self.A
        A("; ==== setup")
        st0 = "  s_memrealtime s[48:49]\n  s_memtime s[78:79]\n  s_waitcnt lgkmcnt(0)\n  s_mov_b32 s80, s78\n  s_mov_b32 s49, s48" if self.o.prof else ""
        if self.o.prof: self.stamps.append('start')
        A(f"""
  s_cmp_ge_u32 s2, 256
  s_cbranch_scc1 L_end
{st0}
  s_load_dwordx16 s[4:19], s[0:1], 0
  s_load_dwordx2 s[20:21], s[0:1], 64
  v_lshrrev_b32 v5, 6, v0
  v_and_b32 v6, 63, v0
  v_readfirstlane_b32 s{sW}, v5
  v_lshlrev_b32 v{vLANE16}, 4, v6
  v_and_b32 v{vN}, 15, v6
  v_lshrrev_b32 v{vQ}, 4, v6
  s_and_b32 s{sT}, s2, 7
  s_lshr_b32 s{sT+1}, s2, 3
  s_and_b32 s{sT+2}, s{sT}, 3
  s_lshl_b32 s{sT+2}, s{sT+2}, 2
  s_and_b32 s{sT+3}, s{sT+1}, 3
  s_add_u32 s{sT+2}, s{sT+2}, s{sT+3}
  s_mul_i32 s{sX0}, s{sT+2}, 14
  s_lshr_b32 s{sT}, s{sT}, 2
  s_lshl_b32 s{sT}, s{sT}, 3
  s_lshr_b32 s{sT+1}, s{sT+1}, 2
  s_add_u32 s{sT}, s{sT}, s{sT+1}
  s_mul_i32 s{sY0}, s{sT}, 14
  s_mov_b32 s{sBIG}, 0x40000000
  ; x lane offsets: i=tid, col=i/13, k=i%13
  v_mul_u32_u24 v7, 5042, v0
  v_lshrrev_b32 v7, 16, v7
  v_mul_u32_u24 v8, 13, v7
  v_sub_u32 v8, v0, v8
  s_sub_i32 s{sT}, s{sX0}, 2
  v_add_u32 v9, s{sT}, v7
  v_mul_u32_u24 v10, 192, v9
  v_lshl_add_u32 v10, v8, 4, v10
  s_movk_i32 s{sT+1}, 224
  v_cmp_gt_u32 vcc, s{sT+1}, v9
  v_cmp_gt_u32 s[{sT+2}:{sT+3}], 12, v8
  s_movk_i32 s{sT+1}, 234
  v_cmp_gt_u32 s[{sT+4}:{sT+5}], s{sT+1}, v0
  v_mov_b32 v11, s{sBIG}
  s_and_b64 vcc, vcc, s[{sT+2}:{sT+3}]
  s_and_b64 vcc, vcc, s[{sT+4}:{sT+5}]
  v_cndmask_b32 v10, v11, v10, vcc
  v_lshlrev_b32 v12, 4, v0
  v_subrev_u32 v13, 960, v12
  v_cmp_le_u32 vcc, 60, v0
  v_add_u32 v12, 3136, v12
  s_nop 0
  v_cndmask_b32 v13, v11, v13, vcc
  v_mul_u32_u24 v14, 768, v{vN}
  v_lshl_add_u32 v14, v{vQ}, 4, v14
  s_mul_i32 s{sT}, s{sW}, 192
  v_add_u32 v14, s{sT}, v14
  s_waitcnt lgkmcnt(0)
""")
        self.stamp('karg')
        A(f"""  s_load_dword s{sTAG}, s[20:21], {EPOCH_OFF}
""")
        for base, ptr, n in ((sX, 4, 9633792), (sDW, 6, 4800), (sW1, 8, 73728), (sW2, 10, 73728), (sO, 16, 9633792)):
            A(f"""  s_mov_b32 s{base}, s{ptr}
  s_and_b32 s{base+1}, s{ptr+1}, 0xffff
  s_mov_b32 s{base+2}, {n}
  s_mov_b32 s{base+3}, 0x20000""")
        A(f"""  s_lshl_b32 s{sT}, s{sW}, 10
  s_add_u32 s{sT+1}, s{sT}, {DWT}
  s_mov_b32 m0, s{sT+1}
  s_add_u32 s{sT+1}, s{sT+1}, 4096
  buffer_load_dwordx4 v13, {srd(sDW)}, 0 offen lds
  s_mov_b32 m0, s{sT+1}
  s_add_u32 s{sT+1}, s{sT+1}, 4096
  buffer_load_dwordx4 v12, {srd(sDW)}, 0 offen lds
  s_mov_b32 m0, s{sT+1}
  s_movk_i32 s{sT+2}, 4096
  buffer_load_dwordx4 v12, {srd(sDW)}, s{sT+2} offen lds
  s_add_u32 s{sT+6}, s{sT}, {XB}
  s_cmp_eq_u32 s{sW}, 3
  s_cselect_b32 s{sT+9}, 0xffff, -1
""")
        def xrow(r):
            A(f"""  s_add_i32 s{sT}, s{sY0}, {r-2}
  s_mul_i32 s{sT+1}, s{sT}, 43008
  s_cmp_lt_u32 s{sT}, 224
  s_cselect_b32 s{sT+1}, s{sT+1}, s{sBIG}
  s_add_u32 m0, s{sT+6}, {r*XROW}
  s_nop 0
  buffer_load_dwordx4 v10, {srd(sX)}, s{sT+1} offen lds""")
        self.stamp('dw')
        A(f"  s_mov_b32 exec_hi, s{sT+9}")
        for r in range(9): xrow(r)
        self.stamp('x0')
        A("  s_mov_b32 exec_hi, -1")
        for g in range(6):
            A(f"  s_mov_b32 s{sT}, {g*12288}")
            for ul in range(3):
                A(f"  buffer_load_dwordx4 {a_(aNAT + (g*3+ul)*4, 4)}, v14, {srd(sW1)}, s{sT} offen offset:{64*ul}")
        self.stamp('w1ld')
        A(f"  s_mov_b32 exec_hi, s{sT+9}")
        for r in range(9, 18): xrow(r)
        self.stamp('x1')
        A("  s_mov_b32 exec_hi, -1")
        A(f"""
  s_mov_b32 s{sBETA}, {hex(f2u(BETA))}
  s_mov_b32 s{sBETA+1}, {hex(f2u(BETA))}
  s_mov_b32 s{sM0}, 0x11111111
  s_mov_b32 s{sM0+1}, 0x11111111
  s_mov_b32 s{sM1}, 0x22222222
  s_mov_b32 s{sM1+1}, 0x22222222
  s_mov_b32 s{sM2}, 0x44444444
  s_mov_b32 s{sM2+1}, 0x44444444
  s_mov_b32 s{sM3}, 0x88888888
  s_mov_b32 s{sM3+1}, 0x88888888
  s_mov_b32 s{sDIAG}, 0x00f0000f
  s_mov_b32 s{sDIAG+1}, 0xf0000f00
  s_mov_b32 s{sLEFT}, 0x000f000f
  s_mov_b32 s{sLEFT+1}, 0x000f000f
""")
        A(f"""
  v_and_b32 v15, 1, v{vN}
  v_lshlrev_b32 v15, 4, v15
  v_mov_b32 v16, 0x3f80
  v_lshlrev_b32 v15, v15, v16
  v_bfe_u32 v16, v{vN}, 1, 2
  v_lshrrev_b32 v17, 3, v{vN}
  v_sub_u32 v17, v{vQ}, v17
""")
        for b in range(2):
            for j in range(4):
                A(f"""  v_cmp_eq_u32 vcc, {2*b}, v17
  v_cmp_eq_u32 s[{sT}:{sT+1}], {j}, v16
  s_and_b64 vcc, vcc, s[{sT}:{sT+1}]
  v_cndmask_b32 v18, 0, v15, vcc
  v_accvgpr_write_b32 {a_(aSEL+4*b+j)}, v18""")
        A(f"  v_mov_b32 v18, 0x3f803f80")
        for j in range(4): A(f"  v_accvgpr_write_b32 {a_(aONE+j)}, v18")

    cA = 44
    cIDX = 92
    cBF, cBG0, cBG1, cYW = 93, 94, 95, 96
    cF = 196
    def conv_regs(self):
        self.cF = {}
        pool = list(range(100, 140, 8)) + list(range(148, 188, 8))
        k = 0
        for gl in range(3):
            for s in range(3):
                self.cF[(gl, s)] = pool[k]; k += 1
        self.cG = [pool[9], 192, 200]
        self.cD = [208, 212, 216]
        self.cT = 220

    def a_build(self):
        A = self.A
        self.conv_regs()
        t = self.cT
        A(f"""
  s_waitcnt vmcnt(36)
  s_barrier
  v_lshrrev_b32 v{t}, 3, v{vN}            ; ro
  v_and_b32 v{t+1}, 7, v{vN}              ; c
  v_lshrrev_b32 v{t+2}, 1, v{vQ}          ; a = q>>1
  v_sub_u32 v{t+2}, v{t+2}, v{t}          ; a - ro
  v_add_u32 v{t+2}, 1, v{t+2}
  v_mul_u32_u24 v{t+2}, 960, v{t+2}
  v_and_b32 v{t+3}, 1, v{vQ}
  v_mul_u32_u24 v{t+3}, 384, v{t+3}
  v_add_u32 v{t+2}, v{t+2}, v{t+3}
  v_lshl_add_u32 v{t+2}, v{t+1}, 1, v{t+2}
  s_mul_i32 s{sT}, s{sW}, 48
  s_add_u32 s{sT+1}, s{sT}, {DWT}
  v_add_u32 v{t+2}, s{sT+1}, v{t+2}       ; vF
  v_lshlrev_b32 v{t+3}, 1, v{vQ}
  v_sub_u32 v{t+3}, v{t+3}, v{t}
  v_add_u32 v{t+3}, 1, v{t+3}
  v_mul_u32_u24 v{t+3}, 960, v{t+3}
  v_lshl_add_u32 v{t+3}, v{t+1}, 1, v{t+3}
  s_add_u32 s{sT+1}, s{sT+1}, 768
  v_add_u32 v{t+3}, s{sT+1}, v{t+3}       ; vG
""")
        W = t + 8
        cnt = 0
        for gl in range(3):
            for f in range(4):
                for z in range(2):
                    r = W + (gl * 4 + f) * 2 + z
                    if f < 3: A(f"  ds_read_u16 v{r}, v{t+2} offset:{f*1920 + z*192 + 16*gl}")
                    else: A(f"  ds_read_u16 v{r}, v{t+3} offset:{z*960 + 16*gl}")
                    cnt += 1
                    if cnt == 12: A("  s_waitcnt lgkmcnt(0)")
        A(f"""
  v_cmp_gt_u32 vcc, 4, v{t+1}
  v_and_b32 v{t+4}, 3, v{t+1}
  v_add_u32 v{t+5}, 1, v{t+4}
  v_and_b32 v{t+5}, 3, v{t+5}
  v_lshl_or_b32 v{t+4}, v{t+5}, 2, v{t+4}
  s_movk_i32 s{sT+2}, 0x1111
  v_mul_u32_u24 v{self.cIDX}, s{sT+2}, v{t+4}
  v_cndmask_b32 v{t+4}, 0, -1, vcc        ; mlo
  v_not_b32 v{t+5}, v{t+4}                ; mhi
  v_add_u32 v{t+6}, v{vN}, v{vQ}
  v_mul_u32_u24 v{t+6}, 208, v{t+6}
  s_add_u32 s{sT+1}, s{sT}, {XB}
  v_add_u32 v{self.cBF}, s{sT+1}, v{t+6}
  v_mul_u32_u24 v{t+6}, 208, v{vN}
  s_add_u32 s{sT+2}, s{sT+1}, {4*208}
  v_add_u32 v{t+6}, s{sT+2}, v{t+6}        ; XB + 48w + (n+4)*208
  v_mul_u32_u24 v{t+7}, {XROW}, v{vQ}
  v_add_u32 v{self.cBG0}, v{t+6}, v{t+7}
  v_min_u32 v{t+7}, 1, v{vQ}
  v_add_u32 v{t+7}, 4, v{t+7}
  v_mul_u32_u24 v{t+7}, {XROW}, v{t+7}
  v_add_u32 v{self.cBG1}, v{t+6}, v{t+7}
  v_mul_u32_u24 v{t+6}, 208, v{vN}
  v_lshrrev_b32 v{t+7}, 1, v{vQ}
  v_mul_u32_u24 v{t+7}, 3328, v{t+7}
  v_add_u32 v{t+6}, v{t+6}, v{t+7}
  v_and_b32 v{t+7}, 1, v{vQ}
  v_lshl_add_u32 v{t+6}, v{t+7}, 3, v{t+6}
  s_add_u32 s{sT+1}, s{sT}, {YB}
  v_add_u32 v{self.cYW}, s{sT+1}, v{t+6}
  s_waitcnt lgkmcnt(0)
""")
        for gl in range(3):
            for f in range(4):
                r = W + (gl * 4 + f) * 2
                d = self.cA + (gl * 4 + f) * 4
                A(f"""  v_and_b32 v{d}, v{r}, v{t+4}
  v_and_b32 v{d+1}, v{r}, v{t+5}
  v_and_b32 v{d+2}, v{r+1}, v{t+4}
  v_and_b32 v{d+3}, v{r+1}, v{t+5}""")

    def conv_block(self, b, wait_vm):
        A = self.A
        Y = 2 * b
        A(f"  s_waitcnt vmcnt({wait_vm}) lgkmcnt(0)\n  s_barrier")
        Areg = lambda gl, f: v(self.cA + (gl * 4 + f) * 4, 4)
        def rdF(gl, rho):
            s = (rho // 2) % 3; r = self.cF[(gl, s)]
            A(f"  ds_read_b128 {v(r,4)}, v{self.cBF} offset:{rho*XROW + 16*gl}")
            A(f"  ds_read_b128 {v(r+4,4)}, v{self.cBF} offset:{(rho+1)*XROW + 16*gl}")
        def rdG(gl):
            r = self.cG[gl]
            A(f"  ds_read_b128 {v(r,4)}, v{self.cBG0} offset:{Y*XROW + 16*gl}")
            A(f"  ds_read_b128 {v(r+4,4)}, v{self.cBG1} offset:{Y*XROW + 16*gl}")
        if b == 0:
            for gl in range(3): rdF(gl, 0); rdF(gl, 2)
            for gl in range(3):
                for j in range(4): A(f"  v_mov_b32 v{self.cD[gl]+j}, 0")
            A("  s_waitcnt lgkmcnt(0)")
        for gl in range(3): rdF(gl, Y + 4); rdG(gl)
        if b != 0:
            for gl in range(3):
                for j in range(4): A(f"  v_mov_b32 v{self.cD[gl]+j}, 0")
        Freg = lambda gl, rho: v(self.cF[(gl, (rho // 2) % 3)], 8)
        for gl in range(3):
            A(f"  v_smfmac_f32_16x16x64_bf16 {v(self.cD[gl],4)}, {Areg(gl,0)}, {Freg(gl,Y)}, v{self.cIDX}")
            A(f"  v_smfmac_f32_16x16x64_bf16 {v(self.cD[gl],4)}, {Areg(gl,1)}, {Freg(gl,Y+2)}, v{self.cIDX}")
        for gl in range(3):
            A(f"  s_waitcnt lgkmcnt({(2-gl)*4 + 2})")
            A(f"  v_smfmac_f32_16x16x64_bf16 {v(self.cD[gl],4)}, {Areg(gl,2)}, {Freg(gl,Y+4)}, v{self.cIDX}")
            A(f"  s_waitcnt lgkmcnt({(2-gl)*4})")
            A(f"  v_smfmac_f32_16x16x64_bf16 {v(self.cD[gl],4)}, {Areg(gl,3)}, {v(self.cG[gl],8)}, v{self.cIDX}")
        t = self.cT
        for gl in range(3):
            d = self.cD[gl]
            A(f"  v_cvt_pk_bf16_f32 v{t+2*gl}, v{d}, v{d+1}")
            A(f"  v_cvt_pk_bf16_f32 v{t+2*gl+1}, v{d+2}, v{d+3}")
            A(f"  ds_write_b64 v{self.cYW}, {v(t+2*gl,2)} offset:{b*7680 + 16*gl}")

    def w1_prep(self):
        A = self.A
        A("; ==== w1 prep")
        t = self.cT + 8
        A(f"""  s_waitcnt vmcnt(9)
  s_mul_i32 s{sT}, s{sW}, 18432
  v_add_u32 v{t}, s{sT}, v{vLANE16}""")
        D = t + 4
        Fr = t + 20
        k = 0
        jobs = [(ul, b, s) for ul in range(3) for b in range(2) for s in range(3)]
        def mf(job, buf):
            ul, b, s = job
            for gp in range(2):
                g = 2 * s + gp
                A(f"  v_mfma_f32_16x16x32_bf16 {v(D+8*buf+4*gp,4)}, {a_(aNAT+(g*3+ul)*4,4)}, {a_(aSEL+4*b,4)}, 0")
        mf(jobs[0], 0)
        for k, job in enumerate(jobs):
            buf = k & 1
            if k + 1 < len(jobs): mf(jobs[k + 1], buf ^ 1)
            else: A("  s_nop 1")
            ul, b, s = job
            d = D + 8 * buf; f = Fr + 4 * buf
            A(f"  s_nop 3")
            for j in range(4):
                A(f"  v_cvt_pk_bf16_f32 v{f+j}, v{d+2*j}, v{d+2*j+1}")
            A(f"  ds_write_b128 v{t}, {v(f,4)} offset:{((2*ul+b)*3+s)*1024}")
            if k % 8 == 7: A("  s_waitcnt lgkmcnt(4)")

    def ln_addr(self, slot, dst):
        A = self.A
        if slot == 'L':
            A(f"  v_min_u32 v{dst}, 3, v{vN}")
        else:
            A(f"""  s_lshl_b32 s{sT}, s{sW}, 4
  s_add_u32 s{sT}, s{sT}, {4 + 64*slot}
  v_add_u32 v{dst}, s{sT}, v{vN}""")
        A(f"""  v_mul_u32_u24 v{dst+1}, 4682, v{dst}
  v_lshrrev_b32 v{dst+1}, 16, v{dst+1}       ; R
  v_mul_u32_u24 v{dst+2}, 14, v{dst+1}
  v_sub_u32 v{dst}, v{dst}, v{dst+2}         ; x
  v_mul_u32_u24 v{dst}, 208, v{dst}
  v_lshl_add_u32 v{dst}, v{vQ}, 4, v{dst}
  v_lshrrev_b32 v{dst+2}, 1, v{dst+1}
  v_mul_u32_u24 v{dst+2}, 7680, v{dst+2}
  v_add_u32 v{dst}, v{dst}, v{dst+2}
  v_and_b32 v{dst+1}, 1, v{dst+1}
  v_mul_u32_u24 v{dst+1}, 3328, v{dst+1}
  v_add_u32 v{dst}, v{dst}, v{dst+1}
  v_add_u32 v{dst}, {YB}, v{dst}""")

    def ln_tile(self, slot):
        A = self.A
        adr = 220; st = 224; Yr = 232; Ds = 244; Dg = 248
        dest = (lambda k: YH[slot] + k) if slot != 'L' else (lambda k: YL[k // 4] + k % 4)
        self.ln_addr(slot, adr)
        for s in range(3): A(f"  ds_read_b128 {v(Yr+4*s,4)}, v{adr} offset:{64*s}")
        A("  s_waitcnt lgkmcnt(0)")
        for s in range(3):
            A(f"  v_mfma_f32_16x16x32_bf16 {v(Dg,4)}, {v(Yr+4*s,4)}, {v(Yr+4*s,4)}, " + ("0" if s == 0 else v(Dg,4)))
        for s in range(3):
            A(f"  v_mfma_f32_16x16x32_bf16 {v(Ds,4)}, {a_(aONE,4)}, {v(Yr+4*s,4)}, " + ("0" if s == 0 else v(Ds,4)))
        return dict(Yr=Yr, Ds=Ds, Dg=Dg, st=st, dest=dest, slot=slot)

    def ln_tile_full(self, slot, Du=192):
        A = self.A
        c = self.ln_tile(slot)
        Yr, Ds, Dg, st, dest = c['Yr'], c['Ds'], c['Dg'], c['st'], c['dest']
        for s in range(3):
            for b in range(2):
                A(f"  v_mfma_f32_16x16x32_bf16 {v(Du+8*s+4*b,4)}, {a_(aSEL+4*b,4)}, {v(Yr+4*s,4)}, 0")
        A(f"""  v_cndmask_b32 v{st}, v{Dg}, v{Dg+1}, {sp(sM1)}
  v_cndmask_b32 v{st}, v{st}, v{Dg+2}, {sp(sM2)}
  v_cndmask_b32 v{st}, v{st}, v{Dg+3}, {sp(sM3)}
  v_cndmask_b32 v{st}, 0, v{st}, {sp(sDIAG)}
  v_mov_b32 v{st+1}, 1.0
  s_nop 0
  v_mfma_f32_16x16x4_f32 {v(Dg,4)}, v{st+1}, v{st}, 0
  v_mul_f32 v{st+2}, {hex(f2u(1.0/96))}, v{Ds}          ; mean
  s_nop 7
  s_nop 1
  v_mul_f32 v{st+3}, {hex(f2u(1.0/96))}, v{Dg}          ; E[y^2]
  v_fma_f32 v{st+3}, -v{st+2}, v{st+2}, v{st+3}
  v_max_f32 v{st+3}, 0, v{st+3}
  v_add_f32 v{st+3}, {hex(f2u(1e-5))}, v{st+3}
  v_rsq_f32 v{st+3}, v{st+3}
  s_nop 0
  v_mul_f32 v{st+4}, {hex(f2u(ALPHA))}, v{st+3}          ; rho
""")
        if slot == 'L': A(f"  v_cndmask_b32 v{st+4}, 0, v{st+4}, {sp(sLEFT)}")
        A(f"  v_mul_f32 v{st}, v{st+2}, v{st+4}\n  v_sub_f32 v{st}, 0, v{st}")
        assert (st % 2) == 0
        for k in range(12):
            A(f"  v_pk_fma_f32 {v(Du+2*k,2)}, {v(Du+2*k,2)}, {v(st+4,2)}, {v(st,2)} op_sel_hi:[1,0,0]")
        for k in range(12):
            A(f"  v_cvt_pk_bf16_f32 v{dest(k)}, v{Du+2*k}, v{Du+2*k+1}")

    def prologue(self):
        A = self.A
        self.setup()
        self.stamp('issued')
        self.a_build()
        self.stamp('abuild')
        self.conv_block(0, 30)
        self.conv_block(1, 28)
        self.stamp('blk1')
        self.w1_prep()
        self.w2_loads()
        self.stamp('w1prep')
        self.conv_block(2, 8 + 18)
        self.conv_block(3, 6 + 18)
        self.ln_tile_full('L')
        self.ln_tile_full(0)
        self.conv_block(4, 4 + 18)
        self.conv_block(5, 2 + 18)
        self.ln_tile_full(1)
        self.stamp('ln1')
        self.conv_block(6, 0 + 18)
        self.stamp('blk6')
        A("  s_waitcnt lgkmcnt(0)\n  s_barrier")
        self.ln_tile_full(2)

    def a_addr(self, seg):
        self.A(f"""  s_add_u32 s{sT}, s{sW}, {seg}
  s_and_b32 s{sT}, s{sT}, 3
  s_mul_i32 s{sT}, s{sT}, 18432
  v_add_u32 v{vAADR}, s{sT}, v{vLANE16}""")
    def a_loads(self, i):
        return [f"  ds_read_b128 {a_(aFR+4*s,4)}, v{vAADR} offset:{(i%6)*3072 + s*1024}" for s in range(3)]
    def tiles(self, i): return 4 if i < 6 else 3
    def accregs(self, i):
        base = P0 if i % 2 == 0 else P1
        l = [base, base + 4, base + 8]
        if i < 6: l.append(P0L if i % 2 == 0 else P1L)
        return l
    def gemm1_mfmas(self, i):
        acc = self.accregs(i)
        out = []
        for s in range(3):
            for tl in range(self.tiles(i)):
                B = v(YH[tl] + 4 * s, 4) if tl < 3 else v(YL[s], 4)
                C = "0" if s == 0 else v(acc[tl], 4)
                out.append(f"  v_mfma_f32_16x16x32_bf16 {v(acc[tl],4)}, {a_(aFR+4*s,4)}, {B}, {C}")
        return out
    def dpp_tail(self, i):
        b0, b1, c = DP, DP + 1, DP + 2
        mj = [sM0, sM1, sM2, sM3][i % 4]
        return [
            f"  v_add_f32_dpp v{b0}, v{AS}, v{AS} row_ror:8 row_mask:0xf bank_mask:0x3",
            f"  v_add_f32_dpp v{b0}, v{AS+1}, v{AS+1} row_ror:8 row_mask:0xf bank_mask:0xc",
            f"  v_add_f32_dpp v{b1}, v{AS+2}, v{AS+2} row_ror:8 row_mask:0xf bank_mask:0x3",
            f"  v_add_f32_dpp v{b1}, v{AS+3}, v{AS+3} row_ror:8 row_mask:0xf bank_mask:0xc",
            f"  v_add_f32_dpp v{c}, v{b0}, v{b0} row_half_mirror row_mask:0xf bank_mask:0x5",
            f"  v_add_f32_dpp v{c}, v{b1}, v{b1} row_half_mirror row_mask:0xf bank_mask:0xa",
            f"  v_add_f32_dpp v{c}, v{c}, v{c} quad_perm:[1,0,3,2] row_mask:0xf bank_mask:0xf",
            f"  v_add_f32_dpp v{c}, v{c}, v{c} quad_perm:[2,3,0,1] row_mask:0xf bank_mask:0xf",
            f"  v_cndmask_b32 v{ST + i//4}, v{ST + i//4}, v{c}, {sp(mj)}",
        ]
    def hdst(self, i, tl, j):
        if tl < 3: return H[tl] + 2 * i + j
        return HL + 2 * i + j
    def gelu_iter(self, i, pend):
        A = self.A
        A(f"; ==== gelu iter {i}")
        nt = self.tiles(i)
        acc = self.accregs(i)
        T = [TT, TT + 4, TT + 8] + ([TTL] if nt == 4 else [])
        pairs = [(tl, h) for tl in range(nt) for h in range(2)]
        U = lambda tl, h: v(acc[tl] + 2 * h, 2)
        TP = lambda tl, h: v(T[tl] + 2 * h, 2)
        s1 = [f"  v_pk_fma_f32 {TP(tl,h)}, {U(tl,h)}, {U(tl,h)}, {sp(sBETA)}" for tl, h in pairs]
        s2 = [f"  v_pk_mul_f32 {TP(tl,h)}, {TP(tl,h)}, {U(tl,h)}" for tl, h in pairs]
        seq = s1 + s2
        out = []
        pend = list(pend)
        slots = {0: [0, 1], 1: [2, 3], 3: [4, 5], 6: [6], 9: [7], 11: [8]} if pend else {}
        for k, ins in enumerate(seq):
            out.append(ins)
            for x in slots.get(k, []): out.append(pend[x])
        done = set(x for k, l in slots.items() if k < len(seq) for x in l)
        for x in range(len(pend)):
            if x not in done: out.append(pend[x])
        for l in out: A(l)
        exps = [f"  v_exp_f32 v{T[tl]+j}, v{T[tl]+j}" for tl in range(nt) for j in range(4)]
        if i + 1 < 24:
            mf = self.gemm1_mfmas(i + 1)
            A("  s_waitcnt lgkmcnt(0)")
            e = 0
            for k, m in enumerate(mf):
                A(m)
                if k < len(mf) - 1:
                    A(exps[e]); e += 1
            if i + 2 < 24:
                if (i + 2) % 6 == 0: self.a_addr((i + 2) // 6)
                for l in self.a_loads(i + 2): A(l)
            while e < len(exps): A(exps[e]); e += 1
        else:
            for x in exps: A(x)
        for tl, h in pairs: A(f"  v_pk_add_f32 {TP(tl,h)}, {TP(tl,h)}, 1.0 op_sel_hi:[1,0]")
        for tl in range(nt):
            for j in range(4): A(f"  v_rcp_f32 v{T[tl]+j}, v{T[tl]+j}")
        for tl, h in pairs: A(f"  v_pk_mul_f32 {TP(tl,h)}, {TP(tl,h)}, {U(tl,h)}")
        for tl in range(nt):
            for h in range(2):
                if tl == 0: A(f"  v_pk_mul_f32 {v(AS+2*h,2)}, {TP(tl,h)}, {TP(tl,h)}")
                else: A(f"  v_pk_fma_f32 {v(AS+2*h,2)}, {TP(tl,h)}, {TP(tl,h)}, {v(AS+2*h,2)}")
        for tl, h in pairs:
            A(f"  v_cvt_pk_bf16_f32 v{self.hdst(i,tl,h)}, v{T[tl]+2*h}, v{T[tl]+2*h+1}")
        return self.dpp_tail(i)
    def gelu(self):
        A = self.A
        A("; ==== gelu prologue")
        self.a_addr(0)
        for l in self.a_loads(0): A(l)
        for k in range(6): A(f"  v_mov_b32 v{ST+k}, 0")
        A("  s_waitcnt lgkmcnt(0)")
        for m in self.gemm1_mfmas(0): A(m)
        for l in self.a_loads(1): A(l)
        A("  s_nop 7")
        pend = []
        for i in range(24): pend = self.gelu_iter(i, pend)
        A("; ==== gelu tail")
        for l in pend: A(l)

    def w2_loads(self):
        A = self.A
        t = 228
        A(f"""  s_mul_i32 s{sT}, s{sW}, 96
  v_add_u32 v{t}, s{sT}, v{vN}
  v_mul_u32_u24 v{t}, 192, v{t}
  v_lshl_add_u32 v{t}, v{vQ}, 4, v{t}""")
        for tl in range(6):
            A(f"  s_mov_b32 s{sT}, {tl*3072}")
            for a in range(3):
                A(f"  buffer_load_dwordx4 {a_(aNAT+(tl*3+a)*4,4)}, v{t}, {srd(sW2)}, s{sT} offen offset:{64*a}")

    def publish(self):
        A = self.A
        t = TT
        A(f"""  v_and_b32 v{t}, 3, v{vN}                 ; j
  s_mul_i32 s{sT}, s{sW}, 6
  v_add_u32 v{t}, s{sT}, v{t}               ; idx0 = 6w + j
  v_lshrrev_b32 v{t+1}, 2, v{vN}            ; bank b
  v_and_b32 v{t+2}, 1, v{t+1}
  v_lshrrev_b32 v{t+1}, 1, v{t+1}
  v_lshl_or_b32 v{t+1}, v{t+2}, 1, v{t+1}   ; r(b)
  v_lshl_add_u32 v{t+1}, v{vQ}, 2, v{t+1}   ; 4q + r
  v_lshlrev_b32 v{t+1}, 2, v{t+1}
  s_mul_i32 s{sT}, s{sW}, 1536
  s_add_u32 s{sT}, s{sT}, {PS}
  v_add_u32 v{t+1}, s{sT}, v{t+1}""")
        for k in range(6):
            A(f"""  v_add_u32 v{t+2}, {4*k}, v{t}
  v_subrev_u32 v{t+3}, 24, v{t+2}
  v_min_u32 v{t+2}, v{t+2}, v{t+3}
  v_lshl_add_u32 v{t+2}, v{t+2}, 6, v{t+1}
  ds_write_b32 v{t+2}, v{ST+k}""")
        A(f"""  s_waitcnt lgkmcnt(0)
  s_barrier
  ; tag
  s_add_u32 s{sTAG}, s{sTAG}, {hex(TAG_STEP)}
  s_cmp_eq_u32 s{sTAG}, 0
  s_cselect_b32 s{sT}, {hex(TAG_STEP)}, 0
  s_add_u32 s{sTAG}, s{sTAG}, s{sT}
  s_cmp_ge_u32 s{sW}, 2
  s_cbranch_scc1 L_nopub
  v_lshlrev_b32 v{t}, 2, v0
  v_add_u32 v{t}, {PS}, v{t}""")
        r = P0
        for w in range(4):
            A(f"  ds_read2st64_b32 {v(r+2*w,2)}, v{t} offset0:{6*w} offset1:{6*w+2}")
        A(f"  ds_read2st64_b32 {v(r+8,2)}, v{t} offset0:4 offset1:10")
        A(f"  ds_read2st64_b32 {v(r+10,2)}, v{t} offset0:16 offset1:22")
        A(f"""  v_lshlrev_b32 v{t+1}, 12, v0
  s_lshl_b32 s{sT}, s2, 4
  s_add_u32 s{sT}, s{sT}, {L1_OFF}
  v_add_u32 v{t+1}, s{sT}, v{t+1}
  s_waitcnt lgkmcnt(0)
  v_add_f32 v{t+4}, v{r}, v{r+2}
  v_add_f32 v{t+5}, v{r+1}, v{r+3}
  v_add_f32 v{t+6}, v{r+8}, v{r+9}
  v_add_f32 v{r+4}, v{r+4}, v{r+6}
  v_add_f32 v{r+5}, v{r+5}, v{r+7}
  v_add_f32 v{r+10}, v{r+10}, v{r+11}
  v_add_f32 v{t+4}, v{t+4}, v{r+4}
  v_add_f32 v{t+5}, v{t+5}, v{r+5}
  v_add_f32 v{t+6}, v{t+6}, v{r+10}
  v_mov_b32 v{t+7}, s{sTAG}
  global_store_dwordx4 v{t+1}, {v(t+4,4)}, s[20:21] sc1
L_nopub:""")

    def reducer(self):
        A = self.A
        t = TT
        r = P0
        A(f"""  s_cmp_lg_u32 s{sW}, 3
  s_cbranch_scc1 L_nored
  s_cmp_ge_u32 s2, 128
  s_cbranch_scc1 L_nored
  s_lshl_b32 s{sT}, s2, 12
  s_add_u32 s{sT}, s{sT}, {L1_OFF}
  v_add_u32 v{t}, s{sT}, v{vLANE16}
  s_mov_b32 s{sT+2}, 0
L_poll1:""")
        for k in range(4):
            A(f"  global_load_dwordx4 {v(r+4*k,4)}, v{t}, s[20:21] offset:{1024*k} sc1")
        A(f"""  s_add_u32 s{sT+2}, s{sT+2}, 1
  s_waitcnt vmcnt(0)
  v_cmp_eq_u32 vcc, s{sTAG}, v{r+3}
  v_cmp_eq_u32 s[{sT+4}:{sT+5}], s{sTAG}, v{r+7}
  v_cmp_eq_u32 s[{sT+6}:{sT+7}], s{sTAG}, v{r+11}
  v_cmp_eq_u32 s[{sT+8}:{sT+9}], s{sTAG}, v{r+15}
  s_and_b64 vcc, vcc, s[{sT+4}:{sT+5}]
  s_and_b64 s[{sT+6}:{sT+7}], s[{sT+6}:{sT+7}], s[{sT+8}:{sT+9}]
  s_and_b64 vcc, vcc, s[{sT+6}:{sT+7}]
  s_cmp_eq_u64 vcc, exec
  s_cbranch_scc1 L_red_go
  s_cmp_lt_u32 s{sT+2}, {self.o.spin}
  s_cbranch_scc1 L_poll1
L_red_go:""")
        for c in range(3):
            A(f"  v_add_f32 v{r+c}, v{r+c}, v{r+4+c}\n  v_add_f32 v{r+8+c}, v{r+8+c}, v{r+12+c}")
        for c in range(3): A(f"  v_add_f32 v{r+c}, v{r+c}, v{r+8+c}")
        for d in ("row_shr:1 row_mask:0xf", "row_shr:2 row_mask:0xf", "row_shr:4 row_mask:0xf", "row_shr:8 row_mask:0xf", "row_bcast:15 row_mask:0xa", "row_bcast:31 row_mask:0xc"):
            for c in range(3): A(f"  v_add_f32_dpp v{r+c}, v{r+c}, v{r+c} {d} bank_mask:0xf")
        for c in range(3): A(f"  v_readlane_b32 s{sT+4+c}, v{r+c}, 63")
        A(f"""  s_lshl_b32 s{sT}, s2, 4
  s_add_u32 s{sT}, s{sT}, {FIN_OFF}
  v_lshlrev_b32 v{t}, 11, v{vN}
  v_add_u32 v{t}, s{sT}, v{t}
  v_mov_b32 v{r}, s{sT+4}
  v_mov_b32 v{r+1}, s{sT+5}
  v_mov_b32 v{r+2}, s{sT+6}
  v_mov_b32 v{r+3}, s{sTAG}
  s_mov_b64 exec, {(1<<NREP)-1}
  global_store_dwordx4 v{t}, {v(r,4)}, s[20:21] sc1
  s_mov_b64 exec, -1
L_nored:""")

    DW2 = 100
    XR = 8; CC = 44; SPR = 68
    vOUT = 92; vB2 = 95
    def dw2(self, tl, a, b): return self.DW2 + ((tl * 3 + a) * 2 + b) * 4

    def px_addr(self, slot, dst):
        A = self.A
        t1, t2 = 244, 245
        A(f"""  s_lshl_b32 s{sT}, s{sW}, 4
  s_add_u32 s{sT}, s{sT}, {4 + 64*slot}
  v_add_u32 v{dst}, s{sT}, v{vN}
  v_mul_u32_u24 v{t1}, 4682, v{dst}
  v_lshrrev_b32 v{t1}, 16, v{t1}
  v_mul_u32_u24 v{t2}, 14, v{t1}
  v_sub_u32 v{dst}, v{dst}, v{t2}
  v_add_u32 v{t1}, s{sY0}, v{t1}
  v_mul_u32_u24 v{t1}, 224, v{t1}
  v_add_u32 v{dst}, v{dst}, v{t1}
  v_add_u32 v{dst}, s{sX0}, v{dst}
  v_mul_u32_u24 v{dst}, 192, v{dst}
  v_lshl_add_u32 v{dst}, v{vQ}, 4, v{dst}""")

    def wait_work(self):
        A = self.A
        for k in range(100, 256): A(f"  v_accvgpr_write_b32 a{k}, v{k}")
        for sl in range(3): self.px_addr(sl, self.vOUT + sl)
        for sl in range(3):
            for a in range(3):
                A(f"  buffer_load_dwordx4 {v(self.XR + (sl*3+a)*4, 4)}, v{self.vOUT+sl}, {srd(sX)}, 0 offen offset:{64*a}")
        A(f"""  s_mul_i32 s{sT}, s{sW}, 192
  v_lshlrev_b32 v244, 3, v{vQ}
  v_add_u32 v244, s{sT}, v244""")
        for ul in range(3):
            for z in range(2):
                A(f"  global_load_dwordx2 {a_(aFR+4*ul+2*z,2)}, v244, s[14:15] offset:{64*ul + 32*z}")
        A(f"  v_lshrrev_b32 v245, 3, v{vLANE16}")
        for z in range(2):
            for c in range(3):
                A(f"  global_load_ushort v{246 + z*3 + c}, v245, s[12:13] offset:{128*z + 256*c}")
        A(f"""  v_and_b32 v244, 1, v{vN}
  v_lshlrev_b32 v244, 4, v244
  v_mov_b32 v245, 0x3f80
  v_lshlrev_b32 v244, v244, v245
  v_bfe_u32 v245, v{vN}, 1, 1
  v_lshrrev_b32 v252, 2, v{vN}
  v_cmp_eq_u32 s[{sT+2}:{sT+3}], v252, v{vQ}""")
        for b in range(2):
            for j in range(4):
                if j // 2 == b:
                    A(f"""  v_cmp_eq_u32 vcc, {j % 2}, v245
  s_and_b64 vcc, vcc, s[{sT+2}:{sT+3}]
  v_cndmask_b32 v252, 0, v244, vcc
  v_accvgpr_write_b32 {a_(aSEL+4*b+j)}, v252""")
                else:
                    A(f"  v_accvgpr_write_b32 {a_(aSEL+4*b+j)}, 0")
        A("  s_waitcnt vmcnt(21)")
        for tl in range(6):
            for a in range(3):
                for b in range(2):
                    A(f"  v_mfma_f32_16x16x32_bf16 {v(self.dw2(tl,a,b),4)}, {a_(aNAT+(tl*3+a)*4,4)}, {a_(aSEL+4*b,4)}, 0")
        for k in range(4):
            A(f"""  s_add_u32 s{sT}, s{sW}, {k}
  s_and_b32 s{sT}, s{sT}, 3
  s_mul_i32 s{sT}, s{sT}, 3072
  v_add_u32 v{self.vB2+k}, s{sT}, v{vLANE16}""")
        A("  s_waitcnt vmcnt(6)")
        Q = 252
        for t in range(6):
            a, b = t // 2, t % 2
            for ul in range(3):
                d0, d1 = self.dw2(2*ul, a, b), self.dw2(2*ul+1, a, b)
                A(f"""  v_cvt_pk_bf16_f32 v{Q}, v{d0}, v{d0+1}
  v_cvt_pk_bf16_f32 v{Q+1}, v{d0+2}, v{d0+3}
  v_cvt_pk_bf16_f32 v{Q+2}, v{d1}, v{d1+1}
  v_cvt_pk_bf16_f32 v{Q+3}, v{d1+2}, v{d1+3}""")
                C = "0" if ul == 0 else v(self.CC+4*t, 4)
                A(f"  v_mfma_f32_16x16x32_bf16 {v(self.CC+4*t,4)}, {v(Q,4)}, {a_(aFR+4*ul,4)}, {C}")
        A(f"""  s_mul_i32 s{sT}, s{sW}, 384
  s_add_u32 s{sT}, s{sT}, {CP}
  v_lshlrev_b32 v244, 5, v{vQ}
  v_add_u32 v245, {CP}, v244
  v_add_u32 v244, s{sT}, v244
  s_mov_b32 exec_lo, 0x00010001
  s_mov_b32 exec_hi, 0x00010001
  s_nop 4""")
        for t in range(6):
            a, b = t // 2, t % 2
            A(f"  ds_write_b128 v244, {v(self.CC+4*t,4)} offset:{128*a + 16*b}")
        A("  s_mov_b64 exec, -1\n  s_waitcnt lgkmcnt(0)\n  s_barrier")
        tmp = self.SPR
        for t in range(6):
            a, b = t // 2, t % 2
            for w in range(4):
                dst = self.CC + 4*t if w == 0 else tmp + 4*(w-1) + (12 if t % 2 else 0)
                A(f"  ds_read_b128 {v(dst,4)}, v245 offset:{w*384 + 128*a + 16*b}")
            A("  s_waitcnt lgkmcnt(0)")
            o = tmp + (12 if t % 2 else 0)
            for r in range(4):
                A(f"""  v_add_f32 v{self.CC+4*t+r}, v{self.CC+4*t+r}, v{o+r}
  v_add_f32 v{o+4+r}, v{o+4+r}, v{o+8+r}
  v_add_f32 v{self.CC+4*t+r}, v{self.CC+4*t+r}, v{o+4+r}""")
        A(f"""  s_cmp_lg_u32 s{sW}, 0
  s_cbranch_scc1 L_nocv
  v_lshlrev_b32 v244, 5, v{vQ}
  v_add_u32 v244, {CV}, v244
  s_mov_b32 exec_lo, 0x00010001
  s_mov_b32 exec_hi, 0x00010001""")
        for t in range(6):
            a, b = t // 2, t % 2
            A(f"  ds_write_b128 v244, {v(self.CC+4*t,4)} offset:{128*a + 16*b}")
        A("  s_mov_b64 exec, -1\nL_nocv:\n  s_waitcnt vmcnt(0)")

    def final_poll(self):
        A = self.A
        r = self.SPR
        t = 76
        inv_a2 = 1.0 / (ALPHA * ALPHA)
        A(f"""  s_cmp_lg_u32 s{sW}, 0
  s_cbranch_scc1 L_nofin
  s_and_b32 s{sT}, s2, {NREP-1}
  s_lshl_b32 s{sT}, s{sT}, 11
  s_add_u32 s{sT}, s{sT}, {FIN_OFF}
  v_add_u32 v{t}, s{sT}, v{vLANE16}
  s_mov_b32 s{sT+2}, 0
L_poll2:
  global_load_dwordx4 {v(r,4)}, v{t}, s[20:21] sc1
  global_load_dwordx4 {v(r+4,4)}, v{t}, s[20:21] offset:1024 sc1
  s_add_u32 s{sT+2}, s{sT+2}, 1
  s_waitcnt vmcnt(0)
  v_cmp_eq_u32 vcc, s{sTAG}, v{r+3}
  v_cmp_eq_u32 s[{sT+4}:{sT+5}], s{sTAG}, v{r+7}
  s_and_b64 vcc, vcc, s[{sT+4}:{sT+5}]
  s_cmp_eq_u64 vcc, exec
  s_cbranch_scc1 L_fin_go
  s_cmp_lt_u32 s{sT+2}, {self.o.spin}
  s_cbranch_scc1 L_poll2
L_fin_go:""")
        vals = [r, r+1, r+2, r+4, r+5, r+6]
        A(f"  s_mov_b32 s{sT+4}, {hex(f2u(inv_a2))}\n  v_mov_b32 v{t+1}, {hex(f2u(1e-6))}")
        for x in vals: A(f"  v_fma_f32 v{x}, v{x}, s{sT+4}, v{t+1}")
        for x in vals: A(f"  v_sqrt_f32 v{x}, v{x}")
        A(f"""  v_add_f32 v{t+2}, v{r}, v{r+1}
  v_add_f32 v{t+3}, v{r+2}, v{r+4}
  v_add_f32 v{t+4}, v{r+5}, v{r+6}
  v_add_f32 v{t+2}, v{t+2}, v{t+3}
  v_add_f32 v{t+2}, v{t+2}, v{t+4}""")
        for d in ("row_shr:1 row_mask:0xf", "row_shr:2 row_mask:0xf", "row_shr:4 row_mask:0xf", "row_shr:8 row_mask:0xf", "row_bcast:15 row_mask:0xa", "row_bcast:31 row_mask:0xc"):
            A(f"  v_add_f32_dpp v{t+2}, v{t+2}, v{t+2} {d} bank_mask:0xf")
        A(f"""  v_readlane_b32 s{sT+4}, v{t+2}, 63
  v_mov_b32 v{t+3}, {hex(f2u(1e-6))}
  v_mov_b32 v{t+4}, {hex(f2u(1.0/384))}
  v_fma_f32 v{t+2}, s{sT+4}, v{t+4}, v{t+3}
  v_rcp_f32 v{t+2}, v{t+2}""")
        gmap = {r: 246, r+1: 247, r+2: 248, r+4: 249, r+5: 250, r+6: 251}
        A(f"  v_mov_b32 v{t+3}, {hex(f2u(1.0/ALPHA))}")
        for x in vals:
            g = gmap[x]
            A(f"""  v_lshlrev_b32 v{g}, 16, v{g}
  v_mul_f32 v{x}, v{x}, v{t+2}
  v_fma_f32 v{x}, v{x}, v{g}, 1.0
  v_mul_f32 v{x}, v{x}, v{t+3}""")
        A(f"  v_lshrrev_b32 v{t+4}, 2, v{vLANE16}\n  v_add_u32 v{t+4}, {SP}, v{t+4}")
        for z in range(2):
            for c in range(3):
                A(f"  ds_write_b32 v{t+4}, v{r+4*z+c} offset:{256*z + 512*c}")
        A(f"""  s_cmp_lg_u32 s2, 0
  s_cbranch_scc1 L_noepoch
  v_mov_b32 v{t}, {EPOCH_OFF}
  v_mov_b32 v{t+1}, s{sTAG}
  s_mov_b64 exec, 1
  global_store_dword v{t}, v{t+1}, s[20:21] sc1
  s_mov_b64 exec, -1
L_noepoch:
L_nofin:
  s_waitcnt lgkmcnt(0)
  s_barrier""")

    def w2_prep(self):
        A = self.A
        A("; ==== w2' prep")
        A(f"""  s_mul_i32 s{sT}, s{sW}, 384
  s_add_u32 s{sT}, s{sT}, {SP}
  v_lshlrev_b32 v244, 4, v{vQ}
  v_add_u32 v244, s{sT}, v244""")
        for tl in range(6): A(f"  ds_read_b128 {v(self.SPR+4*tl,4)}, v244 offset:{64*tl}")
        A(f"""  s_mul_i32 s{sT}, s{sW}, 3072
  v_add_u32 v245, s{sT}, v{vLANE16}
  s_waitcnt lgkmcnt(0)""")
        k = 0
        for a in range(3):
            for b in range(2):
                t = 2*a + b
                for ul in range(3):
                    Q = 248 + 4 * (k & 1); k += 1
                    for z in range(2):
                        d = self.dw2(2*ul+z, a, b); s_ = self.SPR + 4*(2*ul+z)
                        A(f"  v_pk_mul_f32 {v(d,2)}, {v(d,2)}, {v(s_,2)}")
                        A(f"  v_pk_mul_f32 {v(d+2,2)}, {v(d+2,2)}, {v(s_+2,2)}")
                    for z in range(2):
                        d = self.dw2(2*ul+z, a, b)
                        A(f"  v_cvt_pk_bf16_f32 v{Q+2*z}, v{d}, v{d+1}")
                        A(f"  v_cvt_pk_bf16_f32 v{Q+2*z+1}, v{d+2}, v{d+3}")
                    A(f"  ds_write_b128 v245, {v(Q,4)} offset:{t*12288 + ul*1024}")
                    if k % 8 == 0: A("  s_waitcnt lgkmcnt(2)")
        A("  s_waitcnt lgkmcnt(0)\n  s_barrier")

    def gemm2(self):
        A = self.A
        ACC = [100, 124]
        ACL = [148, 156]
        RING = 164
        NR = 4
        TMP = 180
        vLP = 196
        A("; ==== gemm2")
        A(f"""  s_mul_i32 s{sT}, s{sW}, 1536
  s_add_u32 s{sT}, s{sT}, {LP}
  v_mul_u32_u24 v{vLP}, 384, v{vN}
  v_lshl_add_u32 v{vLP}, v{vQ}, 5, v{vLP}
  v_add_u32 v{vLP}, s{sT}, v{vLP}""")
        steps = [(a, u, b) for a in range(3) for u in range(12) for b in range(2)]
        def rd(k):
            a, u, b = steps[k]
            return f"  ds_read_b128 {v(RING+4*(k%NR),4)}, v{self.vB2+u//3} offset:{(2*a+b)*12288 + (u%3)*1024}"
        def epilogue(a):
            L = []
            acc = ACC[a % 2]
            for sl in range(3):
                x = self.XR + (sl*3+a)*4
                o = TMP + 4 * (sl % 2)
                u = TMP + 8
                for j in range(4):
                    lo, hi = 2*j, 2*j+1
                    rl = acc + sl*8 + lo; rh = acc + sl*8 + hi
                    L.append(f"  v_lshlrev_b32 v{u}, 16, v{x+j}")
                    L.append(f"  v_and_b32 v{u+1}, 0xffff0000, v{x+j}")
                    L.append(f"  v_add_f32 v{rl}, v{rl}, v{u}")
                    L.append(f"  v_add_f32 v{rh}, v{rh}, v{u+1}")
                    L.append(f"  v_cvt_pk_bf16_f32 v{o+j}, v{rl}, v{rh}")
                L.append(f"  buffer_store_dwordx4 {v(o,4)}, v{self.vOUT+sl}, {srd(sO)}, 0 offen offset:{64*a}")
            return L
        def leftover_write(a):
            l = ACL[a % 2]
            return ["  s_mov_b32 exec_lo, 0x000f000f", "  s_mov_b32 exec_hi, 0x000f000f",
                    f"  ds_write_b128 v{vLP}, {v(l,4)} offset:{128*a}",
                    f"  ds_write_b128 v{vLP}, {v(l+4,4)} offset:{128*a+16}",
                    "  s_mov_b64 exec, -1"]
        for k in range(NR - 1): A(rd(k))
        pending = []
        nlds_extra = 0
        for k, (a, u, b) in enumerate(steps):
            if u == 0 and b == 0: A(f"; ---- gemm2 round {a}")
            if k + NR - 1 < len(steps):
                A(rd(k + NR - 1)); A(f"  s_waitcnt lgkmcnt({NR-1})")
            else:
                A(f"  s_waitcnt lgkmcnt({len(steps)-1-k})")
            acc = ACC[a % 2]
            fr = v(RING + 4*(k % NR), 4)
            for sl in range(3):
                d = acc + sl*8 + 4*b
                C = v(self.CC + 4*(2*a+b), 4) if u == 0 else v(d, 4)
                A(f"  v_mfma_f32_16x16x32_bf16 {v(d,4)}, {fr}, {a_(H[sl]+4*u,4)}, {C}")
                for _ in range(2):
                    if pending and not (u == 0): A(pending.pop(0))
            if u < 3:
                d = ACL[a % 2] + 4*b
                C = "0" if u == 0 else v(d, 4)
                A(f"  v_mfma_f32_16x16x32_bf16 {v(d,4)}, {fr}, {a_(HL+4*u,4)}, {C}")
            if u == 4 and b == 1:
                A("  s_waitcnt lgkmcnt(0)")
                for l in leftover_write(a): A(l)
                A("  s_waitcnt lgkmcnt(0)")
            if u == 11 and b == 1:
                while pending: A(pending.pop(0))
                pending = epilogue(a)
        A("  s_nop 7")
        while pending: A(pending.pop(0))
        A(f"""  s_waitcnt lgkmcnt(0)
  s_barrier
  v_lshrrev_b32 v200, 4, v{vLANE16}          ; lane
  s_mul_i32 s{sT}, s{sW}, 384
  s_add_u32 s{sT}, s{sT}, {LP}
  v_lshlrev_b32 v201, 5, v200
  v_add_u32 v202, {CV}, v201
  v_add_u32 v201, s{sT}, v201
  s_mul_i32 s{sT}, s{sY0}, 224
  s_add_u32 s{sT}, s{sT}, s{sX0}
  s_add_u32 s{sT}, s{sT}, s{sW}
  s_mul_i32 s{sT}, s{sT}, 192
  v_add_u32 v203, s{sT}, v{vLANE16}
  s_mov_b64 exec, 0xfff
  buffer_load_dwordx4 v[204:207], v203, {srd(sX)}, 0 offen""")
        for w in range(4):
            A(f"  ds_read_b128 {v(208+8*w,4)}, v201 offset:{w*1536}\n  ds_read_b128 {v(212+8*w,4)}, v201 offset:{w*1536+16}")
        A("  ds_read_b128 v[240:243], v202\n  ds_read_b128 v[244:247], v202 offset:16\n  s_waitcnt lgkmcnt(0)")
        for j in range(8):
            A(f"""  v_add_f32 v{208+j}, v{208+j}, v{216+j}
  v_add_f32 v{224+j}, v{224+j}, v{232+j}
  v_add_f32 v{208+j}, v{208+j}, v{240+j}
  v_add_f32 v{208+j}, v{208+j}, v{224+j}""")
        A("  s_waitcnt vmcnt(0)")
        for j in range(4):
            A(f"""  v_lshlrev_b32 v216, 16, v{204+j}
  v_and_b32 v217, 0xffff0000, v{204+j}
  v_add_f32 v{208+2*j}, v{208+2*j}, v216
  v_add_f32 v{209+2*j}, v{209+2*j}, v217
  v_cvt_pk_bf16_f32 v{220+j}, v{208+2*j}, v{209+2*j}""")
        A(f"  buffer_store_dwordx4 v[220:223], v203, {srd(sO)}, 0 offen")

    def dump_lds(self, label, off, nbytes, wsoff):
        A = self.A
        A("  s_waitcnt vmcnt(0) lgkmcnt(0)\n  s_barrier")
        n = (nbytes + 4095) // 4096
        A(f"""  v_lshlrev_b32 v5, 4, v0
  s_mul_i32 s{sT}, s2, {n*4096}
  s_add_u32 s{sT}, s{sT}, {wsoff}
  v_add_u32 v6, s{sT}, v5
  v_add_u32 v5, {off}, v5""")
        for k in range(n):
            A(f"""  ds_read_b128 v[220:223], v5
  s_waitcnt lgkmcnt(0)
  global_store_dwordx4 v6, v[220:223], s[20:21]
  s_waitcnt vmcnt(0)
  v_add_u32 v5, 4096, v5
  v_add_u32 v6, 4096, v6""")

    def dump_regs(self, label, regs, wsoff, acc=False):
        A = self.A
        n = len(regs)
        A(f"""  s_waitcnt vmcnt(0) lgkmcnt(0)
  v_lshlrev_b32 v5, 2, v0
  s_mul_i32 s{sT}, s2, {n*1024}
  s_add_u32 s{sT}, s{sT}, {wsoff}
  v_add_u32 v5, s{sT}, v5""")
        for k, r in enumerate(regs):
            if acc: A(f"  v_accvgpr_read_b32 v6, a{r}\n  global_store_dword v5, v6, s[20:21]")
            else: A(f"  global_store_dword v5, v{r}, s[20:21]")
            A("  v_add_u32 v5, 1024, v5")
            if k % 32 == 31: A("  s_waitcnt vmcnt(0)")
        A("  s_waitcnt vmcnt(0)")

    def build(self):
        o = self.o; A = self.A
        self.prologue()
        if o.stop == 'ln':
            self.dump_regs('yhat', list(range(YH[0], YH[0]+36)) + [YL[0]+k for k in range(4)] + [YL[1]+k for k in range(4)] + [YL[2]+k for k in range(4)], DBG_OFF)
            self.dump_lds('lds', 0, 151552, DBG_OFF + (16 << 20))
            A("  s_branch L_end")
        self.stamp('ln2')
        self.gelu()
        self.stamp('gelu')
        if o.stop == 'gelu':
            self.dump_regs('h', list(range(100, 256)) + list(range(ST, ST+6)), DBG_OFF)
            A("  s_branch L_end")
        self.publish()
        self.stamp('pub')
        self.reducer()
        self.stamp('red')
        self.wait_work()
        self.stamp('wwork')
        self.final_poll()
        self.stamp('fin')
        self.w2_prep()
        self.stamp('prep')
        if o.stop == 'prep':
            self.dump_lds('lds', 0, 90112, DBG_OFF)
            A("  s_branch L_end")
        self.gemm2()
        self.stamp('gemm2')
        self.stamp_dump()
        A("L_end:\n  s_endpgm")
        body = A.finalize(verbose=not o.quiet)
        hdr = f"""; Fused SLaK-style block: 5x5 depthwise conv + LayerNorm + GEMM(96->384) + GELU + GRN + GEMM(384->96) + residual.
; @launch grid=(256,1,1) block=(256,1,1) lds={LDS_BYTES}
.amdgcn_target "amdgcn-amd-amdhsa--gfx950"
.text
.globl {KNAME}
.p2align 8
.type {KNAME},@function
{KNAME}:
"""
        tail = f""".section .rodata,"a"
.p2align 6
.amdhsa_kernel {KNAME}
  .amdhsa_next_free_vgpr 512
  .amdhsa_next_free_sgpr 102
  .amdhsa_accum_offset 256
  .amdhsa_group_segment_fixed_size 0
  .amdhsa_kernarg_size 72
  .amdhsa_user_sgpr_count 2
  .amdhsa_user_sgpr_kernarg_segment_ptr 1
  .amdhsa_system_sgpr_workgroup_id_x 1
  .amdhsa_float_denorm_mode_32 3
.end_amdhsa_kernel
"""
        return hdr + body + tail

if __name__ == '__main__':
    ap = argparse.ArgumentParser()
    ap.add_argument('-o', default='out.s')
    ap.add_argument('--stop', default='')
    ap.add_argument('--spin', type=int, default=200000)
    ap.add_argument('--quiet', action='store_true')
    ap.add_argument('--prof', action='store_true')
    ap.add_argument('--dbgstamp', action='store_true')
    o = ap.parse_args()
    g = G(o)
    open(o.o, 'w').write(g.build())
    print("wrote", o.o)
```

```python
import re

def expand(tok):
    tok = tok.strip()
    m = re.fullmatch(r'([vas])\[(\d+):(\d+)\]', tok)
    if m:
        return [f"{m.group(1)}{i}" for i in range(int(m.group(2)), int(m.group(3)) + 1)]
    m = re.fullmatch(r'([vas])(\d+)', tok)
    if m:
        return [tok]
    if tok in ('vcc', 'vcc_lo', 'vcc_hi'): return ['vcc']
    if tok in ('exec', 'exec_lo', 'exec_hi'): return ['exec']
    if tok == 'm0': return ['m0']
    if tok.startswith('-') or tok.startswith('abs(') or tok.startswith('|'):
        inner = tok.lstrip('-').replace('abs(', '').replace(')', '').replace('|', '')
        if re.fullmatch(r'[vas]\d+|[vas]\[\d+:\d+\]', inner): return expand(inner)
    return []

TRANS = ('v_exp_f32', 'v_rcp_f32', 'v_rsq_f32', 'v_sqrt_f32', 'v_log_f32', 'v_rcp_iflag_f32')

class Ins:
    def __init__(self, text):
        self.text = text
        t = text.split(';')[0].split('//')[0].strip()
        self.label = t.endswith(':')
        self.kind = 'other'; self.w = []; self.r = []; self.op = ''
        if self.label or not t or t.startswith('.'):
            self.kind = 'meta'; return
        parts = t.split(None, 1)
        op = parts[0]; self.op = op
        rest = parts[1] if len(parts) > 1 else ''
        ops = []; depth = 0; cur = ''
        for ch in rest:
            if ch == '[': depth += 1
            if ch == ']': depth -= 1
            if ch == ',' and depth == 0: ops.append(cur.strip()); cur = ''
            else: cur += ch
        if cur.strip(): ops.append(cur.strip())
        if ops:
            last = ops[-1].split()
            ops[-1] = last[0]; self.mods = ' '.join(last[1:])
        else: self.mods = ''
        self.ops = ops
        E = lambda i: expand(ops[i]) if i < len(ops) else []
        allr = lambda a: sum((E(i) for i in range(a, len(ops))), [])
        if op.startswith('v_mfma'):
            self.kind = 'mfma'; self.w = E(0); self.rA = E(1); self.rB = E(2); self.rC = E(3); self.r = self.rA + self.rB + self.rC
            self.passes = 8 if ('16x16x4_f32' in op or '32x32x16' in op) else 4
            self.sgemm = '16x16x4_f32' in op
        elif op.startswith('v_smfmac'):
            self.kind = 'mfma'; self.w = E(0); self.rA = E(1); self.rB = E(2) + E(3); self.rC = E(0); self.r = self.rA + self.rB + self.rC
            self.passes = 4; self.sgemm = False
        elif op.startswith('v_cmp'):
            self.kind = 'valu'; self.w = E(0); self.r = allr(1)
        elif op in ('v_readfirstlane_b32', 'v_readlane_b32'):
            self.kind = 'valu'; self.w = E(0); self.r = allr(1); self.lane_read = True
        elif op.startswith('v_permlane'):
            self.kind = 'valu'; self.w = E(0) + E(1); self.r = E(0) + E(1); self.perm = True
        elif op.startswith('v_'):
            self.kind = 'valu'; self.w = E(0); self.r = allr(1)
            if op.startswith(('v_fmac', 'v_dot2c', 'v_writelane')): self.r += E(0)
            if op.startswith('v_cndmask') and len(ops) == 3: self.r += ['vcc']
            if op in ('v_add_co_u32', 'v_sub_co_u32', 'v_addc_co_u32'): self.w = E(0) + E(1); self.r = allr(2)
            if 'dpp' in op or 'row_' in self.mods or 'quad_perm' in self.mods:
                self.dpp = True; self.dppsrc = E(1); self.r += E(0)
        elif op.startswith('ds_read') or op.startswith('ds_bpermute') or op.startswith('ds_swizzle'):
            self.kind = 'ds'; self.w = E(0); self.r = allr(1); self.ld = True
        elif op.startswith('ds_'):
            self.kind = 'ds'; self.r = allr(0); self.ld = False
        elif op.startswith(('buffer_load', 'global_load')):
            self.kind = 'vmem'; self.ld = True
            if ' lds' in (' ' + self.mods) : self.w = []; self.r = allr(0); self.ldslds = True
            else: self.w = E(0); self.r = allr(1)
        elif op.startswith(('buffer_store', 'global_store', 'buffer_atomic', 'global_atomic')):
            self.kind = 'vmem'; self.ld = False; self.r = allr(0)
            self.wide = ('x4' in op or 'x3' in op)
        elif op.startswith('s_load') or op.startswith('s_memtime') or op.startswith('s_memrealtime'):
            self.kind = 'smem'; self.w = E(0); self.r = allr(1)
        elif op == 's_waitcnt' or op == 's_barrier' or op == 's_nop' or op == 's_sleep' or op == 's_endpgm' or op == 's_setprio':
            self.kind = 'ctl'
        elif op.startswith(('s_cbranch', 's_branch')):
            self.kind = 'br'
        elif op.startswith('s_cmp') or op.startswith('s_bitcmp'):
            self.kind = 'salu'; self.r = allr(0)
        elif op.startswith('s_'):
            self.kind = 'salu'; self.w = E(0); self.r = allr(1)
            if 'saveexec' in op: self.w += ['exec']
    def states(self):
        if self.kind == 'meta': return 0
        if self.op == 's_nop': return int(self.ops[0]) + 1
        return 1

import subprocess, tempfile, os
def instr_sizes(lines):
    src = "\n".join(lines) + "\n"
    with tempfile.NamedTemporaryFile('w', suffix='.s', delete=False) as f:
        f.write(src); name = f.name
    r = subprocess.run(["llvm-mc", "-triple=amdgcn-amd-amdhsa", "-mcpu=gfx950", "-show-encoding", name], capture_output=True, text=True)
    os.unlink(name)
    if r.returncode != 0: raise RuntimeError(r.stderr[:3000])
    enc = [l for l in r.stdout.split("\n") if 'encoding:' in l]
    sizes = []; k = 0
    for l in lines:
        ins = Ins('  ' + l.strip())
        if ins.kind == 'meta': sizes.append(0); continue
        e = enc[k]; k += 1
        sizes.append(e.split('encoding:')[1].count(',') + 1)
    assert k == len(enc), (k, len(enc))
    return sizes
NO_E64 = ('v_readfirstlane_b32', 'v_readlane_b32', 'v_accvgpr', 'v_permlane', 'v_nop', 'v_fmac', 'v_madak', 'v_madmk', 'v_fmaak', 'v_fmamk', 'v_swap')
def widenable(text, size):
    t = text.strip()
    if size != 4 or not t.startswith('v_'): return False
    op = t.split()[0]
    if op.endswith('_e64') or op.endswith('_e32') or op.startswith(NO_E64): return False
    return True
def align8(lines, hot=None):
    sizes = instr_sizes(lines)
    out = []; off = 0; run = []
    nw = nn = 0
    n = len(lines)
    for i, (l, sz) in enumerate(zip(lines, sizes)):
        if sz == 8 and off % 8 == 4:
            cand = [j for j in run if widenable(out[j][0], out[j][1])]
            if cand:
                j = cand[-1]; t = out[j][0]; op = t.strip().split()[0]
                out[j] = (t.replace(op, op + '_e64', 1), 8); off += 4; nw += 1
            else:
                k = i; c = 0
                while k < n and (sizes[k] in (0, 8)):
                    if sizes[k] == 8: c += 1
                    k += 1
                if c >= 3:
                    out.append(("  s_nop 0", 4)); off += 4; nn += 1
        if sz == 8 or l.strip().endswith(':'): run = []
        out.append((l, sz))
        if sz == 4: run.append(len(out) - 1)
        off += sz
    return [o[0] for o in out], nw, nn, off

class Asm:
    def __init__(self):
        self.lines = []
        self.nops_inserted = []
    def __call__(self, text):
        for l in text.split('\n'):
            l = l.rstrip()
            if l.strip(): self.lines.append(l)
    def comment(self, c): self.lines.append(f"; {c}")
    def check_waits(self, lines, take):
        vq = []; lq = []; errors = []; skip_to = None; sec = ''
        labels = {l.strip()[:-1]: i for i, l in enumerate(lines) if l.strip().endswith(':') and not l.strip().startswith(';')}
        for idx, text in enumerate(lines):
            t = text.strip()
            if t.startswith(';'): sec = t; continue
            if skip_to is not None:
                if t == skip_to + ':': skip_to = None
                continue
            ins = Ins('  ' + t)
            if ins.kind == 'meta': continue
            if ins.kind == 'br':
                tgt = ins.ops[0]
                if labels.get(tgt, -1) > idx and (take or ins.op == 's_branch') and tgt != 'L_end': skip_to = tgt
                continue
            R = set(ins.r); W = set(ins.w)
            if ins.op == 's_waitcnt':
                m = re.search(r'vmcnt\((\d+)\)', t)
                if m:
                    n = int(m.group(1))
                    while len(vq) > n: vq.pop(0)
                m = re.search(r'lgkmcnt\((\d+)\)', t)
                if m:
                    n = int(m.group(1))
                    if n == 0: lq.clear()
                    else:
                        if any(k == 'smem' for k, _ in lq): errors.append(f"counted lgkmcnt with smem outstanding: {t}")
                        while len(lq) > n: lq.pop(0)
            else:
                use = R | W
                for dst in vq:
                    if dst & use: errors.append(f"[{sec} take={take}] vm RAW/WAW: '{t}' touches {sorted(dst & use)[:4]}")
                for k, dst in lq:
                    if dst & use: errors.append(f"[{sec} take={take}] lgkm RAW/WAW: '{t}' touches {sorted(dst & use)[:4]}")
                if ins.kind == 'vmem': vq.append(set(ins.w))
                if ins.kind == 'ds': lq.append(('ds', set(ins.w)))
                if ins.kind == 'smem': lq.append(('smem', set(ins.w)))
                if len(vq) > 63: errors.append(f"[{sec}] vmcnt overflow at {t}")
                if len(lq) > 15 and ins.kind == 'ds': errors.append(f"[{sec}] lgkmcnt overflow ({len(lq)}) at {t}")
        return errors
    def finalize(self, verbose=True, check_wait=True, align=True):
        out = []
        hist = []
        def dist_back(pred, maxd):
            d = 0
            for ins in reversed(hist):
                if ins.kind == 'meta': continue
                if pred(ins): return d
                d += ins.states()
                if d > maxd: return None
            return None
        vq = []
        lq = []
        errors = []
        cur_section = ''
        for text in self.lines:
            ins = Ins('  ' + text.strip())
            if ins.kind == 'meta':
                if text.strip().startswith(';'): cur_section = text.strip()
                out.append(text); hist.append(ins); continue
            need = 0
            R = set(ins.r); W = set(ins.w)
            def req(pred, n):
                nonlocal need
                d = dist_back(pred, n)
                if d is not None and d < n: need = max(need, n - d)
            isv = lambda i: i.kind == 'valu'
            if ins.kind == 'mfma':
                req(lambda i: i.kind == 'valu' and set(i.w) & R, 2)
                AB = set(ins.rA) | set(ins.rB)
                req(lambda i: i.kind == 'mfma' and set(i.w) & AB, 12)
                for i4 in (4, 8): pass
                need0 = 0
                d = 0
                for p in reversed(hist):
                    if p.kind == 'meta': continue
                    if p.kind == 'mfma':
                        pw = set(p.w)
                        if pw & AB:
                            n = {(4, False): 8, (8, False): 12, (8, True): 10, (4, True): 6}[(p.passes, p.sgemm)]
                            if d < n: need0 = max(need0, n - d)
                        C = set(ins.rC)
                        if pw & C:
                            if pw == C and p.passes == ins.passes and p.sgemm == ins.sgemm: n = 0
                            else: n = {4: 6, 8: 10}[p.passes] if not (p.sgemm and not ins.sgemm) else 0
                            if d < n: need0 = max(need0, n - d)
                        if (pw & W) and not (pw & C):
                            n = {4: 6, 8: 10}[p.passes]
                            if d < n: need0 = max(need0, n - d)
                    d += p.states()
                    if d > 20: break
                need = 0
                dd = dist_back(lambda i: i.kind == 'valu' and set(i.w) & R, 2)
                if dd is not None and dd < 2: need = 2 - dd
                need = max(need, need0)
            if ins.kind in ('valu', 'ds', 'vmem'):
                d = 0
                for p in reversed(hist):
                    if p.kind == 'meta': continue
                    if p.kind == 'mfma':
                        pw = set(p.w)
                        if pw & (R | W):
                            n = {(4, False): 8, (8, False): 12, (8, True): 10, (4, True): 6}[(p.passes, p.sgemm)]
                            if d < n: need = max(need, n - d)
                        if ins.kind == 'valu' and (set(p.rC) & W) and not p.sgemm:
                            n = {4: 3, 8: 7}[p.passes]
                            if d < n: need = max(need, n - d)
                    d += p.states()
                    if d > 14: break
            if ins.kind == 'valu':
                if ins.op not in TRANS:
                    req(lambda i: i.kind == 'valu' and i.op.replace('_e32','').replace('_e64','') in TRANS and set(i.w) & R, 1)
                if getattr(ins, 'dpp', False):
                    DS = set(ins.dppsrc)
                    req(lambda i: i.kind == 'valu' and set(i.w) & DS, 2)
                if getattr(ins, 'perm', False):
                    req(lambda i: i.kind == 'valu' and set(i.w) & R, 2)
                if getattr(ins, 'lane_read', False):
                    req(lambda i: i.kind == 'valu' and set(i.w) & R, 1)
                    req(lambda i: i.kind == 'valu' and any(x[0] == 's' for x in set(i.w) & R), 4)
                req(lambda i: i.kind == 'valu' and any((x[0] == 's' or x == 'vcc') for x in set(i.w) & R), 2)
                req(lambda i: i.kind == 'vmem' and not i.ld and getattr(i, 'wide', False) and set(i.r) & W, 2)
            if ins.kind == 'vmem':
                req(lambda i: i.kind == 'valu' and any(x[0] == 's' for x in set(i.w) & R), 5)
                if getattr(ins, 'ldslds', False):
                    req(lambda i: i.kind == 'salu' and 'm0' in i.w, 1)
            if ins.kind in ('salu', 'br'):
                RR = set(ins.r)
                if ins.op in ('s_cbranch_vccz', 's_cbranch_vccnz'): RR |= {'vcc'}
                req(lambda i: i.kind == 'valu' and any((x[0] == 's' or x == 'vcc') for x in set(i.w) & RR), 2)
            if need > 0:
                self.nops_inserted.append((cur_section, text.strip(), need))
                while need > 0:
                    k = min(need, 16)
                    nop = Ins(f"  s_nop {k-1}"); out.append(f"  s_nop {k-1}"); hist.append(nop); need -= k
            if False:
                if ins.op == 's_waitcnt':
                    m = re.search(r'vmcnt\((\d+)\)', text)
                    if m:
                        n = int(m.group(1))
                        while len(vq) > n: vq.pop(0)
                    m = re.search(r'lgkmcnt\((\d+)\)', text)
                    if m:
                        n = int(m.group(1))
                        if n == 0: lq.clear()
                        else:
                            if any(k == 'smem' for k, _ in lq): errors.append(f"counted lgkmcnt with smem outstanding: {text}")
                            while len(lq) > n: lq.pop(0)
                else:
                    use = (R | W) if ins.kind != 'meta' else set()
                    for dst in vq:
                        if dst & use: errors.append(f"[{cur_section}] vm RAW/WAW: '{text.strip()}' touches {sorted(dst & use)[:4]} with load outstanding")
                    for k, dst in lq:
                        if dst & use: errors.append(f"[{cur_section}] lgkm RAW/WAW: '{text.strip()}' touches {sorted(dst & use)[:4]} with load outstanding")
                    if ins.kind == 'vmem': vq.append(set(ins.w))
                    if ins.kind == 'ds': lq.append(('ds', set(ins.w)))
                    if ins.kind == 'smem': lq.append(('smem', set(ins.w)))
                    if len(vq) > 63: errors.append(f"vmcnt overflow at {text}")
            out.append(text); hist.append(ins)
            if len(hist) > 200: hist = hist[-100:]
        if verbose:
            tot = {}
            for sec, t, n in self.nops_inserted:
                tot.setdefault(sec, [0, 0]); tot[sec][0] += 1; tot[sec][1] += n
            for sec, (c, n) in tot.items(): print(f"  nops in {sec}: {c} sites, {n} states")
        errors = self.check_waits(out, False) + self.check_waits(out, True)
        if errors:
            for e in errors[:40]: print("ERROR:", e)
            raise RuntimeError(f"{len(errors)} waitcnt errors")
        if align:
            out, nw, nn, tot = align8(out)
            if verbose: print(f"  align: widened {nw}, padded {nn}, code bytes {tot}")
        return "\n".join(out) + "\n"
```

```python
import sys, struct, math, argparse
from asmlib import Asm

def f2u(x): return struct.unpack('<I', struct.pack('<f', x))[0]
KNAME = "standalone__modern_conv_block_slak__vision_kernel"

C1 = -2.0 * math.sqrt(2.0 / math.pi) * math.log2(math.e)
C2 = C1 * 0.044715
ALPHA = -((-C2) ** (1.0 / 3.0))
BETA = C1 / ALPHA
W1L = 0
W1P = 800
YB = 76800
XB = YB + 7680
XROW = 3840
DWT = XB + 18 * XROW
PS = YB
SP = YB + 6144
CP = SP + 1536
LP = CP + 1536
CV = LP + 6144
W2F = 0
LDS_BYTES = 163840
EPOCH_OFF = 0
L1_OFF = 4096
FIN_OFF = L1_OFF + 128 * 4096
NREP = 16
TAG_STEP = 0x9E3779B1
DBG_OFF = 0x200000
sX, sDW, sW1, sW2, sO = 24, 28, 32, 36, 40
sW, sX0, sY0, sTAG = 44, 45, 46, 47
sBETA = 50
sM0, sM1, sM2, sM3 = 52, 54, 56, 58
sDIAG, sLEFT, sBIG = 60, 62, 64
sXM, sXE = 65, 48
sT = 66
def srd(b): return f"s[{b}:{b+3}]"
def sp(b): return f"s[{b}:{b+1}]"
def v(a, n=1): return f"v{a}" if n == 1 else f"v[{a}:{a+n-1}]"
def a_(a, n=1): return f"a{a}" if n == 1 else f"a[{a}:{a+n-1}]"
vLANE16, vN, vQ, vAADR = 1, 2, 3, 4
YH = [8, 20, 32]
P0, P1, TT, AS, DP, ST = 44, 56, 68, 80, 84, 87
H = [100, 148, 196]; HL = 244
YL = [140, 144, 188]
P0L, P1L, TTL = 192, 236, 240
aNAT, aFR, aSEL, aONE, aOUT = 0, 72, 84, 92, 96
aF, aG = 100, 196


class Track:
    def __init__(self): self.n = 0; self.done = 0
    def issue(self, k=1):
        self.n += k; return self.n
    def after(self, tid): return self.n - tid


class G:
    def __init__(self, opts):
        self.o = opts; self.A = Asm(); self.stamps = []
        self.vm = Track(); self.lg = Track()
    def stamp(self, name):
        if not self.o.prof: return
        k = len(self.stamps); self.stamps.append(name)
        self.A(f"  s_memtime s[78:79]\n  s_waitcnt lgkmcnt(0)\n  s_mov_b32 s{80+k}, s78"); self.lg.done = self.lg.n
    def ds(self, text):
        if self.lg.n - self.lg.done >= 15:
            self.A("  s_waitcnt lgkmcnt(13)"); self.lg.done = self.lg.n - 13
        self.A(text); return self.lg.issue()
    def drain(self, vm=False):
        self.A("  s_waitcnt " + ("vmcnt(0) " if vm else "") + "lgkmcnt(0)"); self.lg.done = self.lg.n
    def vmem(self, text):
        self.A(text); return self.vm.issue()
    def wait(self, vm=None, lg=None):
        p = []
        if vm is not None: p.append(f"vmcnt({min(63, self.vm.after(vm))})")
        if lg is not None:
            n = self.lg.after(lg); assert n <= 15, n
            p.append(f"lgkmcnt({n})"); self.lg.done = max(self.lg.done, lg)
        self.A("  s_waitcnt " + " ".join(p))
    def interleave(self, main, fill, per=1, start=0):
        fill = list(fill)
        for k, m in enumerate(main):
            m() if callable(m) else self.A(m)
            if k >= start:
                for _ in range(per):
                    if fill:
                        f = fill.pop(0); f() if callable(f) else self.A(f)
        return fill
    def emit(self, l):
        for f in l: f() if callable(f) else self.A(f)

    def xrow(self, r):
        A = self.A
        A(f"""  s_add_i32 s{sT}, s{sY0}, {r-2}
  s_mul_i32 s{sT+1}, s{sT}, 43008
  s_cmp_lt_u32 s{sT}, 224
  s_cselect_b32 s{sT+1}, s{sT+1}, s{sBIG}
  s_add_u32 m0, s{sXM}, {r*XROW}
  s_mov_b32 exec_hi, s{sXE}""")
        self.xid[r] = self.vmem(f"  buffer_load_dwordx4 v10, {srd(sX)}, s{sT+1} offen lds")
        A("  s_mov_b32 exec_hi, -1")
    def w1row(self, k):
        A = self.A
        A(f"""  s_add_u32 m0, s{sT+10}, {k*W1P}
  s_add_u32 s{sT}, s{sT+11}, {k*768}
  s_mov_b32 exec_hi, 0xffff""")
        self.w1id = self.vmem(f"  buffer_load_dwordx4 v{vLANE16}, {srd(sW1)}, s{sT} offen lds")
        A("  s_mov_b32 exec_hi, -1")

    def setup(self):
        A = self.A; o = self.o
        self.xid = {}
        A("; ==== setup")
        A("  s_cmp_ge_u32 s2, 256\n  s_cbranch_scc1 L_end")
        if o.prof:
            A("  s_memrealtime s[78:79]\n  s_waitcnt lgkmcnt(0)\n  s_mov_b32 s49, s78\n  s_memtime s[78:79]\n  s_waitcnt lgkmcnt(0)\n  s_mov_b32 s80, s78")
            self.stamps.append('start')
        A(f"""
  s_load_dwordx16 s[4:19], s[0:1], 0
  s_load_dwordx2 s[20:21], s[0:1], 64
  v_lshrrev_b32 v5, 6, v0
  v_and_b32 v6, 63, v0
  v_readfirstlane_b32 s{sW}, v5
  v_lshlrev_b32 v{vLANE16}, 4, v6
  v_and_b32 v{vN}, 15, v6
  v_lshrrev_b32 v{vQ}, 4, v6
  s_and_b32 s{sT}, s2, 7
  s_lshr_b32 s{sT+1}, s2, 3
  s_and_b32 s{sT+2}, s{sT}, 3
  s_lshl_b32 s{sT+2}, s{sT+2}, 2
  s_and_b32 s{sT+3}, s{sT+1}, 3
  s_add_u32 s{sT+2}, s{sT+2}, s{sT+3}
  s_mul_i32 s{sX0}, s{sT+2}, 14
  s_lshr_b32 s{sT}, s{sT}, 2
  s_lshl_b32 s{sT}, s{sT}, 3
  s_lshr_b32 s{sT+1}, s{sT+1}, 2
  s_add_u32 s{sT}, s{sT}, s{sT+1}
  s_mul_i32 s{sY0}, s{sT}, 14
  s_mov_b32 s{sBIG}, 0x40000000
  v_mul_u32_u24 v7, 5042, v0
  v_lshrrev_b32 v7, 16, v7
  v_mul_u32_u24 v8, 13, v7
  v_sub_u32 v8, v0, v8
  s_sub_i32 s{sT}, s{sX0}, 2
  v_add_u32 v9, s{sT}, v7
  v_mul_u32_u24 v10, 192, v9
  v_lshl_add_u32 v10, v8, 4, v10
  s_movk_i32 s{sT+1}, 224
  v_cmp_gt_u32 vcc, s{sT+1}, v9
  v_cmp_gt_u32 s[{sT+2}:{sT+3}], 12, v8
  s_movk_i32 s{sT+1}, 234
  v_cmp_gt_u32 s[{sT+4}:{sT+5}], s{sT+1}, v0
  v_mov_b32 v11, s{sBIG}
  v_lshlrev_b32 v12, 4, v0
  v_subrev_u32 v13, 960, v12
  s_and_b64 vcc, vcc, s[{sT+2}:{sT+3}]
  s_and_b64 vcc, vcc, s[{sT+4}:{sT+5}]
  v_cndmask_b32 v10, v11, v10, vcc
  v_cmp_le_u32 vcc, 60, v0
  v_add_u32 v12, 3136, v12
  s_lshl_b32 s{sT+6}, s{sW}, 10
  s_add_u32 s{sXM}, s{sT+6}, {XB}
  v_cndmask_b32 v13, v11, v13, vcc
  s_cmp_eq_u32 s{sW}, 3
  s_cselect_b32 s{sXE}, 0xffff, -1
  s_add_u32 s{sT+6}, s{sT+6}, {DWT}
  s_waitcnt lgkmcnt(0)
""")
        def mksrd(base, ptr, n):
            A(f"""  s_mov_b32 s{base}, s{ptr}
  s_and_b32 s{base+1}, s{ptr+1}, 0xffff
  s_mov_b32 s{base+2}, {n}
  s_mov_b32 s{base+3}, 0x20000""")
        mksrd(sDW, 6, 4800); mksrd(sX, 4, 9633792)
        A(f"  s_mov_b32 m0, s{sT+6}\n  s_add_u32 s{sT+6}, s{sT+6}, 4096")
        self.vmem(f"  buffer_load_dwordx4 v13, {srd(sDW)}, 0 offen lds")
        A(f"  s_mov_b32 m0, s{sT+6}")
        self.vmem(f"  buffer_load_dwordx4 v12, {srd(sDW)}, 0 offen lds")
        A(f"  s_mov_b32 m0, {DWT + 8192}\n  v_add_u32 v12, {8192 - 960}, v{vLANE16}")
        self.dwid = self.vmem(f"  buffer_load_dwordx4 v12, {srd(sDW)}, 0 offen lds")
        for r in range(8): self.xrow(r)
        self.stamp('x0-7')
        A(f"  s_load_dword s{sTAG}, s[20:21], {EPOCH_OFF}")
        mksrd(sW1, 8, 73728); mksrd(sW2, 10, 73728); mksrd(sO, 16, 9633792)
        A(f"""  s_mul_i32 s{sT+10}, s{sW}, {24*W1P}
  s_add_u32 s{sT+10}, s{sT+10}, {W1L}
  s_mul_i32 s{sT+11}, s{sW}, {24*768}
  s_mov_b32 s{sBETA}, {hex(f2u(BETA))}
  s_mov_b32 s{sBETA+1}, {hex(f2u(BETA))}
  s_mov_b32 s{sM0}, 0x11111111
  s_mov_b32 s{sM0+1}, 0x11111111
  s_mov_b32 s{sM1}, 0x22222222
  s_mov_b32 s{sM1+1}, 0x22222222
  s_mov_b32 s{sM2}, 0x44444444
  s_mov_b32 s{sM2+1}, 0x44444444
  s_mov_b32 s{sM3}, 0x88888888
  s_mov_b32 s{sM3+1}, 0x88888888
  s_mov_b32 s{sDIAG}, 0x00f0000f
  s_mov_b32 s{sDIAG+1}, 0xf0000f00
  s_mov_b32 s{sLEFT}, 0x000f000f
  s_mov_b32 s{sLEFT+1}, 0x000f000f
  v_mov_b32 v18, 0x3f803f80""")
        for j in range(4): A(f"  v_accvgpr_write_b32 {a_(aONE+j)}, v18")
        A(f"""  v_and_b32 v14, 1, v{vN}
  v_lshlrev_b32 v14, 4, v14
  v_mov_b32 v15, 0x3f80
  v_lshlrev_b32 v14, v14, v15
  v_lshrrev_b32 v15, 2, v{vN}
  v_cmp_eq_u32 vcc, v15, v{vQ}
  v_bfe_u32 v15, v{vN}, 1, 1
  v_cndmask_b32 v14, 0, v14, vcc
  v_cmp_eq_u32 vcc, 0, v15
  v_mov_b32 v18, 0
  v_cndmask_b32 v16, 0, v14, vcc
  v_cndmask_b32 v17, v14, 0, vcc
  v_accvgpr_write_b32 {a_(aSEL+0)}, v16
  v_accvgpr_write_b32 {a_(aSEL+1)}, v17
  v_accvgpr_write_b32 {a_(aSEL+2)}, v18
  v_accvgpr_write_b32 {a_(aSEL+3)}, v18
  v_accvgpr_write_b32 {a_(aSEL+4)}, v18
  v_accvgpr_write_b32 {a_(aSEL+5)}, v18
  v_accvgpr_write_b32 {a_(aSEL+6)}, v16
  v_accvgpr_write_b32 {a_(aSEL+7)}, v17""")
        self.conv_addr()
        self.ln_addrs()
        self.stamp('precomp')

    cA, cIDX, cBF, cBG0, cBG1, cYW = 44, 92, 93, 94, 95, 96
    cD = [[208, 212, 216], [220, 224, 228]]
    cT = 232
    cAF, cAG, cML, cMH = 240, 241, 242, 243
    vLN = {'L': 97, 0: 98, 1: 99, 2: 5}

    def conv_addr(self):
        A = self.A; t = 100
        A(f"""; conv addresses
  v_lshrrev_b32 v{t}, 3, v{vN}
  v_and_b32 v{t+1}, 7, v{vN}
  v_lshrrev_b32 v{t+2}, 1, v{vQ}
  v_sub_u32 v{t+2}, v{t+2}, v{t}
  v_add_u32 v{t+2}, 1, v{t+2}
  v_mul_u32_u24 v{t+2}, 960, v{t+2}
  v_and_b32 v{t+3}, 1, v{vQ}
  v_mul_u32_u24 v{t+3}, 384, v{t+3}
  v_add_u32 v{t+2}, v{t+2}, v{t+3}
  v_lshl_add_u32 v{t+2}, v{t+1}, 1, v{t+2}
  s_mul_i32 s{sT}, s{sW}, 48
  s_add_u32 s{sT+1}, s{sT}, {DWT}
  v_add_u32 v{self.cAF}, s{sT+1}, v{t+2}
  v_lshlrev_b32 v{t+3}, 1, v{vQ}
  v_sub_u32 v{t+3}, v{t+3}, v{t}
  v_add_u32 v{t+3}, 1, v{t+3}
  v_mul_u32_u24 v{t+3}, 960, v{t+3}
  v_lshl_add_u32 v{t+3}, v{t+1}, 1, v{t+3}
  s_add_u32 s{sT+1}, s{sT+1}, 768
  v_add_u32 v{self.cAG}, s{sT+1}, v{t+3}
  v_cmp_gt_u32 vcc, 4, v{t+1}
  v_and_b32 v{t+4}, 3, v{t+1}
  v_add_u32 v{t+5}, 1, v{t+4}
  v_and_b32 v{t+5}, 3, v{t+5}
  v_lshl_or_b32 v{t+4}, v{t+5}, 2, v{t+4}
  s_movk_i32 s{sT+2}, 0x1111
  v_mul_u32_u24 v{self.cIDX}, s{sT+2}, v{t+4}
  v_cndmask_b32 v{self.cML}, 0, -1, vcc
  v_not_b32 v{self.cMH}, v{self.cML}
  v_add_u32 v{t+6}, v{vN}, v{vQ}
  v_mul_u32_u24 v{t+6}, 208, v{t+6}
  s_add_u32 s{sT+1}, s{sT}, {XB}
  v_add_u32 v{self.cBF}, s{sT+1}, v{t+6}
  v_mul_u32_u24 v{t+6}, 208, v{vN}
  s_add_u32 s{sT+2}, s{sT+1}, {4*208}
  v_add_u32 v{t+8}, s{sT+2}, v{t+6}
  v_mul_u32_u24 v{t+7}, {XROW}, v{vQ}
  v_add_u32 v{self.cBG0}, v{t+8}, v{t+7}
  v_min_u32 v{t+7}, 1, v{vQ}
  v_add_u32 v{t+7}, 4, v{t+7}
  v_mul_u32_u24 v{t+7}, {XROW}, v{t+7}
  v_add_u32 v{self.cBG1}, v{t+8}, v{t+7}
  v_lshrrev_b32 v{t+7}, 1, v{vQ}
  v_mul_u32_u24 v{t+7}, 3328, v{t+7}
  v_add_u32 v{t+6}, v{t+6}, v{t+7}
  v_and_b32 v{t+7}, 1, v{vQ}
  v_lshl_add_u32 v{t+6}, v{t+7}, 3, v{t+6}
  s_add_u32 s{sT+1}, s{sT}, {YB}
  v_add_u32 v{self.cYW}, s{sT+1}, v{t+6}""")

    def ln_addrs(self):
        A = self.A; t = 100
        for slot in ('L', 0, 1, 2):
            d = self.vLN[slot]
            if slot == 'L': A(f"  v_min_u32 v{t}, 3, v{vN}")
            else:
                A(f"  s_lshl_b32 s{sT}, s{sW}, 4\n  s_add_u32 s{sT}, s{sT}, {4 + 64*slot}\n  v_add_u32 v{t}, s{sT}, v{vN}")
            A(f"""  v_mul_u32_u24 v{t+1}, 4682, v{t}
  v_lshrrev_b32 v{t+1}, 16, v{t+1}
  v_mul_u32_u24 v{t+2}, 14, v{t+1}
  v_sub_u32 v{t}, v{t}, v{t+2}
  v_mul_u32_u24 v{d}, 208, v{t}
  v_lshl_add_u32 v{d}, v{vQ}, 4, v{d}
  v_lshrrev_b32 v{t+2}, 1, v{t+1}
  v_mul_u32_u24 v{t+2}, 7680, v{t+2}
  v_add_u32 v{d}, v{d}, v{t+2}
  v_and_b32 v{t+2}, 1, v{t+1}
  v_mul_u32_u24 v{t+2}, 3328, v{t+2}
  v_add_u32 v{d}, v{d}, v{t+2}
  v_add_u32 v{d}, {YB}, v{d}""")
            if slot != 'L':
                A(f"""  v_add_u32 v{t+1}, s{sY0}, v{t+1}
  v_mul_u32_u24 v{t+1}, 224, v{t+1}
  v_add_u32 v{t}, v{t}, v{t+1}
  v_add_u32 v{t}, s{sX0}, v{t}
  v_mul_u32_u24 v{t}, 192, v{t}
  v_lshl_add_u32 v{t}, v{vQ}, 4, v{t}
  v_accvgpr_write_b32 {a_(aOUT+slot)}, v{t}""")

    def a_build(self):
        A = self.A
        self.drain()
        self.wait(vm=self.dwid)
        A("  s_barrier")
        W = 100
        ids = []
        for gl in range(3):
            for f in range(4):
                for z in range(2):
                    r = W + (gl * 4 + f) * 2 + z
                    if f < 3: ids.append(self.ds(f"  ds_read_u16 v{r}, v{self.cAF} offset:{f*1920 + z*192 + 16*gl}"))
                    else: ids.append(self.ds(f"  ds_read_u16 v{r}, v{self.cAG} offset:{z*960 + 16*gl}"))
            if gl == 0: continue
            self.wait(lg=ids[8*gl - 1]); self.a_and(gl - 1, W)
        self.wait(lg=ids[-1]); self.a_and(2, W)
    def a_and(self, gl, W):
        for f in range(4):
            r = W + (gl * 4 + f) * 2; d = self.cA + (gl * 4 + f) * 4
            self.A(f"""  v_and_b32 v{d}, v{r}, v{self.cML}
  v_and_b32 v{d+1}, v{r}, v{self.cMH}
  v_and_b32 v{d+2}, v{r+1}, v{self.cML}
  v_and_b32 v{d+3}, v{r+1}, v{self.cMH}""")

    def Freg(self, gl, rho): return aF + (((rho // 2) % 4) * 3 + gl) * 8
    def Greg(self, gl, b): return aG + ((b % 2) * 3 + gl) * 8
    def conv_reads(self, b):
        Y = 2 * b; L = []
        def rd(dst, base, off): L.append(lambda: setattr(self, 'lastrd', self.ds(f"  ds_read_b128 {a_(dst,4)}, v{base} offset:{off}")))
        for gl in range(3):
            rhos = [0, 2, 4] if b == 0 else [Y + 4]
            for rho in rhos:
                rd(self.Freg(gl, rho), self.cBF, rho * XROW + 16 * gl)
                rd(self.Freg(gl, rho) + 4, self.cBF, (rho + 1) * XROW + 16 * gl)
            rd(self.Greg(gl, b), self.cBG0, Y * XROW + 16 * gl)
            rd(self.Greg(gl, b) + 4, self.cBG1, Y * XROW + 16 * gl)
        return L
    def conv_zero(self, b): return [f"  v_mov_b64 {v(self.cD[b%2][gl]+2*h,2)}, 0" for gl in range(3) for h in range(2)]
    def conv_mfmas(self, b):
        Y = 2 * b; L = []
        for f in range(4):
            for gl in range(3):
                B = a_(self.Freg(gl, Y + 2*f), 8) if f < 3 else a_(self.Greg(gl, b), 8)
                L.append(f"  v_smfmac_f32_16x16x64_bf16 {v(self.cD[b%2][gl],4)}, {v(self.cA+(gl*4+f)*4,4)}, {B}, v{self.cIDX}")
        return L
    def conv_epi(self, b):
        L = []
        for gl in range(3):
            d = self.cD[b % 2][gl]; t = self.cT + 2 * gl
            L.append(f"  v_cvt_pk_bf16_f32 v{t}, v{d}, v{d+1}")
            L.append(f"  v_cvt_pk_bf16_f32 v{t+1}, v{d+2}, v{d+3}")
            L.append(lambda t=t, gl=gl: self.ds(f"  ds_write_b64 v{self.cYW}, {v(t,2)} offset:{b*7680 + 16*gl}"))
        return L

    def conv_all(self):
        A = self.A
        extra = {0: [('x', 14), ('x', 15)], 1: [('x', 16), ('x', 17)], 2: [('w', k) for k in range(0, 5)], 3: [('w', k) for k in range(5, 10)],
                 4: [('w', k) for k in range(10, 15)], 5: [('w', k) for k in range(15, 20)], 6: [('w', k) for k in range(20, 24)]}
        self.xrow(12); self.xrow(13)
        self.wait(vm=self.xid[5]); A("  s_barrier")
        rd = self.conv_reads(0)
        for k, r in enumerate(rd):
            r()
            if k == 11:
                self.emit(self.conv_zero(0)); self.wait(lg=self.lastrd)
        rd_id = self.lastrd
        for b in range(7):
            A(f"; ==== conv block {b}")
            for kind, k in extra[b]:
                self.xrow(k) if kind == 'x' else self.w1row(k)
            nxt = []
            if b < 6:
                self.wait(vm=self.xid[2 * b + 7]); A("  s_barrier")
                nxt = self.conv_reads(b + 1)
            else:
                A("  s_barrier")
            self.wait(lg=self.lg.n)
            mf = self.conv_mfmas(b)
            left = self.interleave(mf, nxt, per=1)
            self.emit(left)
            if b < 6:
                rd_id = self.lastrd
                self.emit(self.conv_zero(b + 1))
            self.emit(self.conv_epi(b))
            if b == 4:
                self.ln_tiles(['L', 0])
        self.drain(); A("  s_barrier")
        self.stamp('conv')
        self.ln_tiles([1, 2])

    def ln_tiles(self, slots):
        A = self.A
        A(f"; ==== LN tiles {slots}")
        bases = [100, 148]
        R = []
        for k, sl in enumerate(slots):
            b = bases[k]
            R.append(dict(sl=sl, U=b, Dg=b + 24, Ds=b + 28, st=b + 32, raw=(192 if k == 0 else 244),
                          dest=(lambda q, sl=sl: YH[sl] + q) if sl != 'L' else (lambda q: YL[q // 4] + q % 4)))
        last = None
        for r in R:
            for s in range(3): last = self.ds(f"  ds_read_b128 {v(r['raw']+4*s,4)}, v{self.vLN[r['sl']]} offset:{64*s}")
            r['id'] = last
        for r in R:
            self.wait(lg=r['id'])
            raw = r['raw']
            mf = []
            for s in range(3):
                mf.append(f"  v_mfma_f32_16x16x32_bf16 {v(r['Dg'],4)}, {v(raw+4*s,4)}, {v(raw+4*s,4)}, " + ("0" if s == 0 else v(r['Dg'],4)))
                mf.append(f"  v_mfma_f32_16x16x32_bf16 {v(r['Ds'],4)}, {a_(aONE,4)}, {v(raw+4*s,4)}, " + ("0" if s == 0 else v(r['Ds'],4)))
            un = []
            for k in range(12):
                un.append(f"  v_lshlrev_b32 v{r['U']+2*k}, 16, v{raw+k}")
                un.append(f"  v_and_b32 v{r['U']+2*k+1}, 0xffff0000, v{raw+k}")
            left = self.interleave(mf, un, per=2)
            self.emit(left)
        for r in R:
            st, Dg = r['st'], r['Dg']
            A(f"""  v_cndmask_b32 v{st}, v{Dg}, v{Dg+1}, {sp(sM1)}
  v_cndmask_b32 v{st}, v{st}, v{Dg+2}, {sp(sM2)}
  v_cndmask_b32 v{st}, v{st}, v{Dg+3}, {sp(sM3)}
  v_cndmask_b32 v{st}, 0, v{st}, {sp(sDIAG)}
  v_mov_b32 v{st+1}, 1.0
  v_mul_f32 v{st+2}, {hex(f2u(1.0/96))}, v{r['Ds']}""")
        for r in R:
            A(f"  v_mfma_f32_16x16x4_f32 {v(r['Dg'],4)}, v{r['st']+1}, v{r['st']}, 0")
        seqs = []
        for r in R:
            st, Dg = r['st'], r['Dg']
            s_ = [f"  v_mul_f32 v{st+3}, {hex(f2u(1.0/96))}, v{Dg}",
                  f"  v_fma_f32 v{st+3}, -v{st+2}, v{st+2}, v{st+3}",
                  f"  v_max_f32 v{st+3}, 0, v{st+3}",
                  f"  v_add_f32 v{st+3}, {hex(f2u(1e-5))}, v{st+3}",
                  f"  v_rsq_f32 v{st+3}, v{st+3}",
                  f"  v_mul_f32 v{st+4}, {hex(f2u(ALPHA))}, v{st+3}"]
            if r['sl'] == 'L': s_.append(f"  v_cndmask_b32 v{st+4}, 0, v{st+4}, {sp(sLEFT)}")
            s_ += [f"  v_mul_f32 v{st}, v{st+2}, v{st+4}", f"  v_sub_f32 v{st}, 0, v{st}"]
            seqs.append(s_)
        A("  s_nop 7")
        for k in range(max(len(s) for s in seqs)):
            for s_ in seqs:
                if k < len(s_): A(s_[k])
        for r in R:
            U, st = r['U'], r['st']
            for k in range(12): A(f"  v_pk_fma_f32 {v(U+2*k,2)}, {v(U+2*k,2)}, {v(st+4,2)}, {v(st,2)} op_sel_hi:[1,0,0]")
        for r in R:
            for k in range(12): A(f"  v_cvt_pk_bf16_f32 v{r['dest'](k)}, v{r['U']+2*k}, v{r['U']+2*k+1}")

    def prologue(self):
        A = self.A
        self.setup()
        self.xrow(8); self.xrow(9)
        self.a_build()
        self.xrow(10); self.xrow(11)
        self.stamp('abuild')
        self.conv_all()
        self.stamp('ln')

    def a_addr(self, seg):
        self.A(f"""  s_add_u32 s{sT}, s{sW}, {seg}
  s_and_b32 s{sT}, s{sT}, 3
  s_mul_i32 s{sT}, s{sT}, 192
  v_add_u32 v{vAADR}, s{sT}, v6""")
    def a_loads(self, i):
        L = []
        for s in range(3):
            for z in range(2):
                L.append(lambda s=s, z=z: setattr(self, 'afr_id', self.ds(f"  ds_read_b64_tr_b16 {a_(aFR+4*s+2*z,2)}, v{vAADR} offset:{s*32*W1P + z*4*W1P + 32*(i%6)}")))
        return L
    def tiles(self, i): return 4 if i < 6 else 3
    def accregs(self, i):
        base = P0 if i % 2 == 0 else P1
        l = [base, base + 4, base + 8]
        if i < 6: l.append(P0L if i % 2 == 0 else P1L)
        return l
    def gemm1_mfmas(self, i):
        acc = self.accregs(i); out = []
        for s in range(3):
            for tl in range(self.tiles(i)):
                B = v(YH[tl] + 4 * s, 4) if tl < 3 else v(YL[s], 4)
                C = "0" if s == 0 else v(acc[tl], 4)
                out.append(f"  v_mfma_f32_16x16x32_bf16 {v(acc[tl],4)}, {a_(aFR+4*s,4)}, {B}, {C}")
        return out
    def dpp_tail(self, i):
        b0, b1, c = DP, DP + 1, DP + 2
        mj = [sM0, sM1, sM2, sM3][i % 4]
        return [f"  v_add_f32_dpp v{b0}, v{AS}, v{AS} row_ror:8 row_mask:0xf bank_mask:0x3",
                f"  v_add_f32_dpp v{b0}, v{AS+1}, v{AS+1} row_ror:8 row_mask:0xf bank_mask:0xc",
                f"  v_add_f32_dpp v{b1}, v{AS+2}, v{AS+2} row_ror:8 row_mask:0xf bank_mask:0x3",
                f"  v_add_f32_dpp v{b1}, v{AS+3}, v{AS+3} row_ror:8 row_mask:0xf bank_mask:0xc",
                f"  v_add_f32_dpp v{c}, v{b0}, v{b0} row_half_mirror row_mask:0xf bank_mask:0x5",
                f"  v_add_f32_dpp v{c}, v{b1}, v{b1} row_half_mirror row_mask:0xf bank_mask:0xa",
                f"  v_add_f32_dpp v{c}, v{c}, v{c} quad_perm:[1,0,3,2] row_mask:0xf bank_mask:0xf",
                f"  v_add_f32_dpp v{c}, v{c}, v{c} quad_perm:[2,3,0,1] row_mask:0xf bank_mask:0xf",
                f"  v_cndmask_b32 v{ST + i//4}, v{ST + i//4}, v{c}, {sp(mj)}"]
    def hdst(self, i, tl, j): return (H[tl] + 2 * i + j) if tl < 3 else (HL + 2 * i + j)
    def w2load(self, k):
        tl, a = k // 3, k % 3
        self.A(f"  s_mov_b32 s{sT+1}, {tl*3072}")
        self.w2id = self.vmem(f"  buffer_load_dwordx4 {a_(aNAT+(tl*3+a)*4,4)}, v7, {srd(sW2)}, s{sT+1} offen offset:{64*a}")
    def gelu_iter(self, i, pend):
        A = self.A
        A(f"; ==== gelu iter {i}")
        nt = self.tiles(i); acc = self.accregs(i)
        T = [TT, TT + 4, TT + 8] + ([TTL] if nt == 4 else [])
        pairs = [(tl, h) for tl in range(nt) for h in range(2)]
        U = lambda tl, h: v(acc[tl] + 2 * h, 2)
        TP = lambda tl, h: v(T[tl] + 2 * h, 2)
        seq = [f"  v_pk_fma_f32 {TP(tl,h)}, {U(tl,h)}, {U(tl,h)}, {sp(sBETA)}" for tl, h in pairs] + \
              [f"  v_pk_mul_f32 {TP(tl,h)}, {TP(tl,h)}, {U(tl,h)}" for tl, h in pairs]
        slots = {0: [0, 1], 1: [2, 3], 3: [4, 5], 6: [6], 9: [7], 11: [8]} if pend else {}
        for k, ins in enumerate(seq):
            A(ins)
            for x in slots.get(k, []): A(pend[x])
        exps = [f"  v_exp_f32 v{T[tl]+j}, v{T[tl]+j}" for tl in range(nt) for j in range(4)]
        if i + 1 < 24:
            mf = self.gemm1_mfmas(i + 1)
            self.wait(lg=self.afr_id)
            e = 0
            for k, m in enumerate(mf):
                A(m)
                if k == 0 and 2 <= i < 20: self.w2load(i - 2)
                if k < len(mf) - 1: A(exps[e]); e += 1
            if i + 2 < 24:
                if (i + 2) % 6 == 0: self.a_addr((i + 2) // 6)
                self.emit(self.a_loads(i + 2))
            while e < len(exps): A(exps[e]); e += 1
        else:
            for x in exps: A(x)
        for tl, h in pairs: A(f"  v_pk_add_f32 {TP(tl,h)}, {TP(tl,h)}, 1.0 op_sel_hi:[1,0]")
        for tl in range(nt):
            for j in range(4): A(f"  v_rcp_f32 v{T[tl]+j}, v{T[tl]+j}")
        for tl, h in pairs: A(f"  v_pk_mul_f32 {TP(tl,h)}, {TP(tl,h)}, {U(tl,h)}")
        for tl in range(nt):
            for h in range(2):
                if tl == 0: A(f"  v_pk_mul_f32 {v(AS+2*h,2)}, {TP(tl,h)}, {TP(tl,h)}")
                else: A(f"  v_pk_fma_f32 {v(AS+2*h,2)}, {TP(tl,h)}, {TP(tl,h)}, {v(AS+2*h,2)}")
        for tl, h in pairs: A(f"  v_cvt_pk_bf16_f32 v{self.hdst(i,tl,h)}, v{T[tl]+2*h}, v{T[tl]+2*h+1}")
        return self.dpp_tail(i)
    def gelu(self):
        A = self.A
        A("; ==== gelu prologue")
        A(f"""  v_lshrrev_b32 v6, 2, v{vN}
  v_lshl_add_u32 v6, v{vQ}, 3, v6
  v_mul_u32_u24 v6, {W1P}, v6
  v_and_b32 v7, 3, v{vN}
  v_lshl_add_u32 v6, v7, 3, v6
  s_mul_i32 s{sT}, s{sW}, 96
  v_add_u32 v7, s{sT}, v{vN}
  v_mul_u32_u24 v7, 192, v7
  v_lshl_add_u32 v7, v{vQ}, 4, v7""")
        self.a_addr(0)
        self.wait(vm=self.w1id); A("  s_barrier")
        self.emit(self.a_loads(0))
        for k in range(6): A(f"  v_mov_b32 v{ST+k}, 0")
        self.wait(lg=self.afr_id)
        for m in self.gemm1_mfmas(0): A(m)
        self.emit(self.a_loads(1))
        A("  s_nop 3")
        pend = []
        for i in range(24): pend = self.gelu_iter(i, pend)
        A("; ==== gelu tail")
        for l in pend: A(l)

    def publish(self):
        A = self.A
        A("  s_waitcnt vmcnt(0)")
        t = TT
        A(f"""  v_and_b32 v{t}, 3, v{vN}
  s_mul_i32 s{sT}, s{sW}, 6
  v_add_u32 v{t}, s{sT}, v{t}
  v_lshrrev_b32 v{t+1}, 2, v{vN}
  v_and_b32 v{t+2}, 1, v{t+1}
  v_lshrrev_b32 v{t+1}, 1, v{t+1}
  v_lshl_or_b32 v{t+1}, v{t+2}, 1, v{t+1}
  v_lshl_add_u32 v{t+1}, v{vQ}, 2, v{t+1}
  v_lshlrev_b32 v{t+1}, 2, v{t+1}
  s_mul_i32 s{sT}, s{sW}, 1536
  s_add_u32 s{sT}, s{sT}, {PS}
  v_add_u32 v{t+1}, s{sT}, v{t+1}""")
        for k in range(6):
            A(f"""  v_add_u32 v{t+2}, {4*k}, v{t}
  v_subrev_u32 v{t+3}, 24, v{t+2}
  v_min_u32 v{t+2}, v{t+2}, v{t+3}
  v_lshl_add_u32 v{t+4+k}, v{t+2}, 6, v{t+1}""")
        return t
    def publish2(self, t):
        A = self.A
        for k in range(6): self.ds(f"  ds_write_b32 v{t+4+k}, v{ST+k}")
        A(f"""  s_add_u32 s{sTAG}, s{sTAG}, {hex(TAG_STEP)}
  s_cmp_eq_u32 s{sTAG}, 0
  s_cselect_b32 s{sT}, {hex(TAG_STEP)}, 0
  s_add_u32 s{sTAG}, s{sTAG}, s{sT}
  v_lshlrev_b32 v{t}, 2, v0
  v_add_u32 v{t}, {PS}, v{t}
  v_lshlrev_b32 v{t+1}, 12, v0
  s_lshl_b32 s{sT}, s2, 4
  s_add_u32 s{sT}, s{sT}, {L1_OFF}
  v_add_u32 v{t+1}, s{sT}, v{t+1}
  s_waitcnt lgkmcnt(0)
  s_barrier
  s_cmp_ge_u32 s{sW}, 2
  s_cbranch_scc1 L_nopub"""); self.lg.done = self.lg.n
        r = P0
        for w in range(4): A(f"  ds_read2st64_b32 {v(r+2*w,2)}, v{t} offset0:{6*w} offset1:{6*w+2}")
        A(f"  ds_read2st64_b32 {v(r+8,2)}, v{t} offset0:4 offset1:10")
        A(f"  ds_read2st64_b32 {v(r+10,2)}, v{t} offset0:16 offset1:22")
        A(f"""  v_mov_b32 v{t+7}, s{sTAG}
  s_waitcnt lgkmcnt(0)
  v_add_f32 v{t+4}, v{r}, v{r+2}
  v_add_f32 v{t+5}, v{r+1}, v{r+3}
  v_add_f32 v{t+6}, v{r+8}, v{r+9}
  v_add_f32 v{r+4}, v{r+4}, v{r+6}
  v_add_f32 v{r+5}, v{r+5}, v{r+7}
  v_add_f32 v{r+10}, v{r+10}, v{r+11}
  v_add_f32 v{t+4}, v{t+4}, v{r+4}
  v_add_f32 v{t+5}, v{t+5}, v{r+5}
  v_add_f32 v{t+6}, v{t+6}, v{r+10}
  global_store_dwordx4 v{t+1}, {v(t+4,4)}, s[20:21] sc1
L_nopub:""")

    def reducer(self, t, r):
        A = self.A
        A(f"""  s_cmp_lg_u32 s{sW}, 3
  s_cbranch_scc1 L_nored
  s_cmp_ge_u32 s2, 128
  s_cbranch_scc1 L_nored
  s_lshl_b32 s{sT}, s2, 12
  s_add_u32 s{sT}, s{sT}, {L1_OFF}
  v_add_u32 v{t}, s{sT}, v{vLANE16}
  s_mov_b32 s{sT+2}, 0
L_poll1:""")
        for k in range(4): A(f"  global_load_dwordx4 {v(r+4*k,4)}, v{t}, s[20:21] offset:{1024*k} sc1")
        A(f"""  s_add_u32 s{sT+2}, s{sT+2}, 1
  s_waitcnt vmcnt(0)
  v_cmp_eq_u32 vcc, s{sTAG}, v{r+3}
  v_cmp_eq_u32 s[{sT+4}:{sT+5}], s{sTAG}, v{r+7}
  v_cmp_eq_u32 s[{sT+6}:{sT+7}], s{sTAG}, v{r+11}
  v_cmp_eq_u32 s[{sT+8}:{sT+9}], s{sTAG}, v{r+15}
  s_and_b64 vcc, vcc, s[{sT+4}:{sT+5}]
  s_and_b64 s[{sT+6}:{sT+7}], s[{sT+6}:{sT+7}], s[{sT+8}:{sT+9}]
  s_and_b64 vcc, vcc, s[{sT+6}:{sT+7}]
  s_cmp_eq_u64 vcc, exec
  s_cbranch_scc1 L_red_go
  s_cmp_lt_u32 s{sT+2}, {self.o.spin}
  s_cbranch_scc1 L_poll1
L_red_go:""")
        for c in range(3): A(f"  v_add_f32 v{r+c}, v{r+c}, v{r+4+c}\n  v_add_f32 v{r+8+c}, v{r+8+c}, v{r+12+c}")
        for c in range(3): A(f"  v_add_f32 v{r+c}, v{r+c}, v{r+8+c}")
        for d in ("row_shr:1 row_mask:0xf", "row_shr:2 row_mask:0xf", "row_shr:4 row_mask:0xf", "row_shr:8 row_mask:0xf", "row_bcast:15 row_mask:0xa", "row_bcast:31 row_mask:0xc"):
            for c in range(3): A(f"  v_add_f32_dpp v{r+c}, v{r+c}, v{r+c} {d} bank_mask:0xf")
        for c in range(3): A(f"  v_readlane_b32 s{sT+4+c}, v{r+c}, 63")
        A(f"""  s_lshl_b32 s{sT}, s2, 4
  s_add_u32 s{sT}, s{sT}, {FIN_OFF}
  v_lshlrev_b32 v{t}, 11, v{vN}
  v_add_u32 v{t}, s{sT}, v{t}
  v_mov_b32 v{r}, s{sT+4}
  v_mov_b32 v{r+1}, s{sT+5}
  v_mov_b32 v{r+2}, s{sT+6}
  v_mov_b32 v{r+3}, s{sTAG}
  s_mov_b64 exec, {(1<<NREP)-1}
  global_store_dwordx4 v{t}, {v(r,4)}, s[20:21] sc1
  s_mov_b64 exec, -1
L_nored:""")

    XC = 8
    vOUT = 92
    vB2 = 95
    vW2W, vLP, vSPA = 99, 5, 6
    def spr(self, tl): return (80 + 4 * tl) if tl < 3 else (244 + 4 * (tl - 3))
    def dw2(self, tl, a, b): return 100 + a * 48 + (b * 6 + tl) * 4
    def xc(self, sl, a, b): return self.XC + (sl * 3 + a) * 8 + 4 * b

    def wait_work_a(self):
        A = self.A
        for sl in range(3): A(f"  v_accvgpr_read_b32 v{self.vOUT+sl}, {a_(aOUT+sl)}")
        A(f"""  s_mul_i32 s{sT}, s{sW}, 192
  v_lshlrev_b32 v4, 3, v{vQ}
  v_add_u32 v4, s{sT}, v4
  v_lshrrev_b32 v5, 3, v{vLANE16}""")
        for ul in range(3):
            for z in range(2):
                self.bid = self.vmem(f"  global_load_dwordx2 {a_(aFR+4*ul+2*z,2)}, v4, s[14:15] offset:{64*ul + 32*z}")
        for z in range(2):
            for c in range(3):
                self.gid = self.vmem(f"  global_load_ushort v{80 + z*3 + c}, v5, s[12:13] offset:{128*z + 256*c}")
        for k in range(100, 256): A(f"  v_accvgpr_write_b32 a{k}, v{k}")

    def wait_work_b(self):
        A = self.A
        for a in range(3):
            for b in range(2):
                for tl in range(6):
                    A(f"  v_mfma_f32_16x16x32_bf16 {v(self.dw2(tl,a,b),4)}, {a_(aNAT+(tl*3+a)*4,4)}, {a_(aSEL+4*b,4)}, 0")
        for sl in range(3):
            for a in range(3):
                self.xrid = self.vmem(f"  buffer_load_dwordx4 {a_((sl*3+a)*4,4)}, v{self.vOUT+sl}, {srd(sX)}, 0 offen offset:{64*a}")
        for k in range(4):
            A(f"""  s_add_u32 s{sT}, s{sW}, {k}
  s_and_b32 s{sT}, s{sT}, 3
  s_mul_i32 s{sT}, s{sT}, 3072
  v_add_u32 v{self.vB2+k}, s{sT}, v{vLANE16}""")
        A(f"""  s_mul_i32 s{sT}, s{sW}, 3072
  v_add_u32 v{self.vW2W}, s{sT}, v{vLANE16}
  s_mul_i32 s{sT}, s{sW}, 1536
  s_add_u32 s{sT}, s{sT}, {LP}
  v_mul_u32_u24 v{self.vLP}, 384, v{vN}
  v_lshl_add_u32 v{self.vLP}, v{vQ}, 5, v{self.vLP}
  v_add_u32 v{self.vLP}, s{sT}, v{self.vLP}
  s_mul_i32 s{sT}, s{sW}, 384
  s_add_u32 s{sT}, s{sT}, {SP}
  v_lshlrev_b32 v{self.vSPA}, 4, v{vQ}
  v_add_u32 v{self.vSPA}, s{sT}, v{self.vSPA}""")
        self.wait(vm=self.bid)
        Q = [244, 248]
        jobs = [(t, ul) for ul in range(3) for t in range(6)]
        for k, (t, ul) in enumerate(jobs):
            a, b = t // 2, t % 2
            q = Q[k % 2]
            d0, d1 = self.dw2(2*ul, a, b), self.dw2(2*ul+1, a, b)
            A(f"""  v_cvt_pk_bf16_f32 v{q}, v{d0}, v{d0+1}
  v_cvt_pk_bf16_f32 v{q+1}, v{d0+2}, v{d0+3}
  v_cvt_pk_bf16_f32 v{q+2}, v{d1}, v{d1+1}
  v_cvt_pk_bf16_f32 v{q+3}, v{d1+2}, v{d1+3}""")
            if k > 0:
                pt, pul = jobs[k-1]; pq = Q[(k-1) % 2]; c = self.xc(0, pt // 2, pt % 2)
                A(f"  v_mfma_f32_16x16x32_bf16 {v(c,4)}, {v(pq,4)}, {a_(aFR+4*pul,4)}, " + ("0" if pul == 0 else v(c,4)))
        pt, pul = jobs[-1]; c = self.xc(0, pt // 2, pt % 2)
        A(f"  s_nop 1\n  v_mfma_f32_16x16x32_bf16 {v(c,4)}, {v(Q[(len(jobs)-1)%2],4)}, {a_(aFR+4*pul,4)}, {v(c,4)}")
        A(f"""  s_mul_i32 s{sT}, s{sW}, 384
  s_add_u32 s{sT}, s{sT}, {CP}
  v_lshlrev_b32 v252, 5, v{vQ}
  v_add_u32 v253, {CP}, v252
  v_add_u32 v252, s{sT}, v252
  s_mov_b32 exec_lo, 0x00010001
  s_mov_b32 exec_hi, 0x00010001
  s_nop 4""")
        for t in range(6):
            a, b = t // 2, t % 2
            self.ds(f"  ds_write_b128 v252, {v(self.xc(0,a,b),4)} offset:{128*a + 16*b}")
        A("  s_mov_b64 exec, -1"); self.drain(); A("  s_barrier")
        for half in range(2):
            ts = [3*half + j for j in range(3)]
            ids = []
            for j, t in enumerate(ts):
                a, b = t // 2, t % 2
                for w in range(4):
                    dst = self.xc(0, a, b) if w == 0 else 32 + (j * 3 + (w - 1)) * 4
                    ids.append(self.ds(f"  ds_read_b128 {v(dst,4)}, v253 offset:{w*384 + 128*a + 16*b}"))
            for j, t in enumerate(ts):
                a, b = t // 2, t % 2
                self.wait(lg=ids[4*j+3])
                c = self.xc(0, a, b); o = 32 + j * 12
                for r in range(4):
                    A(f"  v_add_f32 v{c+r}, v{c+r}, v{o+r}\n  v_add_f32 v{o+4+r}, v{o+4+r}, v{o+8+r}")
                for r in range(4): A(f"  v_add_f32 v{c+r}, v{c+r}, v{o+4+r}")
        A(f"""  s_cmp_lg_u32 s{sW}, 0
  s_cbranch_scc1 L_nocv
  v_subrev_u32 v253, {CP - CV if CP > CV else 0}, v253""" if False else f"""  s_cmp_lg_u32 s{sW}, 0
  s_cbranch_scc1 L_nocv
  v_add_u32 v253, {CV - CP}, v253
  s_mov_b32 exec_lo, 0x00010001
  s_mov_b32 exec_hi, 0x00010001""")
        for t in range(6):
            a, b = t // 2, t % 2
            A(f"  ds_write_b128 v253, {v(self.xc(0,a,b),4)} offset:{128*a + 16*b}")
        A("  s_mov_b64 exec, -1\n  s_waitcnt lgkmcnt(0)\nL_nocv:"); self.lg.done = self.lg.n
        self.wait(vm=self.xrid)
        for sl in (1, 2, 0):
            for a in range(3):
                for j in range(4):
                    b, r = j // 2, (j % 2) * 2
                    c = self.xc(0, a, b) + r; d = self.xc(sl, a, b) + r
                    A(f"""  v_accvgpr_read_b32 v252, {a_((sl*3+a)*4+j)}
  v_lshlrev_b32 v253, 16, v252
  v_and_b32 v252, 0xffff0000, v252
  v_add_f32 v{d}, v{c}, v253
  v_add_f32 v{d+1}, v{c+1}, v252""")
        A("  s_waitcnt vmcnt(0)")

    def final_poll(self):
        A = self.A
        r = 244; t = 86
        A(f"""  s_cmp_lg_u32 s{sW}, 0
  s_cbranch_scc1 L_nofin
  s_and_b32 s{sT}, s2, {NREP-1}
  s_lshl_b32 s{sT}, s{sT}, 11
  s_add_u32 s{sT}, s{sT}, {FIN_OFF}
  v_add_u32 v{t}, s{sT}, v{vLANE16}
  s_mov_b32 s{sT+2}, 0""")
        for k in range(6): A(f"  v_lshlrev_b32 v{80+k}, 16, v{80+k}")
        A(f"""  s_mov_b32 s{sT+10}, {hex(f2u(1.0/(ALPHA*ALPHA)))}
  v_mov_b32 v{t+1}, {hex(f2u(1e-6))}
  v_mov_b32 v{t+4}, {hex(f2u(1.0/384))}
  v_mov_b32 v{t+3}, {hex(f2u(1.0/ALPHA))}
  v_lshrrev_b32 v{t+5}, 2, v{vLANE16}
  v_add_u32 v{t+5}, {SP}, v{t+5}
L_poll2:
  global_load_dwordx4 {v(r,4)}, v{t}, s[20:21] sc1
  global_load_dwordx4 {v(r+4,4)}, v{t}, s[20:21] offset:1024 sc1
  s_add_u32 s{sT+2}, s{sT+2}, 1
  s_waitcnt vmcnt(0)
  v_cmp_eq_u32 vcc, s{sTAG}, v{r+3}
  v_cmp_eq_u32 s[{sT+4}:{sT+5}], s{sTAG}, v{r+7}
  s_and_b64 vcc, vcc, s[{sT+4}:{sT+5}]
  s_cmp_eq_u64 vcc, exec
  s_cbranch_scc1 L_fin_go
  s_cmp_lt_u32 s{sT+2}, {self.o.spin}
  s_cbranch_scc1 L_poll2
L_fin_go:""")
        vals = [r, r+1, r+2, r+4, r+5, r+6]
        for x in vals: A(f"  v_fma_f32 v{x}, v{x}, s{sT+10}, v{t+1}")
        for x in vals: A(f"  v_sqrt_f32 v{x}, v{x}")
        A(f"""  v_add_f32 v{t+2}, v{r}, v{r+1}
  v_add_f32 v{r+3}, v{r+2}, v{r+4}
  v_add_f32 v{r+7}, v{r+5}, v{r+6}
  v_add_f32 v{t+2}, v{t+2}, v{r+3}
  v_add_f32 v{t+2}, v{t+2}, v{r+7}""")
        gm = [f"  v_mul_f32 v{80+k}, v{80+k}, v{x}" for k, x in enumerate(vals)]
        for k, d in enumerate(("row_shr:1 row_mask:0xf", "row_shr:2 row_mask:0xf", "row_shr:4 row_mask:0xf", "row_shr:8 row_mask:0xf", "row_bcast:15 row_mask:0xa", "row_bcast:31 row_mask:0xc")):
            A(gm[k])
            A(f"  v_add_f32_dpp v{t+2}, v{t+2}, v{t+2} {d} bank_mask:0xf")
        A(f"""  v_readlane_b32 s{sT+4}, v{t+2}, 63
  v_fma_f32 v{t+2}, s{sT+4}, v{t+4}, v{t+1}
  v_rcp_f32 v{t+2}, v{t+2}
  s_nop 0
  v_mul_f32 v{t+2}, v{t+2}, v{t+3}""")
        for k in range(6): A(f"  v_fma_f32 v{80+k}, v{80+k}, v{t+2}, v{t+3}")
        for z in range(2):
            for c in range(3): A(f"  ds_write_b32 v{t+5}, v{80+3*z+c} offset:{256*z + 512*c}")
        A(f"""  s_cmp_lg_u32 s2, 0
  s_cbranch_scc1 L_noepoch
  v_mov_b32 v{t}, {EPOCH_OFF}
  v_mov_b32 v{t+1}, s{sTAG}
  s_mov_b64 exec, 1
  global_store_dword v{t}, v{t+1}, s[20:21] sc1
  s_mov_b64 exec, -1
L_noepoch:
L_nofin:
  s_waitcnt lgkmcnt(0)
  s_barrier"""); self.lg.done = self.lg.n

    def prep_round(self, a, pk):
        L = []
        for b in range(2):
            for ul in range(3):
                for z in range(2):
                    d = self.dw2(2*ul+z, a, b); s_ = self.spr(2*ul+z)
                    if pk:
                        L.append(f"  v_pk_mul_f32 {v(d,2)}, {v(d,2)}, {v(s_,2)}")
                        L.append(f"  v_pk_mul_f32 {v(d+2,2)}, {v(d+2,2)}, {v(s_+2,2)}")
                    else:
                        for j in range(4): L.append(f"  v_mul_f32 v{d+j}, v{d+j}, v{s_+j}")
        for b in range(2):
            for ul in range(3):
                d0 = self.dw2(2*ul, a, b); d1 = self.dw2(2*ul+1, a, b)
                L.append(f"  v_cvt_pk_bf16_f32 v{d0}, v{d0}, v{d0+1}")
                L.append(f"  v_cvt_pk_bf16_f32 v{d0+1}, v{d0+2}, v{d0+3}")
                L.append(f"  v_cvt_pk_bf16_f32 v{d0+2}, v{d1}, v{d1+1}")
                L.append(f"  v_cvt_pk_bf16_f32 v{d0+3}, v{d1+2}, v{d1+3}")
                L.append(lambda d0=d0, b=b, ul=ul: setattr(self, 'prep_id', self.ds(f"  ds_write_b128 v{self.vW2W}, {v(d0,4)} offset:{(2*a+b)*12288 + ul*1024}")))
        return L

    def w2_prep0(self):
        A = self.A
        ids = [self.ds(f"  ds_read_b128 {v(self.spr(tl),4)}, v{self.vSPA} offset:{64*tl}") for tl in range(6)]
        self.wait(lg=ids[-1])
        self.emit(self.prep_round(0, True))
        self.drain(); A("  s_barrier")

    def gemm2(self):
        A = self.A
        ACC = [100, 124, 100]
        ACL = [160, 168, 176]
        A("; ==== gemm2")
        ACC = [100, 148, 100]; ACL = [140, 172, 140]; RING = 124; NR = 4; TMP = 180
        steps = [(a, u, b) for a in range(3) for u in range(12) for b in range(2)]
        rid = {}
        def rd(k):
            a, u, b = steps[k]
            rid[k] = self.ds(f"  ds_read_b128 {v(RING+4*(k%NR),4)}, v{self.vB2+u//3} offset:{(2*a+b)*12288 + (u%3)*1024}")
        def epilogue(a):
            L = []
            for sl in range(3):
                o = TMP + 4 * (sl % 2); acc = ACC[a] + sl * 8
                for j in range(4): L.append(f"  v_cvt_pk_bf16_f32 v{o+j}, v{acc+2*j}, v{acc+2*j+1}")
                L.append(f"  buffer_store_dwordx4 {v(o,4)}, v{self.vOUT+sl}, {srd(sO)}, 0 offen offset:{64*a}{self.o.stmod}")
            return L
        def leftover_write(a):
            l = ACL[a]
            def go():
                A("  s_mov_b32 exec_lo, 0x000f000f\n  s_mov_b32 exec_hi, 0x000f000f")
                self.ds(f"  ds_write_b128 v{self.vLP}, {v(l,4)} offset:{128*a}")
                self.ds(f"  ds_write_b128 v{self.vLP}, {v(l+4,4)} offset:{128*a+16}")
                A("  s_mov_b64 exec, -1")
            return [go]
        fill = self.prep_round(1, False)
        p2 = self.prep_round(2, False)
        for k in range(NR - 1): rd(k)
        for k, (a, u, b) in enumerate(steps):
            if u == 0 and b == 0:
                A(f"; ---- gemm2 round {a}")
                if a == 1: fill = epilogue(0)
                if a == 2: fill = epilogue(1)
            if a == 0 and u == 6 and b == 0: pass
            nk = k + NR - 1
            cross = nk < len(steps) and steps[nk][0] != a
            if nk < len(steps) and not cross: rd(nk)
            self.wait(lg=rid[k])
            fr = v(RING + 4*(k % NR), 4)
            for sl in range(3):
                d = ACC[a] + sl*8 + 4*b
                C = v(self.xc(sl, a, b), 4) if u == 0 else v(d, 4)
                A(f"  v_mfma_f32_16x16x32_bf16 {v(d,4)}, {fr}, {a_(H[sl]+4*u,4)}, {C}")
                if not (u == 0 and b == 0):
                    for _ in range(2):
                        if fill:
                            f = fill.pop(0); f() if callable(f) else A(f)
            if u < 3:
                d = ACL[a] + 4*b
                A(f"  v_mfma_f32_16x16x32_bf16 {v(d,4)}, {fr}, {a_(HL+4*u,4)}, " + ("0" if u == 0 else v(d,4)))
            if u == 4 and b == 1: fill = fill + leftover_write(a)
            if a == 0 and u == 7 and b == 0: fill = fill + []
            if a == 1 and u == 3 and b == 0: fill = fill + p2; p2 = []
            if u == 11 and b == 1 and a < 2:
                self.emit(fill); fill = []
                self.drain(); A("  s_barrier")
                for kk in range(k + 1, k + NR): rd(kk)
        self.emit(fill)
        A("  s_nop 6")
        self.emit(epilogue(2))
        A(f"""  s_waitcnt lgkmcnt(0)
  s_barrier
  v_lshrrev_b32 v200, 4, v{vLANE16}
  s_mul_i32 s{sT}, s{sW}, 384
  s_add_u32 s{sT}, s{sT}, {LP}
  v_lshlrev_b32 v201, 5, v200
  v_add_u32 v202, {CV}, v201
  v_add_u32 v201, s{sT}, v201
  s_mul_i32 s{sT}, s{sY0}, 224
  s_add_u32 s{sT}, s{sT}, s{sX0}
  s_add_u32 s{sT}, s{sT}, s{sW}
  s_mul_i32 s{sT}, s{sT}, 192
  v_add_u32 v203, s{sT}, v{vLANE16}
  s_mov_b64 exec, 0xfff
  buffer_load_dwordx4 v[204:207], v203, {srd(sX)}, 0 offen""")
        for w in range(4):
            A(f"  ds_read_b128 {v(208+8*w,4)}, v201 offset:{w*1536}\n  ds_read_b128 {v(212+8*w,4)}, v201 offset:{w*1536+16}")
        A("  ds_read_b128 v[240:243], v202\n  ds_read_b128 v[244:247], v202 offset:16\n  s_waitcnt lgkmcnt(0)")
        for j in range(8):
            A(f"""  v_add_f32 v{208+j}, v{208+j}, v{216+j}
  v_add_f32 v{224+j}, v{224+j}, v{232+j}
  v_add_f32 v{208+j}, v{208+j}, v{240+j}
  v_add_f32 v{208+j}, v{208+j}, v{224+j}""")
        A("  s_waitcnt vmcnt(0)")
        for j in range(4):
            A(f"""  v_lshlrev_b32 v216, 16, v{204+j}
  v_and_b32 v217, 0xffff0000, v{204+j}
  v_add_f32 v{208+2*j}, v{208+2*j}, v216
  v_add_f32 v{209+2*j}, v{209+2*j}, v217
  v_cvt_pk_bf16_f32 v{220+j}, v{208+2*j}, v{209+2*j}""")
        A(f"  buffer_store_dwordx4 v[220:223], v203, {srd(sO)}, 0 offen{self.o.stmod}")

    def stamp_dump(self):
        if not self.o.prof: return
        A = self.A
        A(f"""  s_mov_b64 exec, -1
  s_memrealtime s[78:79]
  s_lshl_b32 s{sT}, s2, 2
  s_add_u32 s{sT}, s{sT}, s{sW}
  s_lshl_b32 s{sT}, s{sT}, 7
  s_add_u32 s{sT}, s{sT}, {DBG_OFF}
  v_mov_b32 v5, s{sT}
  s_waitcnt lgkmcnt(0)
  s_mov_b64 exec, 1""")
        for k in range(len(self.stamps)):
            A(f"  v_mov_b32 v6, s{80+k}\n  global_store_dword v5, v6, s[20:21] offset:{4*k}")
        A(f"  v_mov_b32 v6, s78\n  global_store_dword v5, v6, s[20:21] offset:{4*30}")
        A(f"  v_mov_b32 v6, s49\n  global_store_dword v5, v6, s[20:21] offset:{4*31}")
        if self.o.dbgstamp:
            A(f"  s_cmp_lg_u32 s2, 100\n  s_cbranch_scc1 L_nodbg\n  s_cmp_lg_u32 s{sW}, 0\n  s_cbranch_scc1 L_nodbg\n  v_mov_b32 v7, 0")
            for j in range(min(16, len(self.stamps) - 1)):
                A(f"  s_sub_u32 s78, s{81+j}, s80\n  v_mov_b32 v6, s78\n  global_store_dword v7, v6, s[18:19] offset:{4*j}")
            A("L_nodbg:")
    def dump_regs(self, label, regs, wsoff):
        A = self.A
        n = len(regs)
        A(f"""  s_waitcnt vmcnt(0) lgkmcnt(0)
  v_lshlrev_b32 v6, 2, v0
  s_mul_i32 s{sT}, s2, {n*1024}
  s_add_u32 s{sT}, s{sT}, {wsoff}
  v_add_u32 v6, s{sT}, v6""")
        for k, r in enumerate(regs):
            A(f"  global_store_dword v6, v{r}, s[20:21]\n  v_add_u32 v6, 1024, v6")
            if k % 32 == 31: A("  s_waitcnt vmcnt(0)")
        A("  s_waitcnt vmcnt(0)")

    def build(self):
        o = self.o; A = self.A
        self.prologue()
        if o.stop == 'ln':
            self.dump_regs('yhat', list(range(YH[0], YH[0]+36)) + [YL[0]+k for k in range(4)] + [YL[1]+k for k in range(4)] + [YL[2]+k for k in range(4)], DBG_OFF)
            A("  s_branch L_end")
        self.gelu()
        t = self.publish()
        self.stamp('gelu')
        if o.stop == 'gelu':
            self.dump_regs('h', list(range(100, 256)) + list(range(ST, ST+6)), DBG_OFF)
            A("  s_branch L_end")
        self.publish2(t)
        self.stamp('pub')
        self.wait_work_a()
        self.stamp('wwa')
        self.reducer(4, 100)
        self.stamp('red')
        self.wait_work_b()
        self.stamp('wwb')
        self.final_poll()
        self.stamp('fin')
        self.w2_prep0()
        self.stamp('prep')
        self.gemm2()
        self.stamp('gemm2')
        self.stamp_dump()
        A("L_end:\n  s_endpgm")
        body = A.finalize(verbose=not o.quiet, align=o.align)
        hdr = f"""; Fused block: 5x5 depthwise conv + LayerNorm + GEMM(96->384) + GELU + GRN + GEMM(384->96) + residual.
; @launch grid=(256,1,1) block=(256,1,1) lds={LDS_BYTES}
.amdgcn_target "amdgcn-amd-amdhsa--gfx950"
.text
.globl {KNAME}
.p2align 8
.type {KNAME},@function
{KNAME}:
"""
        tail = f""".section .rodata,"a"
.p2align 6
.amdhsa_kernel {KNAME}
  .amdhsa_next_free_vgpr 512
  .amdhsa_next_free_sgpr 102
  .amdhsa_accum_offset 256
  .amdhsa_group_segment_fixed_size 0
  .amdhsa_kernarg_size 72
  .amdhsa_user_sgpr_count 2
  .amdhsa_user_sgpr_kernarg_segment_ptr 1
  .amdhsa_system_sgpr_workgroup_id_x 1
  .amdhsa_float_denorm_mode_32 3
.end_amdhsa_kernel
"""
        if o.names: open(o.names, 'w').write(",".join(self.stamps))
        return hdr + body + tail

if __name__ == '__main__':
    ap = argparse.ArgumentParser()
    ap.add_argument('-o', default='out.s')
    ap.add_argument('--stop', default='')
    ap.add_argument('--spin', type=int, default=200000)
    ap.add_argument('--quiet', action='store_true')
    ap.add_argument('--prof', action='store_true')
    ap.add_argument('--dbgstamp', action='store_true')
    ap.add_argument('--align', action='store_true')
    ap.add_argument('--lnsplit', action='store_true')
    ap.add_argument('--stmod', default='')
    ap.add_argument('--names', default='')
    o = ap.parse_args()
    if o.stmod: o.stmod = ' ' + o.stmod
    g = G(o)
    open(o.o, 'w').write(g.build())
    print("wrote", o.o)
```

```python
import sys, struct, math, argparse
from asmlib import Asm

def f2u(x): return struct.unpack('<I', struct.pack('<f', x))[0]
KNAME = "standalone__modern_conv_block_slak__vision_kernel"

C1 = -2.0 * math.sqrt(2.0 / math.pi) * math.log2(math.e)
C2 = C1 * 0.044715
ALPHA = -((-C2) ** (1.0 / 3.0))
BETA = C1 / ALPHA
W1L = 0
W1P = 800
YB = 76800
XB = YB + 7680
XROW = 3840
DWT = XB + 18 * XROW
W2S = YB
CP = YB + 73728
CV = CP + 1536
GBL = DWT
PS = DWT + 1536
SP = PS + 6144
RES = 0
OUTS = YB
LP = YB + 8192
W2F = 0
LDS_BYTES = 163840
EPOCH_OFF = 0
L1_OFF = 4096
FIN_OFF = L1_OFF + 128 * 4096
NREP = 16
TAG_STEP = 0x9E3779B1
DBG_OFF = 0x200000
sX, sDW, sW1, sW2, sO = 24, 28, 32, 36, 40
sW, sX0, sY0, sTAG = 44, 45, 46, 47
sBETA = 50
sM0, sM1, sM2, sM3 = 52, 54, 56, 58
sDIAG, sLEFT, sBIG = 60, 62, 64
sXM, sXE = 65, 48
sT = 66
def srd(b): return f"s[{b}:{b+3}]"
def sp(b): return f"s[{b}:{b+1}]"
def v(a, n=1): return f"v{a}" if n == 1 else f"v[{a}:{a+n-1}]"
def a_(a, n=1): return f"a{a}" if n == 1 else f"a[{a}:{a+n-1}]"
vLANE16, vN, vQ, vAADR = 1, 2, 3, 4
YH = [8, 20, 32]
P0, P1, TT, AS, DP, ST = 44, 56, 68, 80, 84, 87
H = [100, 148, 196]; HL = 244
YL = [140, 144, 188]
P0L, P1L, TTL = 192, 236, 240
aNAT, aFR, aSEL, aONE, aOUT = 0, 72, 84, 92, 96
aF, aG = 100, 196


class Track:
    def __init__(self): self.n = 0; self.done = 0
    def issue(self, k=1):
        self.n += k; return self.n
    def after(self, tid): return self.n - tid


class G:
    def __init__(self, opts):
        self.o = opts; self.A = Asm(); self.stamps = []
        self.vm = Track(); self.lg = Track()
    def stamp(self, name):
        if not self.o.prof: return
        if len(self.stamps) >= 22: return
        k = len(self.stamps); self.stamps.append(name)
        self.A(f"  s_memtime s[78:79]\n  s_waitcnt lgkmcnt(0)\n  s_mov_b32 s{80+k}, s78"); self.lg.done = self.lg.n
    def ds(self, text):
        if self.lg.n - self.lg.done >= 15:
            self.A("  s_waitcnt lgkmcnt(13)"); self.lg.done = self.lg.n - 13
        self.A(text); return self.lg.issue()
    def drain(self, vm=False):
        self.A("  s_waitcnt " + ("vmcnt(0) " if vm else "") + "lgkmcnt(0)"); self.lg.done = self.lg.n
    def vmem(self, text):
        self.A(text); return self.vm.issue()
    def wait(self, vm=None, lg=None):
        p = []
        if vm is not None: p.append(f"vmcnt({min(63, self.vm.after(vm))})")
        if lg is not None:
            n = self.lg.after(lg); assert n <= 15, n
            p.append(f"lgkmcnt({n})"); self.lg.done = max(self.lg.done, lg)
        self.A("  s_waitcnt " + " ".join(p))
    def interleave(self, main, fill, per=1, start=0):
        fill = list(fill)
        for k, m in enumerate(main):
            m() if callable(m) else self.A(m)
            if k >= start:
                for _ in range(per):
                    if fill:
                        f = fill.pop(0); f() if callable(f) else self.A(f)
        return fill
    def emit(self, l):
        for f in l: f() if callable(f) else self.A(f)

    def xrow(self, r):
        A = self.A
        A(f"""  s_add_i32 s{sT}, s{sY0}, {r-2}
  s_mul_i32 s{sT+1}, s{sT}, 43008
  s_cmp_lt_u32 s{sT}, 224
  s_cselect_b32 s{sT+1}, s{sT+1}, s{sBIG}
  s_add_u32 m0, s{sXM}, {r*XROW}
  s_mov_b32 exec_hi, s{sXE}""")
        self.xid[r] = self.vmem(f"  buffer_load_dwordx4 v10, {srd(sX)}, s{sT+1} offen lds")
        A("  s_mov_b32 exec_hi, -1")
    def w1row(self, k):
        A = self.A
        A(f"""  s_add_u32 m0, s{sT+10}, {k*W1P}
  s_add_u32 s{sT}, s{sT+11}, {k*768}
  s_mov_b32 exec_hi, 0xffff""")
        self.w1id = self.vmem(f"  buffer_load_dwordx4 v{vLANE16}, {srd(sW1)}, s{sT} offen lds")
        A("  s_mov_b32 exec_hi, -1")
    def job_gb(self):
        A = self.A
        A(f"""  s_cmp_eq_u32 s{sW}, 1
  s_cselect_b32 s72, s14, s12
  s_cselect_b32 s73, s15, s13
  s_mul_i32 s{sT+2}, s{sW}, 768
  s_add_u32 s{sT+2}, s{sT+2}, {GBL}
  s_and_b32 s73, s73, 0xffff
  s_mov_b32 s74, 768
  s_mov_b32 s75, 0x20000
  s_mov_b32 m0, s{sT+2}
  s_cmp_lt_u32 s{sW}, 2
  s_cbranch_scc0 L_nogb
  s_mov_b32 exec_hi, 0xffff
  buffer_load_dwordx4 v{vLANE16}, s[72:75], 0 offen lds
  s_mov_b32 exec_hi, -1
L_nogb:""")
    def job_touch_w2(self):
        A = self.A
        A(f"""  s_lshr_b32 s{sT}, s2, 3
  s_lshl_b32 s{sT}, s{sT}, 2
  s_add_u32 s{sT}, s{sT}, s{sW}
  s_lshl_b32 s{sT}, s{sT}, 10""")
        self.vmem(f"  buffer_load_dwordx4 a[244:247], v{vLANE16}, {srd(sW2)}, s{sT} offen")
    def job_touch_code(self):
        A = self.A
        n = self.o.codekb
        A(f"""  s_getpc_b64 s[{sT+2}:{sT+3}]
L_pcref:
  s_sub_u32 s{sT+2}, s{sT+2}, L_pcref-{KNAME}
  s_subb_u32 s{sT+3}, s{sT+3}, 0
  s_lshr_b32 s{sT}, s2, 3
  s_lshl_b32 s{sT}, s{sT}, 2
  s_add_u32 s{sT}, s{sT}, s{sW}
  s_min_u32 s{sT}, s{sT}, {n-1}
  s_lshl_b32 s{sT}, s{sT}, 10
  v_add_u32 v11, s{sT}, v{vLANE16}
  v_mov_b32 v13, s{sT+3}
  v_add_co_u32 v12, vcc, s{sT+2}, v11
  v_addc_co_u32 v13, vcc, 0, v13, vcc""")
        self.vmem(f"  global_load_dwordx4 a[248:251], v[12:13], off")
    def job_touch_tlb(self):
        A = self.A
        A(f"""  s_mul_i32 s{sT}, s{sY0}, 224
  s_add_u32 s{sT}, s{sT}, s{sX0}
  s_mul_i32 s{sT}, s{sT}, 192
  v_mov_b32 v11, {L1_OFF}""")
        self.vmem(f"  buffer_load_dword a252, v{vLANE16}, {srd(sO)}, s{sT} offen")
        self.vmem(f"  global_load_dword a253, v11, s[20:21] sc1")
    def job(self):
        if self.jobs: self.jobs.pop(0)()

    def setup(self):
        A = self.A; o = self.o
        self.xid = {}
        A("; ==== setup")
        A("  s_cmp_ge_u32 s2, 256\n  s_cbranch_scc1 L_end")
        if o.prof:
            A("  s_memrealtime s[78:79]\n  s_waitcnt lgkmcnt(0)\n  s_mov_b32 s49, s78\n  s_memtime s[78:79]\n  s_waitcnt lgkmcnt(0)\n  s_mov_b32 s80, s78")
            self.stamps.append('start')
        A(f"""
  s_load_dwordx16 s[4:19], s[0:1], 0
  s_load_dwordx2 s[20:21], s[0:1], 64
  v_lshrrev_b32 v5, 6, v0
  v_and_b32 v6, 63, v0
  v_readfirstlane_b32 s{sW}, v5
  v_lshlrev_b32 v{vLANE16}, 4, v6
  v_and_b32 v{vN}, 15, v6
  v_lshrrev_b32 v{vQ}, 4, v6
  s_and_b32 s{sT}, s2, 7
  s_lshr_b32 s{sT+1}, s2, 3
  s_and_b32 s{sT+2}, s{sT}, 3
  s_lshl_b32 s{sT+2}, s{sT+2}, 2
  s_and_b32 s{sT+3}, s{sT+1}, 3
  s_add_u32 s{sT+2}, s{sT+2}, s{sT+3}
  s_mul_i32 s{sX0}, s{sT+2}, 14
  s_lshr_b32 s{sT}, s{sT}, 2
  s_lshl_b32 s{sT}, s{sT}, 3
  s_lshr_b32 s{sT+1}, s{sT+1}, 2
  s_add_u32 s{sT}, s{sT}, s{sT+1}
  s_mul_i32 s{sY0}, s{sT}, 14
  s_mov_b32 s{sBIG}, 0x40000000
  v_mul_u32_u24 v7, 5042, v0
  v_lshrrev_b32 v7, 16, v7
  v_mul_u32_u24 v8, 13, v7
  v_sub_u32 v8, v0, v8
  s_sub_i32 s{sT}, s{sX0}, 2
  v_add_u32 v9, s{sT}, v7
  v_mul_u32_u24 v10, 192, v9
  v_lshl_add_u32 v10, v8, 4, v10
  s_movk_i32 s{sT+1}, 224
  v_cmp_gt_u32 vcc, s{sT+1}, v9
  v_cmp_gt_u32 s[{sT+2}:{sT+3}], 12, v8
  s_movk_i32 s{sT+1}, 234
  v_cmp_gt_u32 s[{sT+4}:{sT+5}], s{sT+1}, v0
  v_mov_b32 v11, s{sBIG}
  v_lshlrev_b32 v12, 4, v0
  v_subrev_u32 v13, 960, v12
  s_and_b64 vcc, vcc, s[{sT+2}:{sT+3}]
  s_and_b64 vcc, vcc, s[{sT+4}:{sT+5}]
  v_cndmask_b32 v10, v11, v10, vcc
  v_cmp_le_u32 vcc, 60, v0
  v_add_u32 v12, 3136, v12
  s_lshl_b32 s{sT+6}, s{sW}, 10
  s_add_u32 s{sXM}, s{sT+6}, {XB}
  v_cndmask_b32 v13, v11, v13, vcc
  s_cmp_eq_u32 s{sW}, 3
  s_cselect_b32 s{sXE}, 0xffff, -1
  s_add_u32 s{sT+6}, s{sT+6}, {DWT}
  s_waitcnt lgkmcnt(0)
""")
        def mksrd(base, ptr, n):
            A(f"""  s_mov_b32 s{base}, s{ptr}
  s_and_b32 s{base+1}, s{ptr+1}, 0xffff
  s_mov_b32 s{base+2}, {n}
  s_mov_b32 s{base+3}, 0x20000""")
        mksrd(sDW, 6, 4800); mksrd(sX, 4, 9633792)
        A(f"  s_mov_b32 m0, s{sT+6}\n  s_add_u32 s{sT+6}, s{sT+6}, 4096")
        self.vmem(f"  buffer_load_dwordx4 v13, {srd(sDW)}, 0 offen lds")
        A(f"  s_mov_b32 m0, s{sT+6}")
        self.vmem(f"  buffer_load_dwordx4 v12, {srd(sDW)}, 0 offen lds")
        A(f"  s_mov_b32 m0, {DWT + 8192}\n  v_add_u32 v12, {8192 - 960}, v{vLANE16}")
        self.dwid = self.vmem(f"  buffer_load_dwordx4 v12, {srd(sDW)}, 0 offen lds")
        for r in range(8): self.xrow(r)
        self.stamp('x0-7')
        self.jobs = [lambda r=r: self.xrow(r) for r in range(8, 18)]
        self.jobs += [lambda k=k: self.w1row(k) for k in range(24)]
        ins = {10 + 3: self.job_touch_w2}
        self.jobs.insert(12, self.job_gb)
        self.jobs.insert(16, self.job_touch_w2)
        if o.codekb: self.jobs.insert(11, self.job_touch_code)
        if o.tlb: self.jobs.insert(20, self.job_touch_tlb)
        A(f"  s_load_dword s{sTAG}, s[20:21], {EPOCH_OFF}")
        mksrd(sW1, 8, 73728); mksrd(sW2, 10, 73728); mksrd(sO, 16, 9633792)
        A(f"""  s_mul_i32 s{sT+10}, s{sW}, {24*W1P}
  s_add_u32 s{sT+10}, s{sT+10}, {W1L}
  s_mul_i32 s{sT+11}, s{sW}, {24*768}
  s_mov_b32 s{sBETA}, {hex(f2u(BETA))}
  s_mov_b32 s{sBETA+1}, {hex(f2u(BETA))}
  s_mov_b32 s{sM0}, 0x11111111
  s_mov_b32 s{sM0+1}, 0x11111111
  s_mov_b32 s{sM1}, 0x22222222
  s_mov_b32 s{sM1+1}, 0x22222222
  s_mov_b32 s{sM2}, 0x44444444
  s_mov_b32 s{sM2+1}, 0x44444444
  s_mov_b32 s{sM3}, 0x88888888
  s_mov_b32 s{sM3+1}, 0x88888888
  s_mov_b32 s{sDIAG}, 0x00f0000f
  s_mov_b32 s{sDIAG+1}, 0xf0000f00
  s_mov_b32 s{sLEFT}, 0x000f000f
  s_mov_b32 s{sLEFT+1}, 0x000f000f
  v_mov_b32 v18, 0x3f803f80""")
        for j in range(4): A(f"  v_accvgpr_write_b32 {a_(aONE+j)}, v18")
        self.job()
        A(f"""  v_and_b32 v14, 1, v{vN}
  v_lshlrev_b32 v14, 4, v14
  v_mov_b32 v15, 0x3f80
  v_lshlrev_b32 v14, v14, v15
  v_lshrrev_b32 v15, 2, v{vN}
  v_cmp_eq_u32 vcc, v15, v{vQ}
  v_bfe_u32 v15, v{vN}, 1, 1
  v_cndmask_b32 v14, 0, v14, vcc
  v_cmp_eq_u32 vcc, 0, v15
  v_mov_b32 v18, 0
  v_cndmask_b32 v16, 0, v14, vcc
  v_cndmask_b32 v17, v14, 0, vcc
  v_accvgpr_write_b32 {a_(aSEL+0)}, v16
  v_accvgpr_write_b32 {a_(aSEL+1)}, v17
  v_accvgpr_write_b32 {a_(aSEL+2)}, v18
  v_accvgpr_write_b32 {a_(aSEL+3)}, v18
  v_accvgpr_write_b32 {a_(aSEL+4)}, v18
  v_accvgpr_write_b32 {a_(aSEL+5)}, v18
  v_accvgpr_write_b32 {a_(aSEL+6)}, v16
  v_accvgpr_write_b32 {a_(aSEL+7)}, v17""")
        self.job()
        self.conv_addr()
        self.job()
        self.ln_addrs()
        self.stamp('precomp')

    cA, cIDX, cBF, cBG0, cBG1, cYW = 44, 92, 93, 94, 95, 96
    cD = [[208, 212, 216], [220, 224, 228]]
    cT = 232
    cAF, cAG, cML, cMH = 240, 241, 242, 243
    vLN = {'L': 97, 0: 98, 1: 99, 2: 5}

    def conv_addr(self):
        A = self.A; t = 100
        A(f"""; conv addresses
  v_lshrrev_b32 v{t}, 3, v{vN}
  v_and_b32 v{t+1}, 7, v{vN}
  v_lshrrev_b32 v{t+2}, 1, v{vQ}
  v_sub_u32 v{t+2}, v{t+2}, v{t}
  v_add_u32 v{t+2}, 1, v{t+2}
  v_mul_u32_u24 v{t+2}, 960, v{t+2}
  v_and_b32 v{t+3}, 1, v{vQ}
  v_mul_u32_u24 v{t+3}, 384, v{t+3}
  v_add_u32 v{t+2}, v{t+2}, v{t+3}
  v_lshl_add_u32 v{t+2}, v{t+1}, 1, v{t+2}
  s_mul_i32 s{sT}, s{sW}, 48
  s_add_u32 s{sT+1}, s{sT}, {DWT}
  v_add_u32 v{self.cAF}, s{sT+1}, v{t+2}
  v_lshlrev_b32 v{t+3}, 1, v{vQ}
  v_sub_u32 v{t+3}, v{t+3}, v{t}
  v_add_u32 v{t+3}, 1, v{t+3}
  v_mul_u32_u24 v{t+3}, 960, v{t+3}
  v_lshl_add_u32 v{t+3}, v{t+1}, 1, v{t+3}
  s_add_u32 s{sT+1}, s{sT+1}, 768
  v_add_u32 v{self.cAG}, s{sT+1}, v{t+3}
  v_cmp_gt_u32 vcc, 4, v{t+1}
  v_and_b32 v{t+4}, 3, v{t+1}
  v_add_u32 v{t+5}, 1, v{t+4}
  v_and_b32 v{t+5}, 3, v{t+5}
  v_lshl_or_b32 v{t+4}, v{t+5}, 2, v{t+4}
  s_movk_i32 s{sT+2}, 0x1111
  v_mul_u32_u24 v{self.cIDX}, s{sT+2}, v{t+4}
  v_cndmask_b32 v{self.cML}, 0, -1, vcc
  v_not_b32 v{self.cMH}, v{self.cML}
  v_add_u32 v{t+6}, v{vN}, v{vQ}
  v_mul_u32_u24 v{t+6}, 208, v{t+6}
  s_add_u32 s{sT+1}, s{sT}, {XB}
  v_add_u32 v{self.cBF}, s{sT+1}, v{t+6}
  v_mul_u32_u24 v{t+6}, 208, v{vN}
  s_add_u32 s{sT+2}, s{sT+1}, {4*208}
  v_add_u32 v{t+8}, s{sT+2}, v{t+6}
  v_mul_u32_u24 v{t+7}, {XROW}, v{vQ}
  v_add_u32 v{self.cBG0}, v{t+8}, v{t+7}
  v_min_u32 v{t+7}, 1, v{vQ}
  v_add_u32 v{t+7}, 4, v{t+7}
  v_mul_u32_u24 v{t+7}, {XROW}, v{t+7}
  v_add_u32 v{self.cBG1}, v{t+8}, v{t+7}
  v_lshrrev_b32 v{t+7}, 1, v{vQ}
  v_mul_u32_u24 v{t+7}, 3328, v{t+7}
  v_add_u32 v{t+6}, v{t+6}, v{t+7}
  v_and_b32 v{t+7}, 1, v{vQ}
  v_lshl_add_u32 v{t+6}, v{t+7}, 3, v{t+6}
  s_add_u32 s{sT+1}, s{sT}, {YB}
  v_add_u32 v{self.cYW}, s{sT+1}, v{t+6}""")

    def ln_addrs(self):
        A = self.A; t = 100
        for slot in ('L', 0, 1, 2):
            d = self.vLN[slot]
            if slot == 'L': A(f"  v_min_u32 v{t}, 3, v{vN}")
            else:
                A(f"  s_lshl_b32 s{sT}, s{sW}, 4\n  s_add_u32 s{sT}, s{sT}, {4 + 64*slot}\n  v_add_u32 v{t}, s{sT}, v{vN}")
            A(f"""  v_mul_u32_u24 v{t+1}, 4682, v{t}
  v_lshrrev_b32 v{t+1}, 16, v{t+1}
  v_mul_u32_u24 v{t+2}, 14, v{t+1}
  v_sub_u32 v{t}, v{t}, v{t+2}
  v_mul_u32_u24 v{d}, 208, v{t}
  v_lshl_add_u32 v{d}, v{vQ}, 4, v{d}
  v_lshrrev_b32 v{t+2}, 1, v{t+1}
  v_mul_u32_u24 v{t+2}, 7680, v{t+2}
  v_add_u32 v{d}, v{d}, v{t+2}
  v_and_b32 v{t+2}, 1, v{t+1}
  v_mul_u32_u24 v{t+2}, 3328, v{t+2}
  v_add_u32 v{d}, v{d}, v{t+2}
  v_add_u32 v{d}, {YB}, v{d}""")
            if slot == 1: self.job()

    def a_build(self):
        A = self.A
        self.drain()
        self.wait(vm=self.dwid)
        A("  s_barrier")
        W = 100
        ids = []
        for gl in range(3):
            for f in range(4):
                for z in range(2):
                    r = W + (gl * 4 + f) * 2 + z
                    if f < 3: ids.append(self.ds(f"  ds_read_u16 v{r}, v{self.cAF} offset:{f*1920 + z*192 + 16*gl}"))
                    else: ids.append(self.ds(f"  ds_read_u16 v{r}, v{self.cAG} offset:{z*960 + 16*gl}"))
            self.job()
            if gl == 0: continue
            self.wait(lg=ids[8*gl - 1]); self.a_and(gl - 1, W)
        self.wait(lg=ids[-1]); self.a_and(2, W)
    def a_and(self, gl, W):
        for f in range(4):
            r = W + (gl * 4 + f) * 2; d = self.cA + (gl * 4 + f) * 4
            self.A(f"""  v_and_b32 v{d}, v{r}, v{self.cML}
  v_and_b32 v{d+1}, v{r}, v{self.cMH}
  v_and_b32 v{d+2}, v{r+1}, v{self.cML}
  v_and_b32 v{d+3}, v{r+1}, v{self.cMH}""")

    def Freg(self, gl, rho): return aF + (((rho // 2) % 4) * 3 + gl) * 8
    def Greg(self, gl, b): return aG + ((b % 2) * 3 + gl) * 8
    def conv_reads(self, b):
        Y = 2 * b; L = []
        def rd(dst, base, off): L.append(lambda: setattr(self, 'lastrd', self.ds(f"  ds_read_b128 {a_(dst,4)}, v{base} offset:{off}")))
        for gl in range(3):
            rhos = [0, 2, 4] if b == 0 else [Y + 4]
            for rho in rhos:
                rd(self.Freg(gl, rho), self.cBF, rho * XROW + 16 * gl)
                rd(self.Freg(gl, rho) + 4, self.cBF, (rho + 1) * XROW + 16 * gl)
            rd(self.Greg(gl, b), self.cBG0, Y * XROW + 16 * gl)
            rd(self.Greg(gl, b) + 4, self.cBG1, Y * XROW + 16 * gl)
        return L
    def conv_zero(self, b): return [f"  v_mov_b64 {v(self.cD[b%2][gl]+2*h,2)}, 0" for gl in range(3) for h in range(2)]
    def conv_mfmas(self, b):
        Y = 2 * b; L = []
        for f in range(4):
            for gl in range(3):
                B = a_(self.Freg(gl, Y + 2*f), 8) if f < 3 else a_(self.Greg(gl, b), 8)
                L.append(f"  v_smfmac_f32_16x16x64_bf16 {v(self.cD[b%2][gl],4)}, {v(self.cA+(gl*4+f)*4,4)}, {B}, v{self.cIDX}")
        return L
    def conv_epi(self, b):
        L = []
        for gl in range(3):
            d = self.cD[b % 2][gl]; t = self.cT + 2 * gl
            L.append(f"  v_cvt_pk_bf16_f32 v{t}, v{d}, v{d+1}")
            L.append(f"  v_cvt_pk_bf16_f32 v{t+1}, v{d+2}, v{d+3}")
            L.append(lambda t=t, gl=gl: self.ds(f"  ds_write_b64 v{self.cYW}, {v(t,2)} offset:{b*7680 + 16*gl}"))
        return L

    def conv_all(self):
        A = self.A
        self.job()
        self.wait(vm=self.xid[5]); A("  s_barrier")
        rd = self.conv_reads(0)
        for k, r in enumerate(rd):
            r()
            if k == 11:
                self.emit(self.conv_zero(0)); self.wait(lg=self.lastrd)
        for b in range(7):
            A(f"; ==== conv block {b}")
            nxt = []
            if b < 6:
                assert 2 * b + 7 in self.xid, b
                self.wait(vm=self.xid[2 * b + 7]); A("  s_barrier")
                nxt = self.conv_reads(b + 1)
            else:
                A("  s_barrier")
            self.wait(lg=self.lg.n)
            mf = self.conv_mfmas(b)
            for k, m in enumerate(mf):
                A(m)
                if nxt: nxt.pop(0)()
                if k % 3 == 1 and not (self.o.nojobs and b >= 1): self.job()
            self.emit(nxt)
            if b < 6: self.emit(self.conv_zero(b + 1))
            else: A("  s_nop 4")
            self.emit(self.conv_epi(b))
            if self.o.blkstamp: self.stamp(f'b{b}')
            if b == 4:
                self.ln_tiles(['L', 0])
                if self.o.blkstamp: self.stamp('lnL0')
        while self.jobs: self.job()
        self.drain(); A("  s_barrier")
        self.stamp('conv')
        self.ln_tiles([1, 2])
    def ln_tiles(self, slots):
        A = self.A
        A(f"; ==== LN tiles {slots}")
        bases = [100, 148]
        R = []
        for k, sl in enumerate(slots):
            b = bases[k]
            R.append(dict(sl=sl, U=b, Dg=b + 24, Ds=b + 28, st=b + 32, raw=(192 if k == 0 else 244),
                          dest=(lambda q, sl=sl: YH[sl] + q) if sl != 'L' else (lambda q: YL[q // 4] + q % 4)))
        last = None
        for r in R:
            for s in range(3): last = self.ds(f"  ds_read_b128 {v(r['raw']+4*s,4)}, v{self.vLN[r['sl']]} offset:{64*s}")
            r['id'] = last
        for r in R:
            self.wait(lg=r['id'])
            raw = r['raw']
            mf = []
            for s in range(3):
                mf.append(f"  v_mfma_f32_16x16x32_bf16 {v(r['Dg'],4)}, {v(raw+4*s,4)}, {v(raw+4*s,4)}, " + ("0" if s == 0 else v(r['Dg'],4)))
                mf.append(f"  v_mfma_f32_16x16x32_bf16 {v(r['Ds'],4)}, {a_(aONE,4)}, {v(raw+4*s,4)}, " + ("0" if s == 0 else v(r['Ds'],4)))
            un = []
            for k in range(12):
                un.append(f"  v_lshlrev_b32 v{r['U']+2*k}, 16, v{raw+k}")
                un.append(f"  v_and_b32 v{r['U']+2*k+1}, 0xffff0000, v{raw+k}")
            left = self.interleave(mf, un, per=2)
            self.emit(left)
        for r in R:
            st, Dg = r['st'], r['Dg']
            A(f"""  v_cndmask_b32 v{st}, v{Dg}, v{Dg+1}, {sp(sM1)}
  v_cndmask_b32 v{st}, v{st}, v{Dg+2}, {sp(sM2)}
  v_cndmask_b32 v{st}, v{st}, v{Dg+3}, {sp(sM3)}
  v_cndmask_b32 v{st}, 0, v{st}, {sp(sDIAG)}
  v_mov_b32 v{st+1}, 1.0
  v_mul_f32 v{st+2}, {hex(f2u(1.0/96))}, v{r['Ds']}""")
        for r in R:
            A(f"  v_mfma_f32_16x16x4_f32 {v(r['Dg'],4)}, v{r['st']+1}, v{r['st']}, 0")
        seqs = []
        for r in R:
            st, Dg = r['st'], r['Dg']
            s_ = [f"  v_mul_f32 v{st+3}, {hex(f2u(1.0/96))}, v{Dg}",
                  f"  v_fma_f32 v{st+3}, -v{st+2}, v{st+2}, v{st+3}",
                  f"  v_max_f32 v{st+3}, 0, v{st+3}",
                  f"  v_add_f32 v{st+3}, {hex(f2u(1e-5))}, v{st+3}",
                  f"  v_rsq_f32 v{st+3}, v{st+3}",
                  f"  v_mul_f32 v{st+4}, {hex(f2u(ALPHA))}, v{st+3}"]
            if r['sl'] == 'L': s_.append(f"  v_cndmask_b32 v{st+4}, 0, v{st+4}, {sp(sLEFT)}")
            s_ += [f"  v_mul_f32 v{st}, v{st+2}, v{st+4}", f"  v_sub_f32 v{st}, 0, v{st}"]
            seqs.append(s_)
        A("  s_nop 7")
        for k in range(max(len(s) for s in seqs)):
            for s_ in seqs:
                if k < len(s_): A(s_[k])
        for r in R:
            U, st = r['U'], r['st']
            for k in range(12): A(f"  v_pk_fma_f32 {v(U+2*k,2)}, {v(U+2*k,2)}, {v(st+4,2)}, {v(st,2)} op_sel_hi:[1,0,0]")
        for r in R:
            for k in range(12): A(f"  v_cvt_pk_bf16_f32 v{r['dest'](k)}, v{r['U']+2*k}, v{r['U']+2*k+1}")

    def prologue(self):
        self.setup()
        self.a_build()
        self.stamp('abuild')
        self.conv_all()
        self.stamp('ln')

    def a_addr(self, seg):
        self.A(f"""  s_add_u32 s{sT}, s{sW}, {seg}
  s_and_b32 s{sT}, s{sT}, 3
  s_mul_i32 s{sT}, s{sT}, 192
  v_add_u32 v{vAADR}, s{sT}, v6""")
    def a_loads(self, i):
        L = []
        for s in range(3):
            for z in range(2):
                L.append(lambda s=s, z=z: setattr(self, 'afr_id', self.ds(f"  ds_read_b64_tr_b16 {a_(aFR+4*s+2*z,2)}, v{vAADR} offset:{s*32*W1P + z*4*W1P + 32*(i%6)}")))
        return L
    def tiles(self, i): return 4 if i < 6 else 3
    def accregs(self, i):
        base = P0 if i % 2 == 0 else P1
        l = [base, base + 4, base + 8]
        if i < 6: l.append(P0L if i % 2 == 0 else P1L)
        return l
    def gemm1_mfmas(self, i):
        acc = self.accregs(i); out = []
        for s in range(3):
            for tl in range(self.tiles(i)):
                B = v(YH[tl] + 4 * s, 4) if tl < 3 else v(YL[s], 4)
                C = "0" if s == 0 else v(acc[tl], 4)
                out.append(f"  v_mfma_f32_16x16x32_bf16 {v(acc[tl],4)}, {a_(aFR+4*s,4)}, {B}, {C}")
        return out
    def dpp_tail(self, i):
        b0, b1, c = DP, DP + 1, DP + 2
        mj = [sM0, sM1, sM2, sM3][i % 4]
        return [f"  v_add_f32_dpp v{b0}, v{AS}, v{AS} row_ror:8 row_mask:0xf bank_mask:0x3",
                f"  v_add_f32_dpp v{b0}, v{AS+1}, v{AS+1} row_ror:8 row_mask:0xf bank_mask:0xc",
                f"  v_add_f32_dpp v{b1}, v{AS+2}, v{AS+2} row_ror:8 row_mask:0xf bank_mask:0x3",
                f"  v_add_f32_dpp v{b1}, v{AS+3}, v{AS+3} row_ror:8 row_mask:0xf bank_mask:0xc",
                f"  v_add_f32_dpp v{c}, v{b0}, v{b0} row_half_mirror row_mask:0xf bank_mask:0x5",
                f"  v_add_f32_dpp v{c}, v{b1}, v{b1} row_half_mirror row_mask:0xf bank_mask:0xa",
                f"  v_add_f32_dpp v{c}, v{c}, v{c} quad_perm:[1,0,3,2] row_mask:0xf bank_mask:0xf",
                f"  v_add_f32_dpp v{c}, v{c}, v{c} quad_perm:[2,3,0,1] row_mask:0xf bank_mask:0xf",
                f"  v_cndmask_b32 v{ST + i//4}, v{ST + i//4}, v{c}, {sp(mj)}"]
    def hdst(self, i, tl, j): return (H[tl] + 2 * i + j) if tl < 3 else (HL + 2 * i + j)
    def gelu_iter(self, i, pend):
        A = self.A
        A(f"; ==== gelu iter {i}")
        nt = self.tiles(i); acc = self.accregs(i)
        T = [TT, TT + 4, TT + 8] + ([TTL] if nt == 4 else [])
        pairs = [(tl, h) for tl in range(nt) for h in range(2)]
        U = lambda tl, h: v(acc[tl] + 2 * h, 2)
        TP = lambda tl, h: v(T[tl] + 2 * h, 2)
        seq = [f"  v_pk_fma_f32 {TP(tl,h)}, {U(tl,h)}, {U(tl,h)}, {sp(sBETA)}" for tl, h in pairs] + \
              [f"  v_pk_mul_f32 {TP(tl,h)}, {TP(tl,h)}, {U(tl,h)}" for tl, h in pairs]
        slots = {0: [0, 1], 1: [2, 3], 3: [4, 5], 6: [6], 9: [7], 11: [8]} if pend else {}
        for k, ins in enumerate(seq):
            A(ins)
            for x in slots.get(k, []): A(pend[x])
        exps = [f"  v_exp_f32 v{T[tl]+j}, v{T[tl]+j}" for tl in range(nt) for j in range(4)]
        if i + 1 < 24:
            mf = self.gemm1_mfmas(i + 1)
            self.wait(lg=self.afr_id)
            e = 0
            for k, m in enumerate(mf):
                A(m)
                if k < len(mf) - 1: A(exps[e]); e += 1
            if i + 2 < 24:
                if (i + 2) % 6 == 0: self.a_addr((i + 2) // 6)
                self.emit(self.a_loads(i + 2))
            while e < len(exps): A(exps[e]); e += 1
        else:
            for x in exps: A(x)
        for tl, h in pairs: A(f"  v_pk_add_f32 {TP(tl,h)}, {TP(tl,h)}, 1.0 op_sel_hi:[1,0]")
        for tl in range(nt):
            for j in range(4): A(f"  v_rcp_f32 v{T[tl]+j}, v{T[tl]+j}")
        for tl, h in pairs: A(f"  v_pk_mul_f32 {TP(tl,h)}, {TP(tl,h)}, {U(tl,h)}")
        for tl in range(nt):
            for h in range(2):
                if tl == 0: A(f"  v_pk_mul_f32 {v(AS+2*h,2)}, {TP(tl,h)}, {TP(tl,h)}")
                else: A(f"  v_pk_fma_f32 {v(AS+2*h,2)}, {TP(tl,h)}, {TP(tl,h)}, {v(AS+2*h,2)}")
        for tl, h in pairs: A(f"  v_cvt_pk_bf16_f32 v{self.hdst(i,tl,h)}, v{T[tl]+2*h}, v{T[tl]+2*h+1}")
        return self.dpp_tail(i)
    def gelu(self):
        A = self.A
        A("; ==== gelu prologue")
        A(f"""  v_lshrrev_b32 v6, 2, v{vN}
  v_lshl_add_u32 v6, v{vQ}, 3, v6
  v_mul_u32_u24 v6, {W1P}, v6
  v_and_b32 v7, 3, v{vN}
  v_lshl_add_u32 v6, v7, 3, v6""")
        self.a_addr(0)
        A("  s_waitcnt vmcnt(0)\n  s_barrier")
        self.emit(self.a_loads(0))
        for k in range(6): A(f"  v_mov_b32 v{ST+k}, 0")
        self.wait(lg=self.afr_id)
        for m in self.gemm1_mfmas(0): A(m)
        self.emit(self.a_loads(1))
        A("  s_nop 3")
        pend = []
        for i in range(24): pend = self.gelu_iter(i, pend)
        A("; ==== gelu tail")
        for l in pend: A(l)

    def publish(self):
        A = self.A
        A("  s_waitcnt vmcnt(0)")
        t = TT
        A(f"""  v_and_b32 v{t}, 3, v{vN}
  s_mul_i32 s{sT}, s{sW}, 6
  v_add_u32 v{t}, s{sT}, v{t}
  v_lshrrev_b32 v{t+1}, 2, v{vN}
  v_and_b32 v{t+2}, 1, v{t+1}
  v_lshrrev_b32 v{t+1}, 1, v{t+1}
  v_lshl_or_b32 v{t+1}, v{t+2}, 1, v{t+1}
  v_lshl_add_u32 v{t+1}, v{vQ}, 2, v{t+1}
  v_lshlrev_b32 v{t+1}, 2, v{t+1}
  s_mul_i32 s{sT}, s{sW}, 1536
  s_add_u32 s{sT}, s{sT}, {PS}
  v_add_u32 v{t+1}, s{sT}, v{t+1}""")
        for k in range(6):
            A(f"""  v_add_u32 v{t+2}, {4*k}, v{t}
  v_subrev_u32 v{t+3}, 24, v{t+2}
  v_min_u32 v{t+2}, v{t+2}, v{t+3}
  v_lshl_add_u32 v{t+4+k}, v{t+2}, 6, v{t+1}""")
        return t
    def publish2(self, t):
        A = self.A
        for k in range(6): self.ds(f"  ds_write_b32 v{t+4+k}, v{ST+k}")
        A(f"""  s_add_u32 s{sTAG}, s{sTAG}, {hex(TAG_STEP)}
  s_cmp_eq_u32 s{sTAG}, 0
  s_cselect_b32 s{sT}, {hex(TAG_STEP)}, 0
  s_add_u32 s{sTAG}, s{sTAG}, s{sT}
  v_lshlrev_b32 v{t}, 2, v0
  v_add_u32 v{t}, {PS}, v{t}
  v_lshlrev_b32 v{t+1}, 12, v0
  s_lshl_b32 s{sT}, s2, 4
  s_add_u32 s{sT}, s{sT}, {L1_OFF}
  v_add_u32 v{t+1}, s{sT}, v{t+1}
  s_waitcnt lgkmcnt(0)
  s_barrier
  s_cmp_ge_u32 s{sW}, 2
  s_cbranch_scc1 L_nopub"""); self.lg.done = self.lg.n
        r = P0
        for w in range(4): A(f"  ds_read2st64_b32 {v(r+2*w,2)}, v{t} offset0:{6*w} offset1:{6*w+2}")
        A(f"  ds_read2st64_b32 {v(r+8,2)}, v{t} offset0:4 offset1:10")
        A(f"  ds_read2st64_b32 {v(r+10,2)}, v{t} offset0:16 offset1:22")
        A(f"""  v_mov_b32 v{t+7}, s{sTAG}
  s_waitcnt lgkmcnt(0)
  v_add_f32 v{t+4}, v{r}, v{r+2}
  v_add_f32 v{t+5}, v{r+1}, v{r+3}
  v_add_f32 v{t+6}, v{r+8}, v{r+9}
  v_add_f32 v{r+4}, v{r+4}, v{r+6}
  v_add_f32 v{r+5}, v{r+5}, v{r+7}
  v_add_f32 v{r+10}, v{r+10}, v{r+11}
  v_add_f32 v{t+4}, v{t+4}, v{r+4}
  v_add_f32 v{t+5}, v{t+5}, v{r+5}
  v_add_f32 v{t+6}, v{t+6}, v{r+10}
  global_store_dwordx4 v{t+1}, {v(t+4,4)}, s[20:21] sc1
L_nopub:""")

    def reducer(self, t, r):
        A = self.A
        A(f"""  s_cmp_lg_u32 s{sW}, 3
  s_cbranch_scc1 L_nored
  s_cmp_ge_u32 s2, 128
  s_cbranch_scc1 L_nored
  s_lshl_b32 s{sT}, s2, 12
  s_add_u32 s{sT}, s{sT}, {L1_OFF}
  v_add_u32 v{t}, s{sT}, v{vLANE16}
  s_mov_b32 s{sT+2}, 0
L_poll1:""")
        for k in range(4): A(f"  global_load_dwordx4 {v(r+4*k,4)}, v{t}, s[20:21] offset:{1024*k} sc1")
        A(f"""  s_add_u32 s{sT+2}, s{sT+2}, 1
  s_waitcnt vmcnt(0)
  v_cmp_eq_u32 vcc, s{sTAG}, v{r+3}
  v_cmp_eq_u32 s[{sT+4}:{sT+5}], s{sTAG}, v{r+7}
  v_cmp_eq_u32 s[{sT+6}:{sT+7}], s{sTAG}, v{r+11}
  v_cmp_eq_u32 s[{sT+8}:{sT+9}], s{sTAG}, v{r+15}
  s_and_b64 vcc, vcc, s[{sT+4}:{sT+5}]
  s_and_b64 s[{sT+6}:{sT+7}], s[{sT+6}:{sT+7}], s[{sT+8}:{sT+9}]
  s_and_b64 vcc, vcc, s[{sT+6}:{sT+7}]
  s_cmp_eq_u64 vcc, exec
  s_cbranch_scc1 L_red_go
  s_cmp_lt_u32 s{sT+2}, {self.o.spin}
  s_cbranch_scc1 L_poll1
L_red_go:""")
        for c in range(3): A(f"  v_add_f32 v{r+c}, v{r+c}, v{r+4+c}\n  v_add_f32 v{r+8+c}, v{r+8+c}, v{r+12+c}")
        for c in range(3): A(f"  v_add_f32 v{r+c}, v{r+c}, v{r+8+c}")
        for d in ("row_shr:1 row_mask:0xf", "row_shr:2 row_mask:0xf", "row_shr:4 row_mask:0xf", "row_shr:8 row_mask:0xf", "row_bcast:15 row_mask:0xa", "row_bcast:31 row_mask:0xc"):
            for c in range(3): A(f"  v_add_f32_dpp v{r+c}, v{r+c}, v{r+c} {d} bank_mask:0xf")
        for c in range(3): A(f"  v_readlane_b32 s{sT+4+c}, v{r+c}, 63")
        A(f"""  s_lshl_b32 s{sT}, s2, 4
  s_add_u32 s{sT}, s{sT}, {FIN_OFF}
  v_lshlrev_b32 v{t}, 11, v{vN}
  v_add_u32 v{t}, s{sT}, v{t}
  v_mov_b32 v{r}, s{sT+4}
  v_mov_b32 v{r+1}, s{sT+5}
  v_mov_b32 v{r+2}, s{sT+6}
  v_mov_b32 v{r+3}, s{sTAG}
  s_mov_b64 exec, {(1<<NREP)-1}
  global_store_dwordx4 v{t}, {v(r,4)}, s[20:21] sc1
  s_mov_b64 exec, -1
L_nored:""")

    XC = 8
    vOUT = 92
    vB2 = 95
    vW2W, vLP, vSPA = 99, 5, 6
    vST, vRD = 4, 7
    def spr(self, tl): return (80 + 4 * tl) if tl < 3 else (244 + 4 * (tl - 3))
    def dw2(self, tl, a, b): return 100 + a * 48 + (b * 6 + tl) * 4
    def xc(self, sl, a, b): return self.XC + (sl * 3 + a) * 8 + 4 * b

    def wait_work_a(self):
        A = self.A
        cp = [f"  v_accvgpr_write_b32 a{k}, v{k}" for k in range(100, 256)]
        A(f"""  s_mul_i32 s{sT+10}, s{sW}, 18432
  s_add_u32 s{sT+11}, s{sT+10}, {W2S}""")
        for j in range(18):
            A(f"  s_add_u32 m0, s{sT+11}, {1024*j}\n  s_add_u32 s{sT}, s{sT+10}, {1024*j}")
            self.w2id = self.vmem(f"  buffer_load_dwordx4 v{vLANE16}, {srd(sW2)}, s{sT} offen lds")
            for _ in range(6): A(cp.pop(0))
        t = 44
        A(f"""  v_lshrrev_b32 v{t}, 6, v{vLANE16}          ; n' = lane>>2
  v_bfe_u32 v{t+1}, v{vLANE16}, 4, 2            ; c' = lane&3
  v_bfe_u32 v{t+2}, v{t}, 1, 2                  ; f(n')
  v_xor_b32 v{t+2}, v{t+2}, v{t+1}              ; sw'
  v_lshlrev_b32 v{self.vRD}, 6, v{t}
  v_lshl_add_u32 v{self.vRD}, v{t+2}, 4, v{self.vRD}
  v_bfe_u32 v{t+3}, v{vN}, 1, 2
  v_xor_b32 v{t+3}, v{t+3}, v{vQ}
  v_lshlrev_b32 v{self.vST}, 6, v{vN}
  v_lshl_add_u32 v{self.vST}, v{t+3}, 4, v{self.vST}
  s_mul_i32 s{sT+8}, s{sW}, 9216""")
        for sl in range(3):
            d = self.vOUT + sl
            A(f"""  s_lshl_b32 s{sT}, s{sW}, 4
  s_add_u32 s{sT}, s{sT}, {4 + 64*sl}
  v_add_u32 v{d}, s{sT}, v{t}
  v_mul_u32_u24 v{t+4}, 4682, v{d}
  v_lshrrev_b32 v{t+4}, 16, v{t+4}
  v_mul_u32_u24 v{t+5}, 14, v{t+4}
  v_sub_u32 v{d}, v{d}, v{t+5}
  v_add_u32 v{t+4}, s{sY0}, v{t+4}
  v_mul_u32_u24 v{t+4}, 224, v{t+4}
  v_add_u32 v{d}, v{d}, v{t+4}
  v_add_u32 v{d}, s{sX0}, v{d}
  v_mul_u32_u24 v{d}, 192, v{d}
  v_lshl_add_u32 v{t+6}, v{t+2}, 4, v{d}
  v_lshl_add_u32 v{d}, v{t+1}, 4, v{d}""")
            for a in range(3):
                A(f"  s_add_u32 m0, s{sT+8}, {RES + (sl*3+a)*1024 - 64*a}")
                if cp: A(cp.pop(0))
                else: A("  s_nop 0")
                self.xrid = self.vmem(f"  buffer_load_dwordx4 v{t+6}, {srd(sX)}, 0 offen offset:{64*a} lds")
                for _ in range(4):
                    if cp: A(cp.pop(0))
        for c in cp: A(c)
    def wait_work_b(self):
        A = self.A
        t = 44
        A(f"""  s_mul_i32 s{sT}, s{sW}, 18432
  s_add_u32 s{sT}, s{sT}, {W2S}
  v_mul_u32_u24 v{t}, 192, v{vN}
  v_lshl_add_u32 v{t}, v{vQ}, 4, v{t}
  v_add_u32 v{t}, s{sT}, v{t}
  s_mul_i32 s{sT}, s{sW}, 192
  s_add_u32 s{sT}, s{sT}, {GBL + 768}
  v_lshlrev_b32 v{t+1}, 3, v{vQ}
  v_add_u32 v{t+1}, s{sT}, v{t+1}""")
        for k in range(4):
            A(f"""  s_add_u32 s{sT}, s{sW}, {k}
  s_and_b32 s{sT}, s{sT}, 3
  s_mul_i32 s{sT}, s{sT}, 3072
  v_add_u32 v{self.vB2+k}, s{sT}, v{vLANE16}""")
        A(f"""  s_mul_i32 s{sT}, s{sW}, 3072
  v_add_u32 v{self.vW2W}, s{sT}, v{vLANE16}
  s_mul_i32 s{sT}, s{sW}, 1536
  s_add_u32 s{sT}, s{sT}, {LP}
  v_mul_u32_u24 v{self.vLP}, 384, v{vN}
  v_lshl_add_u32 v{self.vLP}, v{vQ}, 5, v{self.vLP}
  v_add_u32 v{self.vLP}, s{sT}, v{self.vLP}
  s_mul_i32 s{sT}, s{sW}, 384
  s_add_u32 s{sT}, s{sT}, {SP}
  v_lshlrev_b32 v{self.vSPA}, 4, v{vQ}
  v_add_u32 v{self.vSPA}, s{sT}, v{self.vSPA}""")
        for ul in range(3):
            for z in range(2):
                self.ds(f"  ds_read_b64 {a_(aFR+4*ul+2*z,2)}, v{t+1} offset:{64*ul + 32*z}")
        A(f"  v_lshrrev_b32 v{t+2}, 3, v{vLANE16}\n  v_add_u32 v{t+2}, {GBL}, v{t+2}")
        for z in range(2):
            for c in range(3):
                self.ds(f"  ds_read_u16 v{80 + z*3 + c}, v{t+2} offset:{128*z + 256*c}")
        self.wait(vm=self.w2id)
        ids = {}
        order = [(tl, a) for a in range(3) for tl in range(6)]
        for tl, a in order:
            ids[(tl, a)] = self.ds(f"  ds_read_b128 {a_(aNAT+(tl*3+a)*4,4)}, v{t} offset:{tl*3072 + 64*a}")
            k = order.index((tl, a))
            if k >= 6:
                ptl, pa = order[k - 6]
                self.wait(lg=ids[(ptl, pa)])
                for b in range(2): A(f"  v_mfma_f32_16x16x32_bf16 {v(self.dw2(ptl,pa,b),4)}, {a_(aNAT+(ptl*3+pa)*4,4)}, {a_(aSEL+4*b,4)}, 0")
        for ptl, pa in order[-6:]:
            self.wait(lg=ids[(ptl, pa)])
            for b in range(2): A(f"  v_mfma_f32_16x16x32_bf16 {v(self.dw2(ptl,pa,b),4)}, {a_(aNAT+(ptl*3+pa)*4,4)}, {a_(aSEL+4*b,4)}, 0")
        Q = [244, 248]
        jobs = [(t_, ul) for ul in range(3) for t_ in range(6)]
        for k, (t_, ul) in enumerate(jobs):
            a, b = t_ // 2, t_ % 2
            q = Q[k % 2]
            d0, d1 = self.dw2(2*ul, a, b), self.dw2(2*ul+1, a, b)
            A(f"""  v_cvt_pk_bf16_f32 v{q}, v{d0}, v{d0+1}
  v_cvt_pk_bf16_f32 v{q+1}, v{d0+2}, v{d0+3}
  v_cvt_pk_bf16_f32 v{q+2}, v{d1}, v{d1+1}
  v_cvt_pk_bf16_f32 v{q+3}, v{d1+2}, v{d1+3}""")
            if k > 0:
                pt, pul = jobs[k-1]; pq = Q[(k-1) % 2]; c = self.xc(0, pt // 2, pt % 2)
                A(f"  v_mfma_f32_16x16x32_bf16 {v(c,4)}, {v(pq,4)}, {a_(aFR+4*pul,4)}, " + ("0" if pul == 0 else v(c,4)))
        pt, pul = jobs[-1]; c = self.xc(0, pt // 2, pt % 2)
        A(f"  s_nop 1\n  v_mfma_f32_16x16x32_bf16 {v(c,4)}, {v(Q[(len(jobs)-1)%2],4)}, {a_(aFR+4*pul,4)}, {v(c,4)}")
        A(f"""  s_mul_i32 s{sT}, s{sW}, 384
  s_add_u32 s{sT}, s{sT}, {CP}
  v_lshlrev_b32 v252, 5, v{vQ}
  v_add_u32 v253, {CP}, v252
  v_add_u32 v252, s{sT}, v252
  s_mov_b32 exec_lo, 0x00010001
  s_mov_b32 exec_hi, 0x00010001
  s_nop 4""")
        for t_ in range(6):
            a, b = t_ // 2, t_ % 2
            self.ds(f"  ds_write_b128 v252, {v(self.xc(0,a,b),4)} offset:{128*a + 16*b}")
        A("  s_mov_b64 exec, -1"); self.drain(); A("  s_barrier")
        for half in range(2):
            ts = [3*half + j for j in range(3)]
            ids = []
            for j, t_ in enumerate(ts):
                a, b = t_ // 2, t_ % 2
                for w in range(4):
                    dst = self.xc(0, a, b) if w == 0 else 32 + (j * 3 + (w - 1)) * 4
                    ids.append(self.ds(f"  ds_read_b128 {v(dst,4)}, v253 offset:{w*384 + 128*a + 16*b}"))
            for j, t_ in enumerate(ts):
                a, b = t_ // 2, t_ % 2
                self.wait(lg=ids[4*j+3])
                c = self.xc(0, a, b); o = 32 + j * 12
                for r in range(4):
                    A(f"  v_add_f32 v{c+r}, v{c+r}, v{o+r}\n  v_add_f32 v{o+4+r}, v{o+4+r}, v{o+8+r}")
                for r in range(4): A(f"  v_add_f32 v{c+r}, v{c+r}, v{o+4+r}")
        A(f"""  s_cmp_lg_u32 s{sW}, 0
  s_cbranch_scc1 L_nocv
  v_add_u32 v253, {CV - CP}, v253
  s_mov_b32 exec_lo, 0x00010001
  s_mov_b32 exec_hi, 0x00010001""")
        for t_ in range(6):
            a, b = t_ // 2, t_ % 2
            A(f"  ds_write_b128 v253, {v(self.xc(0,a,b),4)} offset:{128*a + 16*b}")
        A("  s_mov_b64 exec, -1\n  s_waitcnt lgkmcnt(0)\nL_nocv:"); self.lg.done = self.lg.n
        A(f"""  s_mul_i32 s{sT}, s{sW}, 9216
  s_add_u32 s{sT}, s{sT}, {RES}
  v_add_u32 v88, s{sT}, v{self.vST}
  s_waitcnt vmcnt(0)""")
        X = [244, 232 + 0]
        for sl in (1, 2, 0):
            ids = [self.ds(f"  ds_read_b128 {v(244+4*a,4)}, v88 offset:{(sl*3+a)*1024}") for a in range(3)]
            for a in range(3):
                self.wait(lg=ids[a])
                for j in range(4):
                    b, r = j // 2, (j % 2) * 2
                    c = self.xc(0, a, b) + r; d = self.xc(sl, a, b) + r; x = 244 + 4*a + j
                    A(f"""  v_lshlrev_b32 v90, 16, v{x}
  v_and_b32 v91, 0xffff0000, v{x}
  v_add_f32 v{d}, v{c}, v90
  v_add_f32 v{d+1}, v{c+1}, v91""")
        A(f"""  s_lshl_b32 s{sT}, s{sW}, 11
  s_add_u32 s{sT}, s{sT}, {OUTS}
  v_add_u32 v{self.vST}, s{sT}, v{self.vST}
  v_add_u32 v{self.vRD}, s{sT}, v{self.vRD}""")
    def final_poll(self):
        A = self.A
        r = 244; t = 86
        A(f"""  s_cmp_lg_u32 s{sW}, 0
  s_cbranch_scc1 L_nofin
  s_and_b32 s{sT}, s2, {NREP-1}
  s_lshl_b32 s{sT}, s{sT}, 11
  s_add_u32 s{sT}, s{sT}, {FIN_OFF}
  v_add_u32 v{t}, s{sT}, v{vLANE16}
  s_mov_b32 s{sT+2}, 0""")
        for k in range(6): A(f"  v_lshlrev_b32 v{80+k}, 16, v{80+k}")
        A(f"""  s_mov_b32 s{sT+10}, {hex(f2u(1.0/(ALPHA*ALPHA)))}
  v_mov_b32 v{t+1}, {hex(f2u(1e-6))}
  v_mov_b32 v{t+4}, {hex(f2u(1.0/384))}
  v_mov_b32 v{t+3}, {hex(f2u(1.0/ALPHA))}
  v_lshrrev_b32 v{t+5}, 2, v{vLANE16}
  v_add_u32 v{t+5}, {SP}, v{t+5}
L_poll2:
  global_load_dwordx4 {v(r,4)}, v{t}, s[20:21] sc1
  global_load_dwordx4 {v(r+4,4)}, v{t}, s[20:21] offset:1024 sc1
  s_add_u32 s{sT+2}, s{sT+2}, 1
  s_waitcnt vmcnt(0)
  v_cmp_eq_u32 vcc, s{sTAG}, v{r+3}
  v_cmp_eq_u32 s[{sT+4}:{sT+5}], s{sTAG}, v{r+7}
  s_and_b64 vcc, vcc, s[{sT+4}:{sT+5}]
  s_cmp_eq_u64 vcc, exec
  s_cbranch_scc1 L_fin_go
  s_cmp_lt_u32 s{sT+2}, {self.o.spin}
  s_cbranch_scc1 L_poll2
L_fin_go:""")
        vals = [r, r+1, r+2, r+4, r+5, r+6]
        for x in vals: A(f"  v_fma_f32 v{x}, v{x}, s{sT+10}, v{t+1}")
        for x in vals: A(f"  v_sqrt_f32 v{x}, v{x}")
        A(f"""  v_add_f32 v{t+2}, v{r}, v{r+1}
  v_add_f32 v{r+3}, v{r+2}, v{r+4}
  v_add_f32 v{r+7}, v{r+5}, v{r+6}
  v_add_f32 v{t+2}, v{t+2}, v{r+3}
  v_add_f32 v{t+2}, v{t+2}, v{r+7}""")
        gm = [f"  v_mul_f32 v{80+k}, v{80+k}, v{x}" for k, x in enumerate(vals)]
        for k, d in enumerate(("row_shr:1 row_mask:0xf", "row_shr:2 row_mask:0xf", "row_shr:4 row_mask:0xf", "row_shr:8 row_mask:0xf", "row_bcast:15 row_mask:0xa", "row_bcast:31 row_mask:0xc")):
            A(gm[k])
            A(f"  v_add_f32_dpp v{t+2}, v{t+2}, v{t+2} {d} bank_mask:0xf")
        A(f"""  v_readlane_b32 s{sT+4}, v{t+2}, 63
  v_fma_f32 v{t+2}, s{sT+4}, v{t+4}, v{t+1}
  v_rcp_f32 v{t+2}, v{t+2}
  s_nop 0
  v_mul_f32 v{t+2}, v{t+2}, v{t+3}""")
        for k in range(6): A(f"  v_fma_f32 v{80+k}, v{80+k}, v{t+2}, v{t+3}")
        for z in range(2):
            for c in range(3): A(f"  ds_write_b32 v{t+5}, v{80+3*z+c} offset:{256*z + 512*c}")
        A(f"""  s_cmp_lg_u32 s2, 0
  s_cbranch_scc1 L_noepoch
  v_mov_b32 v{t}, {EPOCH_OFF}
  v_mov_b32 v{t+1}, s{sTAG}
  s_mov_b64 exec, 1
  global_store_dword v{t}, v{t+1}, s[20:21] sc1
  s_mov_b64 exec, -1
L_noepoch:
L_nofin:
  s_waitcnt lgkmcnt(0)
  s_barrier"""); self.lg.done = self.lg.n

    def prep_round(self, a, pk):
        L = []
        for b in range(2):
            for ul in range(3):
                for z in range(2):
                    d = self.dw2(2*ul+z, a, b); s_ = self.spr(2*ul+z)
                    if pk:
                        L.append(f"  v_pk_mul_f32 {v(d,2)}, {v(d,2)}, {v(s_,2)}")
                        L.append(f"  v_pk_mul_f32 {v(d+2,2)}, {v(d+2,2)}, {v(s_+2,2)}")
                    else:
                        for j in range(4): L.append(f"  v_mul_f32 v{d+j}, v{d+j}, v{s_+j}")
        for b in range(2):
            for ul in range(3):
                d0 = self.dw2(2*ul, a, b); d1 = self.dw2(2*ul+1, a, b)
                L.append(f"  v_cvt_pk_bf16_f32 v{d0}, v{d0}, v{d0+1}")
                L.append(f"  v_cvt_pk_bf16_f32 v{d0+1}, v{d0+2}, v{d0+3}")
                L.append(f"  v_cvt_pk_bf16_f32 v{d0+2}, v{d1}, v{d1+1}")
                L.append(f"  v_cvt_pk_bf16_f32 v{d0+3}, v{d1+2}, v{d1+3}")
                L.append(lambda d0=d0, b=b, ul=ul: setattr(self, 'prep_id', self.ds(f"  ds_write_b128 v{self.vW2W}, {v(d0,4)} offset:{(2*a+b)*12288 + ul*1024}")))
        return L

    def w2_prep0(self):
        A = self.A
        ids = [self.ds(f"  ds_read_b128 {v(self.spr(tl),4)}, v{self.vSPA} offset:{64*tl}") for tl in range(6)]
        self.wait(lg=ids[-1])
        self.emit(self.prep_round(0, True))
        self.drain(); A("  s_barrier")

    def gemm2(self):
        A = self.A
        A("; ==== gemm2")
        ACC = [100, 148, 100]; ACL = [140, 172, 140]; RING = 124; NR = 4; TQ = 180; RQ = [184, 188]
        steps = [(a, u, b) for a in range(3) for u in range(12) for b in range(2)]
        rid = {}
        def rd(k):
            a, u, b = steps[k]
            rid[k] = self.ds(f"  ds_read_b128 {v(RING+4*(k%NR),4)}, v{self.vB2+u//3} offset:{(2*a+b)*12288 + (u%3)*1024}")
        def epilogue(a):
            L = []
            st = {}
            for sl in range(3):
                acc = ACC[a] + sl * 8; rq = RQ[sl % 2]
                for j in range(4): L.append(f"  v_cvt_pk_bf16_f32 v{TQ+j}, v{acc+2*j}, v{acc+2*j+1}")
                L.append(lambda: self.ds(f"  ds_write_b128 v{self.vST}, {v(TQ,4)}"))
                L.append(lambda sl=sl, rq=rq: st.__setitem__(sl, self.ds(f"  ds_read_b128 {v(rq,4)}, v{self.vRD}")))
                if sl > 0: L.append(lambda sl=sl: self.out_store(a, sl - 1, RQ[(sl - 1) % 2], st[sl - 1]))
            L.append(None)
            L.append(lambda: self.out_store(a, 2, RQ[0], st[2]))
            return L
        def leftover_write(a):
            l = ACL[a]
            def go():
                A("  s_mov_b32 exec_lo, 0x000f000f\n  s_mov_b32 exec_hi, 0x000f000f")
                self.ds(f"  ds_write_b128 v{self.vLP}, {v(l,4)} offset:{128*a}")
                self.lw_id = self.ds(f"  ds_write_b128 v{self.vLP}, {v(l+4,4)} offset:{128*a+16}")
                A("  s_mov_b64 exec, -1")
            return [go]
        def pop(fill):
            if fill:
                f = fill.pop(0)
                if f is None: return
                f() if callable(f) else A(f)
        p1 = self.prep_round(1, False); p2 = self.prep_round(2, False)
        fill = list(p1)
        need_bar = {0: False, 1: False}
        for k in range(NR - 1): rd(k)
        for k, (a, u, b) in enumerate(steps):
            if u == 0 and b == 0:
                A(f"; ---- gemm2 round {a}")
                if self.o.g2stamp and a > 0: self.stamp(f'g2r{a-1}')
                if a == 1: fill = fill + epilogue(0)
                if a == 2: fill = fill + epilogue(1)
            nk = k + NR - 1
            self.wait(lg=rid[k])
            fr = v(RING + 4*(k % NR), 4)
            nfill = 0
            for sl in range(3):
                d = ACC[a] + sl*8 + 4*b
                C = v(self.xc(sl, a, b), 4) if u == 0 else v(d, 4)
                A(f"  v_mfma_f32_16x16x32_bf16 {v(d,4)}, {fr}, {a_(H[sl]+4*u,4)}, {C}")
                if sl == 0 and nk < len(steps):
                    na = steps[nk][0]
                    if na != a and not need_bar.get(a, True):
                        raise RuntimeError("next round fragments not published yet")
                    rd(nk)
                    if not (u == 0 and b == 0): pop(fill)
                elif not (u == 0 and b == 0):
                    pop(fill)
                    if sl == 1: pop(fill)
            if u < 3:
                d = ACL[a] + 4*b
                A(f"  v_mfma_f32_16x16x32_bf16 {v(d,4)}, {fr}, {a_(HL+4*u,4)}, " + ("0" if u == 0 else v(d,4)))
                if not (u == 0 and b == 0): pop(fill); pop(fill)
            if u == 4 and b == 1: fill = leftover_write(a) + fill
            if a == 0 and u == 9 and b == 1:
                while len(fill) > 0: pop(fill)
                self.wait(lg=self.prep_id); A("  s_barrier"); need_bar[0] = True
                fill = list(p2[:40]); p2 = p2[40:]
            if a == 1 and u == 1 and b == 1: fill = fill + p2; p2 = []
            if a == 1 and u == 9 and b == 1:
                while len(fill) > 0: pop(fill)
                self.wait(lg=max(self.prep_id, self.lw_id)); A("  s_barrier"); need_bar[1] = True
            if a == 2 and u == 6 and b == 1:
                while len(fill) > 0: pop(fill)
                self.wait(lg=self.lw_id); A("  s_barrier")
                fill = self.leftover_combine()
        while fill: pop(fill)
        if self.o.g2stamp: self.stamp('g2r2')
        A("  s_nop 4")
        ep = epilogue(2)
        while ep: pop(ep)

    def out_store(self, a, sl, rq, lid):
        self.wait(lg=lid)
        self.vmem(f"  buffer_store_dwordx4 {v(rq,4)}, v{self.vOUT+sl}, {srd(sO)}, 0 offen offset:{64*a}{self.o.stmod}")

    def leftover_combine(self):
        A = self.A
        L = []
        st = {}
        L += [f"  v_lshrrev_b32 v200, 4, v{vLANE16}",
              f"  s_mul_i32 s{sT}, s{sW}, 384", f"  s_add_u32 s{sT}, s{sT}, {LP}",
              f"  v_min_u32 v200, 11, v200",
              f"  v_lshlrev_b32 v201, 5, v200", f"  v_add_u32 v202, {CV}, v201", f"  v_add_u32 v201, s{sT}, v201",
              f"  s_mul_i32 s{sT}, s{sY0}, 224", f"  s_add_u32 s{sT}, s{sT}, s{sX0}", f"  s_add_u32 s{sT}, s{sT}, s{sW}", f"  s_mul_i32 s{sT}, s{sT}, 192",
              f"  v_lshlrev_b32 v203, 4, v200", f"  v_add_u32 v203, s{sT}, v203"]
        L.append(lambda: st.__setitem__('x', self.vmem(f"  buffer_load_dwordx4 v[204:207], v203, {srd(sX)}, 0 offen")))
        for w in range(4):
            L.append(lambda w=w: self.ds(f"  ds_read_b128 {v(208+8*w,4)}, v201 offset:{w*1536}"))
            L.append(lambda w=w: self.ds(f"  ds_read_b128 {v(212+8*w,4)}, v201 offset:{w*1536+16}"))
        L.append(lambda: self.ds("  ds_read_b128 v[240:243], v202"))
        L.append(lambda: st.__setitem__('l', self.ds("  ds_read_b128 v[244:247], v202 offset:16")))
        L += [None] * 6
        L.append(lambda: self.wait(lg=st['l']))
        for j in range(8):
            L += [f"  v_add_f32 v{208+j}, v{208+j}, v{216+j}", f"  v_add_f32 v{224+j}, v{224+j}, v{232+j}",
                  f"  v_add_f32 v{208+j}, v{208+j}, v{240+j}", f"  v_add_f32 v{208+j}, v{208+j}, v{224+j}"]
        L.append(lambda: self.wait(vm=st['x']))
        for j in range(4):
            L += [f"  v_lshlrev_b32 v216, 16, v{204+j}", f"  v_and_b32 v217, 0xffff0000, v{204+j}",
                  f"  v_add_f32 v{208+2*j}, v{208+2*j}, v216", f"  v_add_f32 v{209+2*j}, v{209+2*j}, v217",
                  f"  v_cvt_pk_bf16_f32 v{220+j}, v{208+2*j}, v{209+2*j}"]
        def store():
            A("  s_mov_b64 exec, 0xfff")
            self.vmem(f"  buffer_store_dwordx4 v[220:223], v203, {srd(sO)}, 0 offen{self.o.stmod}")
            A("  s_mov_b64 exec, -1")
        L.append(store)
        return L

    def stamp_dump(self):
        if not self.o.prof: return
        A = self.A
        A(f"""  s_mov_b64 exec, -1
  s_memrealtime s[78:79]
  s_lshl_b32 s{sT}, s2, 2
  s_add_u32 s{sT}, s{sT}, s{sW}
  s_lshl_b32 s{sT}, s{sT}, 7
  s_add_u32 s{sT}, s{sT}, {DBG_OFF}
  v_mov_b32 v5, s{sT}
  s_waitcnt lgkmcnt(0)
  s_mov_b64 exec, 1""")
        for k in range(len(self.stamps)):
            A(f"  v_mov_b32 v6, s{80+k}\n  global_store_dword v5, v6, s[20:21] offset:{4*k}")
        A(f"  v_mov_b32 v6, s78\n  global_store_dword v5, v6, s[20:21] offset:{4*30}")
        A(f"  v_mov_b32 v6, s49\n  global_store_dword v5, v6, s[20:21] offset:{4*31}")
        if self.o.dbgstamp:
            A(f"  s_cmp_lg_u32 s2, 100\n  s_cbranch_scc1 L_nodbg\n  s_cmp_lg_u32 s{sW}, 0\n  s_cbranch_scc1 L_nodbg\n  v_mov_b32 v7, 0")
            for j in range(min(16, len(self.stamps) - 1)):
                A(f"  s_sub_u32 s78, s{81+j}, s80\n  v_mov_b32 v6, s78\n  global_store_dword v7, v6, s[18:19] offset:{4*j}")
            A("L_nodbg:")
    def dump_regs(self, label, regs, wsoff):
        A = self.A
        n = len(regs)
        A(f"""  s_waitcnt vmcnt(0) lgkmcnt(0)
  v_lshlrev_b32 v6, 2, v0
  s_mul_i32 s{sT}, s2, {n*1024}
  s_add_u32 s{sT}, s{sT}, {wsoff}
  v_add_u32 v6, s{sT}, v6""")
        for k, r in enumerate(regs):
            A(f"  global_store_dword v6, v{r}, s[20:21]\n  v_add_u32 v6, 1024, v6")
            if k % 32 == 31: A("  s_waitcnt vmcnt(0)")
        A("  s_waitcnt vmcnt(0)")

    def build(self):
        o = self.o; A = self.A
        self.prologue()
        if o.stop == 'ln':
            self.dump_regs('yhat', list(range(YH[0], YH[0]+36)) + [YL[0]+k for k in range(4)] + [YL[1]+k for k in range(4)] + [YL[2]+k for k in range(4)], DBG_OFF)
            A("  s_branch L_end")
        self.gelu()
        t = self.publish()
        self.stamp('gelu')
        if o.stop == 'gelu':
            self.dump_regs('h', list(range(100, 256)) + list(range(ST, ST+6)), DBG_OFF)
            A("  s_branch L_end")
        self.publish2(t)
        self.stamp('pub')
        self.wait_work_a()
        self.stamp('wwa')
        self.reducer(52, 100)
        self.stamp('red')
        self.wait_work_b()
        self.stamp('wwb')
        self.final_poll()
        self.stamp('fin')
        self.w2_prep0()
        self.stamp('prep')
        self.gemm2()
        self.stamp('gemm2')
        self.stamp_dump()
        A("L_end:\n  s_endpgm")
        body = A.finalize(verbose=not o.quiet, align=o.align)
        hdr = f"""; Fused block: 5x5 depthwise conv + LayerNorm + GEMM(96->384) + GELU + GRN + GEMM(384->96) + residual.
; @launch grid=(256,1,1) block=(256,1,1) lds={LDS_BYTES}
.amdgcn_target "amdgcn-amd-amdhsa--gfx950"
.text
.globl {KNAME}
.p2align 8
.type {KNAME},@function
{KNAME}:
"""
        tail = f""".section .rodata,"a"
.p2align 6
.amdhsa_kernel {KNAME}
  .amdhsa_next_free_vgpr 512
  .amdhsa_next_free_sgpr 102
  .amdhsa_accum_offset 256
  .amdhsa_group_segment_fixed_size 0
  .amdhsa_kernarg_size 72
  .amdhsa_user_sgpr_count 2
  .amdhsa_user_sgpr_kernarg_segment_ptr 1
  .amdhsa_system_sgpr_workgroup_id_x 1
  .amdhsa_float_denorm_mode_32 3
.end_amdhsa_kernel
"""
        if o.names: open(o.names, 'w').write(",".join(self.stamps))
        return hdr + body + tail

if __name__ == '__main__':
    ap = argparse.ArgumentParser()
    ap.add_argument('-o', default='out.s')
    ap.add_argument('--stop', default='')
    ap.add_argument('--spin', type=int, default=200000)
    ap.add_argument('--quiet', action='store_true')
    ap.add_argument('--prof', action='store_true')
    ap.add_argument('--dbgstamp', action='store_true')
    ap.add_argument('--align', action='store_true')
    ap.add_argument('--lnsplit', action='store_true')
    ap.add_argument('--stmod', default='')
    ap.add_argument('--names', default='')
    ap.add_argument('--tlb', action='store_true')
    ap.add_argument('--g2stamp', action='store_true')
    ap.add_argument('--blkstamp', action='store_true')
    ap.add_argument('--nojobs', action='store_true')
    ap.add_argument('--codekb', type=int, default=0)
    o = ap.parse_args()
    if o.stmod: o.stmod = ' ' + o.stmod
    g = G(o)
    open(o.o, 'w').write(g.build())
    print("wrote", o.o)
```

```python
import re

def expand(tok):
    tok = tok.strip()
    m = re.fullmatch(r'([vas])\[(\d+):(\d+)\]', tok)
    if m:
        return [f"{m.group(1)}{i}" for i in range(int(m.group(2)), int(m.group(3)) + 1)]
    m = re.fullmatch(r'([vas])(\d+)', tok)
    if m:
        return [tok]
    if tok in ('vcc', 'vcc_lo', 'vcc_hi'): return ['vcc']
    if tok in ('exec', 'exec_lo', 'exec_hi'): return ['exec']
    if tok == 'm0': return ['m0']
    if tok.startswith('-') or tok.startswith('abs(') or tok.startswith('|'):
        inner = tok.lstrip('-').replace('abs(', '').replace(')', '').replace('|', '')
        if re.fullmatch(r'[vas]\d+|[vas]\[\d+:\d+\]', inner): return expand(inner)
    return []

TRANS = ('v_exp_f32', 'v_rcp_f32', 'v_rsq_f32', 'v_sqrt_f32', 'v_log_f32', 'v_rcp_iflag_f32')

class Ins:
    def __init__(self, text):
        self.text = text
        t = text.split(';')[0].split('//')[0].strip()
        self.label = t.endswith(':')
        self.kind = 'other'; self.w = []; self.r = []; self.op = ''
        if self.label or not t or t.startswith('.'):
            self.kind = 'meta'; return
        parts = t.split(None, 1)
        op = parts[0]; self.op = op
        rest = parts[1] if len(parts) > 1 else ''
        ops = []; depth = 0; cur = ''
        for ch in rest:
            if ch == '[': depth += 1
            if ch == ']': depth -= 1
            if ch == ',' and depth == 0: ops.append(cur.strip()); cur = ''
            else: cur += ch
        if cur.strip(): ops.append(cur.strip())
        if ops:
            last = ops[-1].split()
            ops[-1] = last[0]; self.mods = ' '.join(last[1:])
        else: self.mods = ''
        self.ops = ops
        E = lambda i: expand(ops[i]) if i < len(ops) else []
        allr = lambda a: sum((E(i) for i in range(a, len(ops))), [])
        if op.startswith('v_mfma'):
            self.kind = 'mfma'; self.w = E(0); self.rA = E(1); self.rB = E(2); self.rC = E(3); self.r = self.rA + self.rB + self.rC
            self.passes = 8 if ('16x16x4_f32' in op or '32x32x16' in op) else 4
            self.sgemm = '16x16x4_f32' in op
        elif op.startswith('v_smfmac'):
            self.kind = 'mfma'; self.w = E(0); self.rA = E(1); self.rB = E(2) + E(3); self.rC = E(0); self.r = self.rA + self.rB + self.rC
            self.passes = 4; self.sgemm = False
        elif op.startswith('v_cmp'):
            self.kind = 'valu'; self.w = E(0); self.r = allr(1)
        elif op in ('v_readfirstlane_b32', 'v_readlane_b32'):
            self.kind = 'valu'; self.w = E(0); self.r = allr(1); self.lane_read = True
        elif op.startswith('v_permlane'):
            self.kind = 'valu'; self.w = E(0) + E(1); self.r = E(0) + E(1); self.perm = True
        elif op.startswith('v_'):
            self.kind = 'valu'; self.w = E(0); self.r = allr(1)
            if op.startswith(('v_fmac', 'v_dot2c', 'v_writelane')): self.r += E(0)
            if op.startswith('v_cndmask') and len(ops) == 3: self.r += ['vcc']
            if op in ('v_add_co_u32', 'v_sub_co_u32', 'v_addc_co_u32'): self.w = E(0) + E(1); self.r = allr(2)
            if 'dpp' in op or 'row_' in self.mods or 'quad_perm' in self.mods:
                self.dpp = True; self.dppsrc = E(1); self.r += E(0)
        elif op.startswith('ds_read') or op.startswith('ds_bpermute') or op.startswith('ds_swizzle'):
            self.kind = 'ds'; self.w = E(0); self.r = allr(1); self.ld = True
        elif op.startswith('ds_'):
            self.kind = 'ds'; self.r = allr(0); self.ld = False
        elif op.startswith(('buffer_load', 'global_load')):
            self.kind = 'vmem'; self.ld = True
            if ' lds' in (' ' + self.mods) : self.w = []; self.r = allr(0); self.ldslds = True
            else: self.w = E(0); self.r = allr(1)
        elif op.startswith(('buffer_store', 'global_store', 'buffer_atomic', 'global_atomic')):
            self.kind = 'vmem'; self.ld = False; self.r = allr(0)
            self.wide = ('x4' in op or 'x3' in op)
        elif op.startswith('s_load') or op.startswith('s_memtime') or op.startswith('s_memrealtime'):
            self.kind = 'smem'; self.w = E(0); self.r = allr(1)
        elif op == 's_waitcnt' or op == 's_barrier' or op == 's_nop' or op == 's_sleep' or op == 's_endpgm' or op == 's_setprio':
            self.kind = 'ctl'
        elif op.startswith(('s_cbranch', 's_branch')):
            self.kind = 'br'
        elif op.startswith('s_cmp') or op.startswith('s_bitcmp'):
            self.kind = 'salu'; self.r = allr(0)
        elif op.startswith('s_'):
            self.kind = 'salu'; self.w = E(0); self.r = allr(1)
            if 'saveexec' in op: self.w += ['exec']
    def states(self):
        if self.kind == 'meta': return 0
        if self.op == 's_nop': return int(self.ops[0]) + 1
        return 1

import subprocess, tempfile, os
def instr_sizes(lines):
    src = "\n".join(lines) + "\n"
    with tempfile.NamedTemporaryFile('w', suffix='.s', delete=False) as f:
        f.write(src); name = f.name
    r = subprocess.run(["llvm-mc", "-triple=amdgcn-amd-amdhsa", "-mcpu=gfx950", "-show-encoding", name], capture_output=True, text=True)
    os.unlink(name)
    if r.returncode != 0: raise RuntimeError(r.stderr[:3000])
    enc = [l for l in r.stdout.split("\n") if 'encoding:' in l]
    sizes = []; k = 0
    for l in lines:
        ins = Ins('  ' + l.strip())
        if ins.kind == 'meta': sizes.append(0); continue
        e = enc[k]; k += 1
        sizes.append(e.split('encoding:')[1].count(',') + 1)
    assert k == len(enc), (k, len(enc))
    return sizes
NO_E64 = ('v_readfirstlane_b32', 'v_readlane_b32', 'v_accvgpr', 'v_permlane', 'v_nop', 'v_fmac', 'v_madak', 'v_madmk', 'v_fmaak', 'v_fmamk', 'v_swap')
def widenable(text, size):
    t = text.strip()
    if size != 4 or not t.startswith('v_'): return False
    op = t.split()[0]
    if op.endswith('_e64') or op.endswith('_e32') or op.startswith(NO_E64): return False
    return True
def align8(lines, hot=None):
    sizes = instr_sizes(lines)
    out = []; off = 0; run = []
    nw = nn = 0
    n = len(lines)
    pad_ok = True
    for i, (l, sz) in enumerate(zip(lines, sizes)):
        if l.strip() == '; @nopad': pad_ok = False
        if l.strip() == '; @pad': pad_ok = True
        if l.strip() == '; @align64':
            while off % 64:
                out.append(("  s_nop 0", 4)); off += 4
            run = []
            continue
        if sz == 8 and off % 8 == 4:
            cand = [j for j in run if widenable(out[j][0], out[j][1])]
            if cand:
                j = cand[-1]; t = out[j][0]; op = t.strip().split()[0]
                out[j] = (t.replace(op, op + '_e64', 1), 8); off += 4; nw += 1
            else:
                k = i; c = 0
                while k < n and (sizes[k] in (0, 8)):
                    if sizes[k] == 8: c += 1
                    k += 1
                if c >= 3 and pad_ok:
                    out.append(("  s_nop 0", 4)); off += 4; nn += 1
        if sz == 8 or l.strip().endswith(':'): run = []
        out.append((l, sz))
        if sz == 4: run.append(len(out) - 1)
        off += sz
    return [o[0] for o in out], nw, nn, off

class Asm:
    def __init__(self):
        self.lines = []
        self.nops_inserted = []
    def __call__(self, text):
        for l in text.split('\n'):
            l = l.rstrip()
            if l.strip(): self.lines.append(l)
    def comment(self, c): self.lines.append(f"; {c}")
    def check_waits(self, lines, take):
        vq = []; lq = []; errors = []; skip_to = None; sec = ''
        labels = {l.strip()[:-1]: i for i, l in enumerate(lines) if l.strip().endswith(':') and not l.strip().startswith(';')}
        for idx, text in enumerate(lines):
            t = text.strip()
            if t.startswith(';'): sec = t; continue
            if skip_to is not None:
                if t == skip_to + ':': skip_to = None
                continue
            ins = Ins('  ' + t)
            if ins.kind == 'meta': continue
            if ins.kind == 'br':
                tgt = ins.ops[0]
                if labels.get(tgt, -1) > idx and (take or ins.op == 's_branch') and tgt != 'L_end': skip_to = tgt
                continue
            R = set(ins.r); W = set(ins.w)
            if ins.op == 's_waitcnt':
                m = re.search(r'vmcnt\((\d+)\)', t)
                if m:
                    n = int(m.group(1))
                    while len(vq) > n: vq.pop(0)
                m = re.search(r'lgkmcnt\((\d+)\)', t)
                if m:
                    n = int(m.group(1))
                    if n == 0: lq.clear()
                    else:
                        if any(k == 'smem' for k, _ in lq): errors.append(f"counted lgkmcnt with smem outstanding: {t}")
                        while len(lq) > n: lq.pop(0)
            else:
                use = R | W
                for dst in vq:
                    if dst & use: errors.append(f"[{sec} take={take}] vm RAW/WAW: '{t}' touches {sorted(dst & use)[:4]}")
                for k, dst in lq:
                    if dst & use: errors.append(f"[{sec} take={take}] lgkm RAW/WAW: '{t}' touches {sorted(dst & use)[:4]}")
                if ins.kind == 'vmem': vq.append(set(ins.w))
                if ins.kind == 'ds': lq.append(('ds', set(ins.w)))
                if ins.kind == 'smem': lq.append(('smem', set(ins.w)))
                if len(vq) > 63: errors.append(f"[{sec}] vmcnt overflow at {t}")
                if len(lq) > 15 and ins.kind == 'ds': errors.append(f"[{sec}] lgkmcnt overflow ({len(lq)}) at {t}")
        return errors
    def finalize(self, verbose=True, check_wait=True, align=True):
        out = []
        hist = []
        def dist_back(pred, maxd):
            d = 0
            for ins in reversed(hist):
                if ins.kind == 'meta': continue
                if pred(ins): return d
                d += ins.states()
                if d > maxd: return None
            return None
        vq = []
        lq = []
        errors = []
        cur_section = ''
        for text in self.lines:
            ins = Ins('  ' + text.strip())
            if ins.kind == 'meta':
                if text.strip().startswith(';'): cur_section = text.strip()
                out.append(text); hist.append(ins); continue
            need = 0
            R = set(ins.r); W = set(ins.w)
            def req(pred, n):
                nonlocal need
                d = dist_back(pred, n)
                if d is not None and d < n: need = max(need, n - d)
            isv = lambda i: i.kind == 'valu'
            if ins.kind == 'mfma':
                req(lambda i: i.kind == 'valu' and set(i.w) & R, 2)
                AB = set(ins.rA) | set(ins.rB)
                req(lambda i: i.kind == 'mfma' and set(i.w) & AB, 12)
                for i4 in (4, 8): pass
                need0 = 0
                d = 0
                for p in reversed(hist):
                    if p.kind == 'meta': continue
                    if p.kind == 'mfma':
                        pw = set(p.w)
                        if pw & AB:
                            n = {(4, False): 8, (8, False): 12, (8, True): 10, (4, True): 6}[(p.passes, p.sgemm)]
                            if d < n: need0 = max(need0, n - d)
                        C = set(ins.rC)
                        if pw & C:
                            if pw == C and p.passes == ins.passes and p.sgemm == ins.sgemm: n = 0
                            else: n = {4: 6, 8: 10}[p.passes] if not (p.sgemm and not ins.sgemm) else 0
                            if d < n: need0 = max(need0, n - d)
                        if (pw & W) and not (pw & C):
                            n = {4: 6, 8: 10}[p.passes]
                            if d < n: need0 = max(need0, n - d)
                    d += p.states()
                    if d > 20: break
                need = 0
                dd = dist_back(lambda i: i.kind == 'valu' and set(i.w) & R, 2)
                if dd is not None and dd < 2: need = 2 - dd
                need = max(need, need0)
            if ins.kind in ('valu', 'ds', 'vmem'):
                d = 0
                for p in reversed(hist):
                    if p.kind == 'meta': continue
                    if p.kind == 'mfma':
                        pw = set(p.w)
                        if pw & (R | W):
                            n = {(4, False): 8, (8, False): 12, (8, True): 10, (4, True): 6}[(p.passes, p.sgemm)]
                            if d < n: need = max(need, n - d)
                        if ins.kind == 'valu' and (set(p.rC) & W) and not p.sgemm:
                            n = {4: 3, 8: 7}[p.passes]
                            if d < n: need = max(need, n - d)
                    d += p.states()
                    if d > 14: break
            if ins.kind == 'valu':
                if ins.op not in TRANS:
                    req(lambda i: i.kind == 'valu' and i.op.replace('_e32','').replace('_e64','') in TRANS and set(i.w) & R, 1)
                if getattr(ins, 'dpp', False):
                    DS = set(ins.dppsrc)
                    req(lambda i: i.kind == 'valu' and set(i.w) & DS, 2)
                if getattr(ins, 'perm', False):
                    req(lambda i: i.kind == 'valu' and set(i.w) & R, 2)
                if getattr(ins, 'lane_read', False):
                    req(lambda i: i.kind == 'valu' and set(i.w) & R, 1)
                    req(lambda i: i.kind == 'valu' and any(x[0] == 's' for x in set(i.w) & R), 4)
                req(lambda i: i.kind == 'valu' and any((x[0] == 's' or x == 'vcc') for x in set(i.w) & R), 2)
                req(lambda i: i.kind == 'vmem' and not i.ld and getattr(i, 'wide', False) and set(i.r) & W, 2)
            if ins.kind == 'vmem':
                req(lambda i: i.kind == 'valu' and any(x[0] == 's' for x in set(i.w) & R), 5)
                if getattr(ins, 'ldslds', False):
                    req(lambda i: i.kind == 'salu' and 'm0' in i.w, 1)
            if ins.kind in ('salu', 'br'):
                RR = set(ins.r)
                if ins.op in ('s_cbranch_vccz', 's_cbranch_vccnz'): RR |= {'vcc'}
                req(lambda i: i.kind == 'valu' and any((x[0] == 's' or x == 'vcc') for x in set(i.w) & RR), 2)
            if need > 0:
                self.nops_inserted.append((cur_section, text.strip(), need))
                while need > 0:
                    k = min(need, 16)
                    nop = Ins(f"  s_nop {k-1}"); out.append(f"  s_nop {k-1}"); hist.append(nop); need -= k
            if False:
                if ins.op == 's_waitcnt':
                    m = re.search(r'vmcnt\((\d+)\)', text)
                    if m:
                        n = int(m.group(1))
                        while len(vq) > n: vq.pop(0)
                    m = re.search(r'lgkmcnt\((\d+)\)', text)
                    if m:
                        n = int(m.group(1))
                        if n == 0: lq.clear()
                        else:
                            if any(k == 'smem' for k, _ in lq): errors.append(f"counted lgkmcnt with smem outstanding: {text}")
                            while len(lq) > n: lq.pop(0)
                else:
                    use = (R | W) if ins.kind != 'meta' else set()
                    for dst in vq:
                        if dst & use: errors.append(f"[{cur_section}] vm RAW/WAW: '{text.strip()}' touches {sorted(dst & use)[:4]} with load outstanding")
                    for k, dst in lq:
                        if dst & use: errors.append(f"[{cur_section}] lgkm RAW/WAW: '{text.strip()}' touches {sorted(dst & use)[:4]} with load outstanding")
                    if ins.kind == 'vmem': vq.append(set(ins.w))
                    if ins.kind == 'ds': lq.append(('ds', set(ins.w)))
                    if ins.kind == 'smem': lq.append(('smem', set(ins.w)))
                    if len(vq) > 63: errors.append(f"vmcnt overflow at {text}")
            out.append(text); hist.append(ins)
            if len(hist) > 200: hist = hist[-100:]
        if verbose:
            tot = {}
            for sec, t, n in self.nops_inserted:
                tot.setdefault(sec, [0, 0]); tot[sec][0] += 1; tot[sec][1] += n
            for sec, (c, n) in tot.items(): print(f"  nops in {sec}: {c} sites, {n} states")
        errors = self.check_waits(out, False) + self.check_waits(out, True)
        if errors:
            for e in errors[:40]: print("ERROR:", e)
            raise RuntimeError(f"{len(errors)} waitcnt errors")
        if align:
            out, nw, nn, tot = align8(out)
            if verbose: print(f"  align: widened {nw}, padded {nn}, code bytes {tot}")
        return "\n".join(out) + "\n"
```

```python
import sys, struct, math, argparse
from asmlib import Asm

def f2u(x): return struct.unpack('<I', struct.pack('<f', x))[0]
KNAME = "standalone__modern_conv_block_slak__vision_kernel"

C1 = -2.0 * math.sqrt(2.0 / math.pi) * math.log2(math.e)
C2 = C1 * 0.044715
ALPHA = -((-C2) ** (1.0 / 3.0))
BETA = C1 / ALPHA
W1L = 0
W1P = 800
YB = 76800
XB = YB + 7680
XROW = 3840
DWT = XB + 18 * XROW
W2S = YB
CP = YB + 73728
CV = CP + 1536
GBL = DWT
PS = DWT + 1536
SP = PS + 6144
RES = 0
OUTS = YB
LP = YB + 8192
W2F = 0
LDS_BYTES = 163840
EPOCH_OFF = 0
L1_OFF = 4096
FIN_OFF = L1_OFF + 128 * 4096
NREP = 16
TAG_STEP = 0x9E3779B1
DBG_OFF = 0x200000
sX, sDW, sW1, sW2, sO = 24, 28, 32, 36, 40
sW, sX0, sY0, sTAG = 44, 45, 46, 47
sBETA = 50
sM0, sM1, sM2, sM3 = 52, 54, 56, 58
sDIAG, sLEFT, sBIG = 60, 62, 64
sXM, sRB = 65, 48
sT = 66
def srd(b): return f"s[{b}:{b+3}]"
def sp(b): return f"s[{b}:{b+1}]"
def v(a, n=1): return f"v{a}" if n == 1 else f"v[{a}:{a+n-1}]"
def a_(a, n=1): return f"a{a}" if n == 1 else f"a[{a}:{a+n-1}]"
vLANE16, vN, vQ, vAADR = 1, 2, 3, 4
YH = [8, 20, 32]
P0, P1, TT, AS, DP, ST = 44, 56, 68, 80, 84, 87
H = [100, 148, 196]; HL = 244
YL = [140, 144, 188]
P0L, P1L, TTL = 192, 236, 240
aNAT, aFR, aSEL, aONE, aOUT = 0, 72, 84, 92, 96
aRES = 32
aF, aG = 100, 196


class Track:
    def __init__(self): self.n = 0; self.done = 0
    def issue(self, k=1):
        self.n += k; return self.n
    def after(self, tid): return self.n - tid


class G:
    def __init__(self, opts):
        self.o = opts; self.A = Asm(); self.stamps = []
        self.vm = Track(); self.lg = Track(); self.w2id = 0
    def stamp(self, name):
        if not self.o.prof: return
        if len(self.stamps) >= 22: return
        k = len(self.stamps); self.stamps.append(name)
        self.A(f"  s_memtime s[78:79]\n  s_waitcnt lgkmcnt(0)\n  s_mov_b32 s{80+k}, s78"); self.lg.done = self.lg.n
    def ds(self, text):
        if self.lg.n - self.lg.done >= 15:
            self.A("  s_waitcnt lgkmcnt(13)"); self.lg.done = self.lg.n - 13
        self.A(text); return self.lg.issue()
    def drain(self, vm=False):
        self.A("  s_waitcnt " + ("vmcnt(0) " if vm else "") + "lgkmcnt(0)"); self.lg.done = self.lg.n
    def vmem(self, text):
        self.A(text); return self.vm.issue()
    def wait(self, vm=None, lg=None):
        p = []
        if vm is not None: p.append(f"vmcnt({min(63, self.vm.after(vm))})")
        if lg is not None:
            n = self.lg.after(lg); assert n <= 15, n
            p.append(f"lgkmcnt({n})"); self.lg.done = max(self.lg.done, lg)
        self.A("  s_waitcnt " + " ".join(p))
    def interleave(self, main, fill, per=1, start=0):
        fill = list(fill)
        for k, m in enumerate(main):
            m() if callable(m) else self.A(m)
            if k >= start:
                for _ in range(per):
                    if fill:
                        f = fill.pop(0); f() if callable(f) else self.A(f)
        return fill
    def emit(self, l):
        for f in l: f() if callable(f) else self.A(f)

    def xrow(self, r):
        A = self.A
        if r in (0, 1, 16, 17):
            A(f"""  s_add_u32 s{sT+1}, s{sRB}, {r*43008}
  s_cmp_eq_u32 s{sY0}, {0 if r < 2 else 210}
  s_cselect_b32 s{sT+1}, s{sBIG}, s{sT+1}
  s_add_u32 m0, s{sXM}, {r*XROW}""")
            A("  s_nop 0")
        else:
            A(f"  s_add_u32 m0, s{sXM}, {r*XROW}\n  s_add_u32 s{sT+1}, s{sRB}, {r*43008}")
        self.xid[r] = self.vmem(f"  buffer_load_dwordx4 v10, {srd(sX)}, s{sT+1} offen lds")
    def w1row(self, k):
        A = self.A
        A(f"  s_add_u32 m0, s{sT+10}, {k*W1P}\n  s_add_u32 s{sT}, s{sT+11}, {k*768}")
        msk = (k == 23) or self.o.w1mask
        if msk: A("  s_mov_b32 exec_hi, 0xffff")
        self.w1id = self.vmem(f"  buffer_load_dwordx4 v7, {srd(sW1)}, s{sT} offen lds")
        if msk: A("  s_mov_b32 exec_hi, -1")
    def job_gb(self):
        A = self.A
        A(f"""  s_cmp_eq_u32 s{sW}, 1
  s_cselect_b32 s72, s14, s12
  s_cselect_b32 s73, s15, s13
  s_mul_i32 s{sT+2}, s{sW}, 768
  s_add_u32 s{sT+2}, s{sT+2}, {GBL}
  s_and_b32 s73, s73, 0xffff
  s_mov_b32 s74, 768
  s_mov_b32 s75, 0x20000
  s_mov_b32 m0, s{sT+2}
  s_cmp_lt_u32 s{sW}, 2
  s_cbranch_scc0 L_nogb
  s_mov_b32 exec_hi, 0xffff
  buffer_load_dwordx4 v{vLANE16}, s[72:75], 0 offen lds
  s_mov_b32 exec_hi, -1
L_nogb:""")
    def job_touch_w2(self):
        A = self.A
        A(f"""  s_lshr_b32 s{sT}, s2, 3
  s_lshl_b32 s{sT}, s{sT}, 2
  s_add_u32 s{sT}, s{sT}, s{sW}
  s_lshl_b32 s{sT}, s{sT}, 10""")
        self.vmem(f"  buffer_load_dwordx4 a[244:247], v{vLANE16}, {srd(sW2)}, s{sT} offen")
    def job_touch_code(self):
        A = self.A
        n = self.o.codekb
        A(f"""  s_getpc_b64 s[{sT+2}:{sT+3}]
L_pcref:
  s_sub_u32 s{sT+2}, s{sT+2}, L_pcref-{KNAME}
  s_subb_u32 s{sT+3}, s{sT+3}, 0
  s_lshr_b32 s{sT}, s2, 3
  s_lshl_b32 s{sT}, s{sT}, 2
  s_add_u32 s{sT}, s{sT}, s{sW}
  s_lshl_b32 s{sT}, s{sT}, 10
  s_min_u32 s{sT}, s{sT}, L_end-{KNAME}-1020
  v_add_u32 v20, s{sT}, v{vLANE16}
  v_mov_b32 v23, s{sT+3}
  v_add_co_u32 v22, vcc, s{sT+2}, v20
  v_addc_co_u32 v23, vcc, 0, v23, vcc""")
        self.vmem(f"  global_load_dwordx4 a[248:251], v[22:23], off")
    def job_touch_tlb(self):
        A = self.A
        A(f"""  s_mul_i32 s{sT}, s{sY0}, 224
  s_add_u32 s{sT}, s{sT}, s{sX0}
  s_mul_i32 s{sT}, s{sT}, 192
  v_mov_b32 v11, {L1_OFF}""")
        self.vmem(f"  buffer_load_dword a252, v{vLANE16}, {srd(sO)}, s{sT} offen")
        self.vmem(f"  global_load_dword a253, v11, s[20:21] sc1")
    def job(self):
        if self.jobs: self.jobs.pop(0)()

    def setup(self):
        A = self.A; o = self.o
        self.xid = {}
        A("; ==== setup")
        A("  s_cmp_ge_u32 s2, 256\n  s_cbranch_scc1 L_end")
        if o.prof:
            A("  s_memrealtime s[78:79]\n  s_waitcnt lgkmcnt(0)\n  s_mov_b32 s49, s78\n  s_memtime s[78:79]\n  s_waitcnt lgkmcnt(0)\n  s_mov_b32 s80, s78")
            self.stamps.append('start')
        A(f"""
  s_load_dwordx16 s[4:19], s[0:1], 0
  s_load_dwordx2 s[20:21], s[0:1], 64
  v_lshrrev_b32 v5, 6, v0
  v_and_b32 v6, 63, v0
  v_readfirstlane_b32 s{sW}, v5
  v_lshlrev_b32 v{vLANE16}, 4, v6
  v_and_b32 v{vN}, 15, v6
  v_lshrrev_b32 v{vQ}, 4, v6""")
        if o.codekb: self.job_touch_code()
        A(f"""  s_and_b32 s{sT}, s2, 7
  s_lshr_b32 s{sT+1}, s2, 3
  s_and_b32 s{sT+2}, s{sT}, 3
  s_lshl_b32 s{sT+2}, s{sT+2}, 2
  s_and_b32 s{sT+3}, s{sT+1}, 3
  s_add_u32 s{sT+2}, s{sT+2}, s{sT+3}
  s_mul_i32 s{sX0}, s{sT+2}, 14
  s_lshr_b32 s{sT}, s{sT}, 2
  s_lshl_b32 s{sT}, s{sT}, 3
  s_lshr_b32 s{sT+1}, s{sT+1}, 2
  s_add_u32 s{sT}, s{sT}, s{sT+1}
  s_mul_i32 s{sY0}, s{sT}, 14
  s_mov_b32 s{sBIG}, 0x40000000
  s_lshl_b32 s{sT+7}, s{sW}, 6
  s_min_u32 s{sT+7}, s{sT+7}, 176
  v_add_u32 v11, s{sT+7}, v6
  v_mul_u32_u24 v7, 5042, v11
  v_lshrrev_b32 v7, 16, v7
  v_mul_u32_u24 v8, 13, v7
  v_sub_u32 v8, v11, v8
  s_sub_i32 s{sT}, s{sX0}, 2
  v_add_u32 v9, s{sT}, v7
  v_mul_u32_u24 v10, 192, v9
  v_lshl_add_u32 v10, v8, 4, v10
  s_movk_i32 s{sT+1}, 224
  v_cmp_gt_u32 vcc, s{sT+1}, v9
  v_cmp_gt_u32 s[{sT+2}:{sT+3}], 12, v8
  s_movk_i32 s{sT+1}, 234
  v_cmp_gt_u32 s[{sT+4}:{sT+5}], s{sT+1}, v11
  v_mov_b32 v11, s{sBIG}
  v_lshlrev_b32 v12, 4, v0
  v_subrev_u32 v13, 960, v12
  s_and_b64 vcc, vcc, s[{sT+2}:{sT+3}]
  s_and_b64 vcc, vcc, s[{sT+4}:{sT+5}]
  v_cndmask_b32 v10, v11, v10, vcc
  v_cmp_le_u32 vcc, 60, v0
  v_add_u32 v12, 3136, v12
  s_lshl_b32 s{sT+7}, s{sT+7}, 4
  s_add_u32 s{sXM}, s{sT+7}, {XB}
  v_cndmask_b32 v13, v11, v13, vcc
  s_lshl_b32 s{sT+6}, s{sW}, 10
  s_add_u32 s{sT+6}, s{sT+6}, {DWT}
  s_sub_i32 s{sRB}, s{sY0}, 2
  s_mul_i32 s{sRB}, s{sRB}, 43008
  s_waitcnt lgkmcnt(0)
""")
        def mksrd(base, ptr, n):
            A(f"""  s_mov_b32 s{base}, s{ptr}
  s_and_b32 s{base+1}, s{ptr+1}, 0xffff
  s_mov_b32 s{base+2}, {n}
  s_mov_b32 s{base+3}, 0x20000""")
        mksrd(sDW, 6, 4800); mksrd(sX, 4, 9633792)
        A(f"  s_mov_b32 m0, s{sT+6}\n  s_add_u32 s{sT+6}, s{sT+6}, 4096")
        self.vmem(f"  buffer_load_dwordx4 v13, {srd(sDW)}, 0 offen lds")
        A(f"  s_mov_b32 m0, s{sT+6}\n  s_nop 0")
        self.vmem(f"  buffer_load_dwordx4 v12, {srd(sDW)}, 0 offen lds")
        A(f"  s_mov_b32 m0, {DWT + 8192}\n  v_add_u32 v12, {8192 - 960}, v{vLANE16}")
        self.dwid = self.vmem(f"  buffer_load_dwordx4 v12, {srd(sDW)}, 0 offen lds")
        n0 = 7 if o.codekb else 8
        for r in range(n0): self.xrow(r)
        self.stamp('x0-7')
        self.jobs = [lambda r=r: self.xrow(r) for r in range(n0, 18)]
        rest = [lambda k=k: self.w1row(k) for k in range(24)]
        rest.insert(1, self.job_gb); rest.insert(6, self.job_touch_w2)
        self.jobs += rest
        A(f"  s_load_dword s{sTAG}, s[20:21], {EPOCH_OFF}")
        mksrd(sW1, 8, 73728); mksrd(sW2, 10, 73728); mksrd(sO, 16, 9633792)
        A(f"""  s_mul_i32 s{sT+10}, s{sW}, {24*W1P}
  s_add_u32 s{sT+10}, s{sT+10}, {W1L}
  s_mul_i32 s{sT+11}, s{sW}, {24*768}
  s_mov_b32 s{sBETA}, {hex(f2u(BETA))}
  s_mov_b32 s{sBETA+1}, {hex(f2u(BETA))}
  s_mov_b32 s{sM0}, 0x11111111
  s_mov_b32 s{sM0+1}, 0x11111111
  s_mov_b32 s{sM1}, 0x22222222
  s_mov_b32 s{sM1+1}, 0x22222222
  s_mov_b32 s{sM2}, 0x44444444
  s_mov_b32 s{sM2+1}, 0x44444444
  s_mov_b32 s{sM3}, 0x88888888
  s_mov_b32 s{sM3+1}, 0x88888888
  s_mov_b32 s{sDIAG}, 0x00f0000f
  s_mov_b32 s{sDIAG+1}, 0xf0000f00
  s_mov_b32 s{sLEFT}, 0x000f000f
  s_mov_b32 s{sLEFT+1}, 0x000f000f
  v_subrev_u32 v7, 32, v{vLANE16}
  v_cmp_gt_u32 vcc, 48, v6
  v_subrev_u32 v8, 48, v6
  v_cndmask_b32 v7, v7, v{vLANE16}, vcc
  v_cmp_gt_u32 vcc, 2, v8
  s_nop 1
  v_cndmask_b32 v7, v7, v11, vcc
  v_mov_b32 v18, 0x3f803f80""")
        for j in range(4): A(f"  v_accvgpr_write_b32 {a_(aONE+j)}, v18")
        A(f"""  v_and_b32 v14, 1, v{vN}
  v_lshlrev_b32 v14, 4, v14
  v_mov_b32 v15, 0x3f80
  v_lshlrev_b32 v14, v14, v15
  v_lshrrev_b32 v15, 2, v{vN}
  v_cmp_eq_u32 vcc, v15, v{vQ}
  v_bfe_u32 v15, v{vN}, 1, 1
  v_cndmask_b32 v14, 0, v14, vcc
  v_cmp_eq_u32 vcc, 0, v15
  v_mov_b32 v18, 0
  v_cndmask_b32 v16, 0, v14, vcc
  v_cndmask_b32 v17, v14, 0, vcc
  v_accvgpr_write_b32 {a_(aSEL+0)}, v16
  v_accvgpr_write_b32 {a_(aSEL+1)}, v17
  v_accvgpr_write_b32 {a_(aSEL+2)}, v18
  v_accvgpr_write_b32 {a_(aSEL+3)}, v18
  v_accvgpr_write_b32 {a_(aSEL+4)}, v18
  v_accvgpr_write_b32 {a_(aSEL+5)}, v18
  v_accvgpr_write_b32 {a_(aSEL+6)}, v16
  v_accvgpr_write_b32 {a_(aSEL+7)}, v17""")
        self.conv_addr()
        self.ln_addrs()
        self.late_addrs()
        self.stamp('precomp')

    cA, cIDX, cBF, cBG0, cBG1, cYW = 44, 92, 93, 94, 95, 96
    cD = [[208, 212, 216], [220, 224, 228]]
    cT = 232
    cAF, cAG, cML, cMH = 240, 241, 242, 243
    vLN = {'L': 97, 0: 98, 1: 99, 2: 5}
    vRES = [238, 239, 204]

    def conv_addr(self):
        A = self.A; t = 100
        A(f"""; conv addresses
  v_lshrrev_b32 v{t}, 3, v{vN}
  v_and_b32 v{t+1}, 7, v{vN}
  v_lshrrev_b32 v{t+2}, 1, v{vQ}
  v_sub_u32 v{t+2}, v{t+2}, v{t}
  v_add_u32 v{t+2}, 1, v{t+2}
  v_mul_u32_u24 v{t+2}, 960, v{t+2}
  v_and_b32 v{t+3}, 1, v{vQ}
  v_mul_u32_u24 v{t+3}, 384, v{t+3}
  v_add_u32 v{t+2}, v{t+2}, v{t+3}
  v_lshl_add_u32 v{t+2}, v{t+1}, 1, v{t+2}
  s_mul_i32 s{sT}, s{sW}, 48
  s_add_u32 s{sT+1}, s{sT}, {DWT}
  v_add_u32 v{self.cAF}, s{sT+1}, v{t+2}
  v_lshlrev_b32 v{t+3}, 1, v{vQ}
  v_sub_u32 v{t+3}, v{t+3}, v{t}
  v_add_u32 v{t+3}, 1, v{t+3}
  v_mul_u32_u24 v{t+3}, 960, v{t+3}
  v_lshl_add_u32 v{t+3}, v{t+1}, 1, v{t+3}
  s_add_u32 s{sT+1}, s{sT+1}, 768
  v_add_u32 v{self.cAG}, s{sT+1}, v{t+3}
  v_cmp_gt_u32 vcc, 4, v{t+1}
  v_and_b32 v{t+4}, 3, v{t+1}
  v_add_u32 v{t+5}, 1, v{t+4}
  v_and_b32 v{t+5}, 3, v{t+5}
  v_lshl_or_b32 v{t+4}, v{t+5}, 2, v{t+4}
  s_movk_i32 s{sT+2}, 0x1111
  v_mul_u32_u24 v{self.cIDX}, s{sT+2}, v{t+4}
  v_cndmask_b32 v{self.cML}, 0, -1, vcc
  v_not_b32 v{self.cMH}, v{self.cML}
  v_add_u32 v{t+6}, v{vN}, v{vQ}
  v_mul_u32_u24 v{t+6}, 208, v{t+6}
  s_add_u32 s{sT+1}, s{sT}, {XB}
  v_add_u32 v{self.cBF}, s{sT+1}, v{t+6}
  v_mul_u32_u24 v{t+6}, 208, v{vN}
  s_add_u32 s{sT+2}, s{sT+1}, {4*208}
  v_add_u32 v{t+8}, s{sT+2}, v{t+6}
  v_mul_u32_u24 v{t+7}, {XROW}, v{vQ}
  v_add_u32 v{self.cBG0}, v{t+8}, v{t+7}
  v_min_u32 v{t+7}, 1, v{vQ}
  v_add_u32 v{t+7}, 4, v{t+7}
  v_mul_u32_u24 v{t+7}, {XROW}, v{t+7}
  v_add_u32 v{self.cBG1}, v{t+8}, v{t+7}
  v_lshrrev_b32 v{t+7}, 1, v{vQ}
  v_mul_u32_u24 v{t+7}, 3328, v{t+7}
  v_add_u32 v{t+6}, v{t+6}, v{t+7}
  v_and_b32 v{t+7}, 1, v{vQ}
  v_lshl_add_u32 v{t+6}, v{t+7}, 3, v{t+6}
  s_add_u32 s{sT+1}, s{sT}, {YB}
  v_add_u32 v{self.cYW}, s{sT+1}, v{t+6}""")

    def ln_addrs(self):
        A = self.A; t = 100
        for slot in ('L', 0, 1, 2):
            d = self.vLN[slot]
            if slot == 'L': A(f"  v_min_u32 v{t}, 3, v{vN}")
            else:
                A(f"  s_lshl_b32 s{sT}, s{sW}, 4\n  s_add_u32 s{sT}, s{sT}, {4 + 64*slot}\n  v_add_u32 v{t}, s{sT}, v{vN}")
            A(f"""  v_mul_u32_u24 v{t+1}, 4682, v{t}
  v_lshrrev_b32 v{t+1}, 16, v{t+1}
  v_mul_u32_u24 v{t+2}, 14, v{t+1}
  v_sub_u32 v{t}, v{t}, v{t+2}
  v_mul_u32_u24 v{d}, 208, v{t}
  v_lshl_add_u32 v{d}, v{vQ}, 3, v{d}
  v_lshrrev_b32 v{t+2}, 1, v{t+1}
  v_mul_u32_u24 v{t+2}, 7680, v{t+2}
  v_add_u32 v{d}, v{d}, v{t+2}
  v_and_b32 v{t+2}, 1, v{t+1}
  v_mul_u32_u24 v{t+2}, 3328, v{t+2}
  v_add_u32 v{d}, v{d}, v{t+2}
  v_add_u32 v{d}, {YB}, v{d}""")
            if slot != 'L':
                r_ = self.vRES[slot]
                A(f"""  v_mul_u32_u24 v{r_}, 208, v{t}
  v_mul_u32_u24 v{t+2}, {XROW}, v{t+1}
  v_add_u32 v{r_}, v{r_}, v{t+2}
  v_lshl_add_u32 v{r_}, v{vQ}, 4, v{r_}
  v_add_u32 v{r_}, {XB + 2*XROW + 2*208}, v{r_}""")

    SK = {n: k for k, n in enumerate(['p0', 'p1', 'p2', 'rd', 'st', 'o0', 'o1', 'o2', 'r0', 'r1', 'r2', 'd0', 'd1', 'd2',
                                      'b0', 'b1', 'b2', 'b3', 'w2w', 'lp', 'spa', 'w2r', 'br', 'gr',
                                      'ps0', 'ps1', 'ps2', 'ps3', 'ps4', 'ps5', 'psr', 'l1'])}
    def put(self, name, reg): self.A(f"  v_accvgpr_write_b32 a{self.SK[name]}, v{reg}")
    def get(self, reg, name): self.A(f"  v_accvgpr_read_b32 v{reg}, a{self.SK[name]}")
    def late_addrs(self):
        A = self.A
        t = 100
        A(f"  v_lshrrev_b32 v{t+3}, 4, v{vLANE16}")
        for jj in range(3):
            A(f"""  v_add_u32 v{t+4}, {64*jj}, v{t+3}
  v_mul_u32_u24 v{t+5}, 5462, v{t+4}
  v_lshrrev_b32 v{t+5}, 16, v{t+5}
  v_mul_u32_u24 v{t+6}, 12, v{t+5}
  v_sub_u32 v{t+6}, v{t+4}, v{t+6}
  v_lshrrev_b32 v{t+7}, 3, v{t+5}
  v_mul_u32_u24 v{t+7}, 3, v{t+7}
  v_xor_b32 v{t+6}, v{t+6}, v{t+7}
  v_mul_u32_u24 v{t+5}, 192, v{t+5}
  v_lshl_add_u32 v{t+5}, v{t+6}, 4, v{t+5}
  v_subrev_u32 v{t+5}, {1024*jj}, v{t+5}""")
            self.put(f'p{jj}', t + 5)
        A(f"""  v_lshrrev_b32 v{t}, 6, v{vLANE16}
  v_bfe_u32 v{t+1}, v{vLANE16}, 4, 2
  v_bfe_u32 v{t+2}, v{t}, 1, 2
  v_xor_b32 v{t+2}, v{t+2}, v{t+1}
  v_lshlrev_b32 v{t+3}, 6, v{t}
  v_lshl_add_u32 v{t+3}, v{t+2}, 4, v{t+3}
  s_lshl_b32 s{sT+1}, s{sW}, 11
  s_add_u32 s{sT+1}, s{sT+1}, {OUTS}
  v_add_u32 v{t+3}, s{sT+1}, v{t+3}""")
        self.put('rd', t + 3)
        A(f"""  v_bfe_u32 v{t+3}, v{vN}, 1, 2
  v_xor_b32 v{t+3}, v{t+3}, v{vQ}
  v_lshlrev_b32 v{t+4}, 6, v{vN}
  v_lshl_add_u32 v{t+3}, v{t+3}, 4, v{t+4}""")
        self.put('st', t + 3)
        def pxoff(d, src, sl):
            A(f"""  s_lshl_b32 s{sT}, s{sW}, 4
  s_add_u32 s{sT}, s{sT}, {4 + 64*sl}
  v_add_u32 v{d}, s{sT}, v{src}
  v_mul_u32_u24 v{t+4}, 4682, v{d}
  v_lshrrev_b32 v{t+4}, 16, v{t+4}
  v_mul_u32_u24 v{t+5}, 14, v{t+4}
  v_sub_u32 v{d}, v{d}, v{t+5}
  v_add_u32 v{t+4}, s{sY0}, v{t+4}
  v_mul_u32_u24 v{t+4}, 224, v{t+4}
  v_add_u32 v{d}, v{d}, v{t+4}
  v_add_u32 v{d}, s{sX0}, v{d}
  v_mul_u32_u24 v{d}, 192, v{d}""")
        for sl in range(3):
            pxoff(t + 6, t, sl)
            A(f"  v_lshl_add_u32 v{t+7}, v{t+1}, 4, v{t+6}")
            self.put(f'o{sl}', t + 7)
            pxoff(t + 6, vN, sl)
            A(f"  v_lshl_add_u32 v{t+6}, v{vQ}, 4, v{t+6}")
            self.put(f'd{sl}', t + 6)
        for k in range(4):
            A(f"""  s_add_u32 s{sT}, s{sW}, {k}
  s_and_b32 s{sT}, s{sT}, 3
  s_mul_i32 s{sT}, s{sT}, 3072
  v_add_u32 v{t+6}, s{sT}, v{vLANE16}""")
            self.put(f'b{k}', t + 6)
        A(f"  s_mul_i32 s{sT}, s{sW}, 3072\n  v_add_u32 v{t+6}, s{sT}, v{vLANE16}"); self.put('w2w', t + 6)
        A(f"""  s_mul_i32 s{sT}, s{sW}, 1536
  s_add_u32 s{sT}, s{sT}, {LP}
  v_mul_u32_u24 v{t+6}, 384, v{vN}
  v_lshl_add_u32 v{t+6}, v{vQ}, 5, v{t+6}
  v_add_u32 v{t+6}, s{sT}, v{t+6}"""); self.put('lp', t + 6)
        A(f"""  s_mul_i32 s{sT}, s{sW}, 384
  s_add_u32 s{sT}, s{sT}, {SP}
  v_lshlrev_b32 v{t+6}, 4, v{vQ}
  v_add_u32 v{t+6}, s{sT}, v{t+6}"""); self.put('spa', t + 6)
        A(f"""  s_mul_i32 s{sT}, s{sW}, 18432
  s_add_u32 s{sT}, s{sT}, {W2S}
  v_lshrrev_b32 v{t+3}, 3, v{vN}
  v_mul_u32_u24 v{t+3}, 3, v{t+3}
  v_xor_b32 v{t+3}, v{t+3}, v{vQ}
  v_mul_u32_u24 v{t+6}, 192, v{vN}
  v_lshl_add_u32 v{t+6}, v{t+3}, 4, v{t+6}
  v_add_u32 v{t+6}, s{sT}, v{t+6}"""); self.put('w2r', t + 6)
        A(f"""  s_mul_i32 s{sT}, s{sW}, 192
  s_add_u32 s{sT}, s{sT}, {GBL + 768}
  v_lshlrev_b32 v{t+6}, 3, v{vQ}
  v_add_u32 v{t+6}, s{sT}, v{t+6}"""); self.put('br', t + 6)
        A(f"  v_lshrrev_b32 v{t+6}, 3, v{vLANE16}\n  v_add_u32 v{t+6}, {GBL}, v{t+6}"); self.put('gr', t + 6)
        A(f"""  v_and_b32 v{t}, 3, v{vN}
  s_mul_i32 s{sT}, s{sW}, 6
  v_add_u32 v{t}, s{sT}, v{t}
  v_lshrrev_b32 v{t+1}, 2, v{vN}
  v_and_b32 v{t+2}, 1, v{t+1}
  v_lshrrev_b32 v{t+1}, 1, v{t+1}
  v_lshl_or_b32 v{t+1}, v{t+2}, 1, v{t+1}
  v_lshl_add_u32 v{t+1}, v{vQ}, 2, v{t+1}
  v_lshlrev_b32 v{t+1}, 2, v{t+1}
  s_mul_i32 s{sT}, s{sW}, 1536
  s_add_u32 s{sT}, s{sT}, {PS}
  v_add_u32 v{t+1}, s{sT}, v{t+1}""")
        for k in range(6):
            A(f"""  v_add_u32 v{t+2}, {4*k}, v{t}
  v_subrev_u32 v{t+3}, 24, v{t+2}
  v_min_u32 v{t+2}, v{t+2}, v{t+3}
  v_lshl_add_u32 v{t+2}, v{t+2}, 6, v{t+1}""")
            self.put(f'ps{k}', t + 2)
        A(f"  v_lshlrev_b32 v{t}, 2, v0\n  v_add_u32 v{t}, {PS}, v{t}"); self.put('psr', t)
        A(f"""  v_lshlrev_b32 v{t+1}, 12, v0
  s_lshl_b32 s{sT}, s2, 4
  s_add_u32 s{sT}, s{sT}, {L1_OFF}
  v_add_u32 v{t+1}, s{sT}, v{t+1}"""); self.put('l1', t + 1)

    def a_build(self):
        A = self.A
        self.drain()
        self.wait(vm=self.dwid)
        A("  s_barrier")
        W = 100
        ids = []
        for gl in range(3):
            for f in range(4):
                for z in range(2):
                    r = W + (gl * 4 + f) * 2 + z
                    if f < 3: ids.append(self.ds(f"  ds_read_u16 v{r}, v{self.cAF} offset:{f*1920 + z*192 + 16*gl}"))
                    else: ids.append(self.ds(f"  ds_read_u16 v{r}, v{self.cAG} offset:{z*960 + 16*gl}"))
            self.job()
            if gl == 0: continue
            self.wait(lg=ids[8*gl - 1]); self.a_and(gl - 1, W); self.job()
        self.wait(lg=ids[-1]); self.a_and(2, W); self.job()
    def a_and(self, gl, W):
        for f in range(4):
            r = W + (gl * 4 + f) * 2; d = self.cA + (gl * 4 + f) * 4
            self.A(f"""  v_and_b32 v{d}, v{r}, v{self.cML}
  v_and_b32 v{d+1}, v{r}, v{self.cMH}
  v_and_b32 v{d+2}, v{r+1}, v{self.cML}
  v_and_b32 v{d+3}, v{r+1}, v{self.cMH}""")

    def Freg(self, gl, rho): return aF + (((rho // 2) % 4) * 3 + gl) * 8
    def Greg(self, gl, b): return aG + ((b % 2) * 3 + gl) * 8
    def conv_reads(self, b):
        Y = 2 * b; L = []
        def rd(dst, base, off): L.append(lambda: setattr(self, 'lastrd', self.ds(f"  ds_read_b128 {a_(dst,4)}, v{base} offset:{off}")))
        for gl in range(3):
            rhos = [0, 2, 4] if b == 0 else [Y + 4]
            for rho in rhos:
                rd(self.Freg(gl, rho), self.cBF, rho * XROW + 16 * gl)
                rd(self.Freg(gl, rho) + 4, self.cBF, (rho + 1) * XROW + 16 * gl)
            rd(self.Greg(gl, b), self.cBG0, Y * XROW + 16 * gl)
            rd(self.Greg(gl, b) + 4, self.cBG1, Y * XROW + 16 * gl)
        return L
    def conv_zero(self, b): return [f"  v_mov_b64 {v(self.cD[b%2][gl]+2*h,2)}, 0" for gl in range(3) for h in range(2)]
    def conv_mfmas(self, b):
        Y = 2 * b; L = []
        for f in range(4):
            for gl in range(3):
                B = a_(self.Freg(gl, Y + 2*f), 8) if f < 3 else a_(self.Greg(gl, b), 8)
                L.append(f"  v_smfmac_f32_16x16x64_bf16 {v(self.cD[b%2][gl],4)}, {v(self.cA+(gl*4+f)*4,4)}, {B}, v{self.cIDX}")
        return L
    def conv_epi(self, b):
        L = []
        for gl in range(3):
            d = self.cD[b % 2][gl]; t = self.cT + 2 * gl
            L.append(f"  v_cvt_pk_bf16_f32 v{t}, v{d}, v{d+1}")
            L.append(f"  v_cvt_pk_bf16_f32 v{t+1}, v{d+2}, v{d+3}")
            L.append(lambda t=t, gl=gl: self.ds(f"  ds_write_b64 v{self.cYW}, {v(t,2)} offset:{b*7680 + 16*gl}"))
        return L

    def conv_all(self):
        A = self.A
        self.job()
        self.wait(vm=self.xid[5]); A("  s_barrier")
        rd = self.conv_reads(0)
        for k, r in enumerate(rd):
            r()
            if k == 7: self.emit(self.conv_zero(0))
            if k == 15: self.job()
        for b in range(7):
            A(f"; ==== conv block {b}")
            nxt = []
            if b < 6:
                while 2 * b + 7 not in self.xid: self.job()
                self.wait(vm=self.xid[2 * b + 7]); A("  s_barrier")
                nxt = self.conv_reads(b + 1)
            else:
                A("  s_barrier")
            self.wait(lg=self.lastrd)
            if b in (0, 2, 4):
                sl = b // 2
                for a in range(3): self.ds(f"  ds_read_b128 {a_(aRES+(sl*3+a)*4,4)}, v{self.vRES[sl]} offset:{64*a}")
            mf = self.conv_mfmas(b)
            for k, m in enumerate(mf):
                A(m)
                if nxt: nxt.pop(0)()
                if k % 3 == 1 and (b < 2 or k != 10): self.job()
            self.emit(nxt)
            if b < 6: self.emit(self.conv_zero(b + 1))
            else: A("  s_nop 4")
            self.emit(self.conv_epi(b))
            if self.o.blkstamp: self.stamp(f'b{b}')
            if b == 5:
                self.ln_tiles(['L', 0], jobs=True)
                if self.o.blkstamp: self.stamp('lnL0')
        while self.jobs: self.job()
        self.drain(); A("  s_barrier")
        self.stamp('conv')
        self.ln_tiles([1, 2])
    def ln_tiles(self, slots, jobs=False):
        A = self.A
        A(f"; ==== LN tiles {slots}")
        bases = [100, 148]
        R = []
        for k, sl in enumerate(slots):
            b = bases[k]
            R.append(dict(sl=sl, U=b, Dg=b + 24, Ds=b + 28, st=b + 32, raw=(192 if k == 0 else 244),
                          dest=(lambda q, sl=sl: YH[sl] + q) if sl != 'L' else (lambda q: YL[q // 4] + q % 4)))
        for r in R:
            for s in range(3):
                for z in range(2):
                    r['id'] = self.ds(f"  ds_read_b64 {v(r['raw']+4*s+2*z,2)}, v{self.vLN[r['sl']]} offset:{64*s + 32*z}")
        def mfs(r):
            raw = r['raw']; mf = []
            for s in range(3):
                mf.append(f"  v_mfma_f32_16x16x32_bf16 {v(r['Dg'],4)}, {v(raw+4*s,4)}, {v(raw+4*s,4)}, " + ("0" if s == 0 else v(r['Dg'],4)))
                mf.append(f"  v_mfma_f32_16x16x32_bf16 {v(r['Ds'],4)}, {a_(aONE,4)}, {v(raw+4*s,4)}, " + ("0" if s == 0 else v(r['Ds'],4)))
            return mf
        def unp(r):
            raw = r['raw']; un = []
            for k in range(12):
                un.append(f"  v_lshlrev_b32 v{r['U']+2*k}, 16, v{raw+k}")
                un.append(f"  v_and_b32 v{r['U']+2*k+1}, 0xffff0000, v{raw+k}")
            return un
        def sel(r):
            st, Dg = r['st'], r['Dg']
            return [f"  v_cndmask_b32 v{st}, v{Dg}, v{Dg+1}, {sp(sM1)}",
                    f"  v_cndmask_b32 v{st}, v{st}, v{Dg+2}, {sp(sM2)}",
                    f"  v_cndmask_b32 v{st}, v{st}, v{Dg+3}, {sp(sM3)}",
                    f"  v_cndmask_b32 v{st}, 0, v{st}, {sp(sDIAG)}",
                    f"  v_mov_b32 v{st+1}, 1.0",
                    f"  v_mul_f32 v{st+2}, {hex(f2u(1.0/96))}, v{r['Ds']}"]
        def f32m(r): return f"  v_mfma_f32_16x16x4_f32 {v(r['Dg'],4)}, v{r['st']+1}, v{r['st']}, 0"
        def stats(r):
            st, Dg = r['st'], r['Dg']
            s_ = [f"  v_mul_f32 v{st+3}, {hex(f2u(1.0/96))}, v{Dg}",
                  f"  v_fma_f32 v{st+3}, -v{st+2}, v{st+2}, v{st+3}",
                  f"  v_max_f32 v{st+3}, 0, v{st+3}",
                  f"  v_add_f32 v{st+3}, {hex(f2u(1e-5))}, v{st+3}",
                  f"  v_rsq_f32 v{st+3}, v{st+3}",
                  f"  v_mul_f32 v{st+2}, {hex(f2u(-ALPHA))}, v{st+2}",
                  f"  v_mul_f32 v{st+4}, {hex(f2u(ALPHA))}, v{st+3}"]
            if r['sl'] == 'L': s_.append(f"  v_cndmask_b32 v{st+4}, 0, v{st+4}, {sp(sLEFT)}")
            s_.append(f"  v_mul_f32 v{st}, v{st+2}, v{st+3}")
            if r['sl'] == 'L': s_.append(f"  v_cndmask_b32 v{st}, 0, v{st}, {sp(sLEFT)}")
            return s_
        def norm(r):
            U, st = r['U'], r['st']
            return [f"  v_pk_fma_f32 {v(U+2*k,2)}, {v(U+2*k,2)}, {v(st+4,2)}, {v(st,2)} op_sel_hi:[1,0,0]" for k in range(12)]
        def cvt(r): return [f"  v_cvt_pk_bf16_f32 v{r['dest'](k)}, v{r['U']+2*k}, v{r['U']+2*k+1}" for k in range(12)]
        a, b = R
        self.wait(lg=a['id'])
        J = (lambda: self.job()) if jobs else (lambda: None)
        self.emit(self.interleave(mfs(a), unp(a), per=2)); J()
        ub = unp(b)
        self.wait(lg=b['id'])
        mb = mfs(b); fill = ub[:6] + sel(a) + ub[6:]
        left = self.interleave(mb, fill, per=2)
        A(f32m(a)); J(); self.emit(left); J()
        self.emit(sel(b)); A(f32m(b)); J()
        self.emit(stats(a))
        sb = stats(b)
        na = norm(a)
        A("  s_nop 1")
        self.emit(sb[:2])
        self.emit(self.interleave(na, sb[2:], per=1))
        self.emit(cvt(a)[:4]); J()
        self.emit(norm(b)); J(); self.emit(cvt(a)[4:]); J(); self.emit(cvt(b)); J()
    def prologue(self):
        self.setup()
        self.a_build()
        self.stamp('abuild')
        self.conv_all()
        self.stamp('ln')

    def a_addr(self, seg):
        self.A(f"""  s_add_u32 s{sT}, s{sW}, {seg}
  s_and_b32 s{sT}, s{sT}, 3
  s_mul_i32 s{sT}, s{sT}, 192
  v_add_u32 v{vAADR}, s{sT}, v6""")
    def a_loads(self, i):
        L = []
        for s in range(3):
            for z in range(2):
                L.append(lambda s=s, z=z: setattr(self, 'afr_id', self.ds(f"  ds_read_b64_tr_b16 {a_(aFR+4*s+2*z,2)}, v{vAADR} offset:{s*32*W1P + z*16*W1P + 32*(i%6)}")))
        return L
    def tiles(self, i): return 4 if i < 6 else 3
    def accregs(self, i):
        base = P0 if i % 2 == 0 else P1
        l = [base, base + 4, base + 8]
        if i < 6: l.append(P0L if i % 2 == 0 else P1L)
        return l
    def gemm1_mfmas(self, i):
        acc = self.accregs(i); out = []
        for s in range(3):
            for tl in range(self.tiles(i)):
                B = v(YH[tl] + 4 * s, 4) if tl < 3 else v(YL[s], 4)
                C = "0" if s == 0 else v(acc[tl], 4)
                out.append(f"  v_mfma_f32_16x16x32_bf16 {v(acc[tl],4)}, {a_(aFR+4*s,4)}, {B}, {C}")
        return out
    def dpp_tail(self, i):
        b0, b1, c = DP, DP + 1, DP + 2
        mj = [sM0, sM1, sM2, sM3][i % 4]
        return [f"  v_add_f32_dpp v{b0}, v{AS}, v{AS} row_ror:8 row_mask:0xf bank_mask:0x3",
                f"  v_add_f32_dpp v{b0}, v{AS+1}, v{AS+1} row_ror:8 row_mask:0xf bank_mask:0xc",
                f"  v_add_f32_dpp v{b1}, v{AS+2}, v{AS+2} row_ror:8 row_mask:0xf bank_mask:0x3",
                f"  v_add_f32_dpp v{b1}, v{AS+3}, v{AS+3} row_ror:8 row_mask:0xf bank_mask:0xc",
                f"  v_add_f32_dpp v{c}, v{b0}, v{b0} row_half_mirror row_mask:0xf bank_mask:0x5",
                f"  v_add_f32_dpp v{c}, v{b1}, v{b1} row_half_mirror row_mask:0xf bank_mask:0xa",
                f"  v_add_f32_dpp v{c}, v{c}, v{c} quad_perm:[1,0,3,2] row_mask:0xf bank_mask:0xf",
                f"  v_add_f32_dpp v{c}, v{c}, v{c} quad_perm:[2,3,0,1] row_mask:0xf bank_mask:0xf",
                f"  v_cndmask_b32 v{ST + i//4}, v{ST + i//4}, v{c}, {sp(mj)}"]
    def hdst(self, i, tl, j): return (H[tl] + 2 * i + j) if tl < 3 else (HL + 2 * i + j)
    def w2dma(self, j):
        gi, jj = j // 3, j % 3
        if jj == 0:
            self.A(f"  s_add_u32 m0, s{sT+11}, {3072*gi}\n  s_add_u32 s{sT+1}, s{sT+10}, {3072*gi}")
        self.w2id = self.vmem(f"  buffer_load_dwordx4 v{93+jj}, {srd(sW2)}, s{sT+1} offen offset:{1024*jj} lds")
    def gelu_iter(self, i, pend):
        A = self.A
        A(f"; ==== gelu iter {i}")
        nt = self.tiles(i); acc = self.accregs(i)
        T = [TT, TT + 4, TT + 8] + ([TTL] if nt == 4 else [])
        pairs = [(tl, h) for tl in range(nt) for h in range(2)]
        U = lambda tl, h: v(acc[tl] + 2 * h, 2)
        TP = lambda tl, h: v(T[tl] + 2 * h, 2)
        seq = [f"  v_pk_fma_f32 {TP(tl,h)}, {U(tl,h)}, {U(tl,h)}, {sp(sBETA)}" for tl, h in pairs] + \
              [f"  v_pk_mul_f32 {TP(tl,h)}, {TP(tl,h)}, {U(tl,h)}" for tl, h in pairs]
        slots = {0: [0, 1], 1: [2, 3], 3: [4, 5], 6: [6], 9: [7], 11: [8]} if pend else {}
        for k, ins in enumerate(seq):
            A(ins)
            for x in slots.get(k, []): A(pend[x])
        exps = [f"  v_exp_f32 v{T[tl]+j}, v{T[tl]+j}" for tl in range(nt) for j in range(4)]
        if i + 1 < 24:
            mf = self.gemm1_mfmas(i + 1)
            self.wait(lg=self.afr_id)
            e = 0
            for k, m in enumerate(mf):
                A(m)
                if self.o.dmapos == 0 and k == 1 and 1 <= i < 19: self.w2dma(i - 1)
                if k < len(mf) - 1: A(exps[e]); e += 1
            if i + 2 < 24:
                if (i + 2) % 6 == 0: self.a_addr((i + 2) // 6)
                self.emit(self.a_loads(i + 2))
            if self.o.dmapos == 3 and 1 <= i < 19: self.w2dma(i - 1)
            while e < len(exps): A(exps[e]); e += 1
        else:
            for x in exps: A(x)
        for tl, h in pairs: A(f"  v_pk_add_f32 {TP(tl,h)}, {TP(tl,h)}, 1.0 op_sel_hi:[1,0]")
        for tl in range(nt):
            for j in range(4): A(f"  v_rcp_f32 v{T[tl]+j}, v{T[tl]+j}")
            if self.o.dmapos == 1 and tl == 1 and 1 <= i < 19: self.w2dma(i - 1)
        if self.o.dmapos == 2 and 1 <= i < 19: self.w2dma(i - 1)
        for tl, h in pairs: A(f"  v_pk_mul_f32 {TP(tl,h)}, {TP(tl,h)}, {U(tl,h)}")
        for tl in range(nt):
            for h in range(2):
                if tl == 0: A(f"  v_pk_mul_f32 {v(AS+2*h,2)}, {TP(tl,h)}, {TP(tl,h)}")
                else: A(f"  v_pk_fma_f32 {v(AS+2*h,2)}, {TP(tl,h)}, {TP(tl,h)}, {v(AS+2*h,2)}")
        for tl, h in pairs: A(f"  v_cvt_pk_bf16_f32 v{self.hdst(i,tl,h)}, v{T[tl]+2*h}, v{T[tl]+2*h+1}")
        return self.dpp_tail(i)
    def gelu(self):
        A = self.A
        A("; ==== gelu prologue")
        A(f"""  v_lshrrev_b32 v6, 2, v{vN}
  v_lshl_add_u32 v6, v{vQ}, 2, v6
  v_mul_u32_u24 v6, {W1P}, v6
  v_and_b32 v7, 3, v{vN}
  v_lshl_add_u32 v6, v7, 3, v6""")
        self.a_addr(0)
        for jj in range(3): self.get(93 + jj, f'p{jj}')
        A(f"""  s_mul_i32 s{sT+10}, s{sW}, 18432
  s_add_u32 s{sT+11}, s{sT+10}, {W2S}""")
        A("  s_waitcnt vmcnt(0)\n  s_barrier")
        self.emit(self.a_loads(0))
        for k in range(6): A(f"  v_mov_b32 v{ST+k}, 0")
        self.wait(lg=self.afr_id)
        for m in self.gemm1_mfmas(0): A(m)
        self.emit(self.a_loads(1))
        A("  s_nop 3")
        if self.o.gpad >= 0:
            A("; @align64")
            for _ in range(self.o.gpad): A("  s_nop 0")
        pend = []
        for i in range(24): pend = self.gelu_iter(i, pend)
        A("; ==== gelu tail")
        for l in pend: A(l)

    def publish(self):
        A = self.A
        self.wait(vm=self.w2id)
        t = TT
        for k in range(6): self.get(t + 4 + k, f'ps{k}')
        self.get(t, 'psr'); self.get(t + 1, 'l1')
        return t
    def publish2(self, t):
        A = self.A
        for k in range(6): self.ds(f"  ds_write_b32 v{t+4+k}, v{ST+k}")
        A(f"""  s_add_u32 s{sTAG}, s{sTAG}, {hex(TAG_STEP)}
  s_cmp_eq_u32 s{sTAG}, 0
  s_cselect_b32 s{sT}, {hex(TAG_STEP)}, 0
  s_add_u32 s{sTAG}, s{sTAG}, s{sT}
  s_waitcnt lgkmcnt(0)
  s_barrier
  s_cmp_ge_u32 s{sW}, 2
  s_cbranch_scc1 L_nopub"""); self.lg.done = self.lg.n
        r = P0
        for w in range(4): A(f"  ds_read2st64_b32 {v(r+2*w,2)}, v{t} offset0:{6*w} offset1:{6*w+2}")
        A(f"  ds_read2st64_b32 {v(r+8,2)}, v{t} offset0:4 offset1:10")
        A(f"  ds_read2st64_b32 {v(r+10,2)}, v{t} offset0:16 offset1:22")
        A(f"""  v_mov_b32 v{t+7}, s{sTAG}
  s_waitcnt lgkmcnt(0)
  v_add_f32 v{t+4}, v{r}, v{r+2}
  v_add_f32 v{t+5}, v{r+1}, v{r+3}
  v_add_f32 v{t+6}, v{r+8}, v{r+9}
  v_add_f32 v{r+4}, v{r+4}, v{r+6}
  v_add_f32 v{r+5}, v{r+5}, v{r+7}
  v_add_f32 v{r+10}, v{r+10}, v{r+11}
  v_add_f32 v{t+4}, v{t+4}, v{r+4}
  v_add_f32 v{t+5}, v{t+5}, v{r+5}
  v_add_f32 v{t+6}, v{t+6}, v{r+10}
  global_store_dwordx4 v{t+1}, {v(t+4,4)}, s[20:21] sc1
L_nopub:""")

    def reducer(self, t, r):
        A = self.A
        A(f"""  s_cmp_lg_u32 s{sW}, 3
  s_cbranch_scc1 L_nored
  s_cmp_ge_u32 s2, 128
  s_cbranch_scc1 L_nored
  s_lshl_b32 s{sT}, s2, 12
  s_add_u32 s{sT}, s{sT}, {L1_OFF}
  v_add_u32 v{t}, s{sT}, v{vLANE16}
  s_mov_b32 s{sT+2}, 0
L_poll1:""")
        for k in range(4): A(f"  global_load_dwordx4 {v(r+4*k,4)}, v{t}, s[20:21] offset:{1024*k} sc1")
        A(f"""  s_add_u32 s{sT+2}, s{sT+2}, 1
  s_waitcnt vmcnt(0)
  v_cmp_eq_u32 vcc, s{sTAG}, v{r+3}
  v_cmp_eq_u32 s[{sT+4}:{sT+5}], s{sTAG}, v{r+7}
  v_cmp_eq_u32 s[{sT+6}:{sT+7}], s{sTAG}, v{r+11}
  v_cmp_eq_u32 s[{sT+8}:{sT+9}], s{sTAG}, v{r+15}
  s_and_b64 vcc, vcc, s[{sT+4}:{sT+5}]
  s_and_b64 s[{sT+6}:{sT+7}], s[{sT+6}:{sT+7}], s[{sT+8}:{sT+9}]
  s_and_b64 vcc, vcc, s[{sT+6}:{sT+7}]
  s_cmp_eq_u64 vcc, exec
  s_cbranch_scc1 L_red_go
  s_cmp_lt_u32 s{sT+2}, {self.o.spin}
  s_cbranch_scc1 L_poll1
L_red_go:""")
        for c in range(3): A(f"  v_add_f32 v{r+c}, v{r+c}, v{r+4+c}\n  v_add_f32 v{r+8+c}, v{r+8+c}, v{r+12+c}")
        for c in range(3): A(f"  v_add_f32 v{r+c}, v{r+c}, v{r+8+c}")
        for d in ("row_shr:1 row_mask:0xf", "row_shr:2 row_mask:0xf", "row_shr:4 row_mask:0xf", "row_shr:8 row_mask:0xf", "row_bcast:15 row_mask:0xa", "row_bcast:31 row_mask:0xc"):
            for c in range(3): A(f"  v_add_f32_dpp v{r+c}, v{r+c}, v{r+c} {d} bank_mask:0xf")
        for c in range(3): A(f"  v_readlane_b32 s{sT+4+c}, v{r+c}, 63")
        A(f"""  s_lshl_b32 s{sT}, s2, 4
  s_add_u32 s{sT}, s{sT}, {FIN_OFF}
  v_lshlrev_b32 v{t}, 11, v{vN}
  v_add_u32 v{t}, s{sT}, v{t}
  v_mov_b32 v{r}, s{sT+4}
  v_mov_b32 v{r+1}, s{sT+5}
  v_mov_b32 v{r+2}, s{sT+6}
  v_mov_b32 v{r+3}, s{sTAG}
  s_mov_b64 exec, {(1<<NREP)-1}
  global_store_dwordx4 v{t}, {v(r,4)}, s[20:21] sc1
  s_mov_b64 exec, -1
L_nored:""")

    XC = 8
    vOUT = 92
    vB2 = 95
    vW2W, vLP, vSPA = 99, 5, 6
    vST, vRD = 4, 7
    vOD = [0, 2, 3]
    def spr(self, tl): return (80 + 4 * tl) if tl < 3 else (244 + 4 * (tl - 3))
    def dw2(self, tl, a, b): return 100 + a * 48 + (b * 6 + tl) * 4
    def xc(self, sl, a, b): return self.XC + (sl * 3 + a) * 8 + 4 * b

    def wait_work_a(self):
        A = self.A
        self.get(50, 'w2r'); self.get(51, 'br'); self.get(53, 'gr')
        for ul in range(3):
            for z in range(2):
                self.ds(f"  ds_read_b64 {a_(aFR+4*ul+2*z,2)}, v51 offset:{64*ul + 32*z}")
        for z in range(2):
            for c in range(3):
                self.ds(f"  ds_read_u16 v{80 + z*3 + c}, v53 offset:{128*z + 256*c}")
        self.get(self.vRD, 'rd'); self.get(self.vST, 'st')
        for sl in range(3): self.get(self.vOUT + sl, f'o{sl}')
        for k in range(4): self.get(self.vB2 + k, f'b{k}')
        self.get(self.vW2W, 'w2w'); self.get(self.vLP, 'lp'); self.get(self.vSPA, 'spa')
        for sl in range(3): self.get(54 + sl, f'd{sl}'); A(f"  v_accvgpr_write_b32 {a_(aOUT+sl)}, v{54+sl}")
        self.order = [(tl, a) for a in range(3) for tl in range(6)]
        self.nids = {}
        for k in range(8):
            tl, a = self.order[k]
            self.nids[k] = self.ds(f"  ds_read_b128 {a_(4*(k%8),4)}, v50 offset:{tl*3072 + 64*a}")
        for k in range(100, 256): A(f"  v_accvgpr_write_b32 a{k}, v{k}")
    def wait_work_b(self):
        A = self.A
        order = self.order
        for k in range(18):
            ptl, pa = order[k]
            self.wait(lg=self.nids[k])
            for b in range(2): A(f"  v_mfma_f32_16x16x32_bf16 {v(self.dw2(ptl,pa,b),4)}, {a_(4*(k%8),4)}, {a_(aSEL+4*b,4)}, 0")
            if k + 8 < 18:
                tl, a = order[k + 8]
                self.nids[k + 8] = self.ds(f"  ds_read_b128 {a_(4*(k%8),4)}, v50 offset:{tl*3072 + 64*a}")
        Q = [244, 248]
        jobs = [(t_, ul) for ul in range(3) for t_ in range(6)]
        for k, (t_, ul) in enumerate(jobs):
            a, b = t_ // 2, t_ % 2
            q = Q[k % 2]
            d0, d1 = self.dw2(2*ul, a, b), self.dw2(2*ul+1, a, b)
            A(f"""  v_cvt_pk_bf16_f32 v{q}, v{d0}, v{d0+1}
  v_cvt_pk_bf16_f32 v{q+1}, v{d0+2}, v{d0+3}""")
            if k > 0:
                pt, pul = jobs[k-1]; pq = Q[(k-1) % 2]; c = self.xc(0, pt // 2, pt % 2)
                A(f"  v_mfma_f32_16x16x32_bf16 {v(c,4)}, {v(pq,4)}, {a_(aFR+4*pul,4)}, " + ("0" if pul == 0 else v(c,4)))
            A(f"""  v_cvt_pk_bf16_f32 v{q+2}, v{d1}, v{d1+1}
  v_cvt_pk_bf16_f32 v{q+3}, v{d1+2}, v{d1+3}""")
        pt, pul = jobs[-1]; c = self.xc(0, pt // 2, pt % 2)
        A(f"  s_nop 1\n  v_mfma_f32_16x16x32_bf16 {v(c,4)}, {v(Q[(len(jobs)-1)%2],4)}, {a_(aFR+4*pul,4)}, {v(c,4)}")
        A(f"""  s_mul_i32 s{sT}, s{sW}, 384
  s_add_u32 s{sT}, s{sT}, {CP}
  v_lshlrev_b32 v252, 5, v{vQ}
  v_add_u32 v253, {CP}, v252
  v_add_u32 v252, s{sT}, v252
  s_mov_b32 exec_lo, 0x00010001
  s_mov_b32 exec_hi, 0x00010001
  s_nop 2""")
        for t_ in range(6):
            a, b = t_ // 2, t_ % 2
            self.ds(f"  ds_write_b128 v252, {v(self.xc(0,a,b),4)} offset:{128*a + 16*b}")
        A("  s_mov_b64 exec, -1")
        self.stamp('cpart')
        self.reducer(58, 32)
        self.stamp('red')
        self.drain(); A("  s_barrier")
        for half in range(2):
            ts = [3*half + j for j in range(3)]
            ids = []
            for j, t_ in enumerate(ts):
                a, b = t_ // 2, t_ % 2
                for w in range(4):
                    dst = self.xc(0, a, b) if w == 0 else 32 + (j * 3 + (w - 1)) * 4
                    ids.append(self.ds(f"  ds_read_b128 {v(dst,4)}, v253 offset:{w*384 + 128*a + 16*b}"))
            for j, t_ in enumerate(ts):
                a, b = t_ // 2, t_ % 2
                self.wait(lg=ids[4*j+3])
                c = self.xc(0, a, b); o = 32 + j * 12
                for h in range(2):
                    A(f"  v_pk_add_f32 {v(c+2*h,2)}, {v(c+2*h,2)}, {v(o+2*h,2)}\n  v_pk_add_f32 {v(o+4+2*h,2)}, {v(o+4+2*h,2)}, {v(o+8+2*h,2)}")
                for h in range(2): A(f"  v_pk_add_f32 {v(c+2*h,2)}, {v(c+2*h,2)}, {v(o+4+2*h,2)}")
        A(f"""  s_cmp_lg_u32 s{sW}, 0
  s_cbranch_scc1 L_nocv
  v_add_u32 v253, {CV - CP}, v253
  s_mov_b32 exec_lo, 0x00010001
  s_mov_b32 exec_hi, 0x00010001""")
        for t_ in range(6):
            a, b = t_ // 2, t_ % 2
            A(f"  ds_write_b128 v253, {v(self.xc(0,a,b),4)} offset:{128*a + 16*b}")
        A("  s_mov_b64 exec, -1\n  s_waitcnt lgkmcnt(0)\nL_nocv:"); self.lg.done = self.lg.n
        k = 0
        for sl in (1, 2, 0):
            for a in range(3):
                for j in range(4): A(f"  v_accvgpr_read_b32 v{244+4*(k%2)+j}, {a_(aRES+(sl*3+a)*4+j)}")
                for j in range(4):
                    b, r = j // 2, (j % 2) * 2
                    c = self.xc(0, a, b) + r; d = self.xc(sl, a, b) + r; x = 244 + 4*(k%2) + j
                    tt = 90 if j % 2 == 0 else 86
                    A(f"""  v_lshlrev_b32 v{tt}, 16, v{x}
  v_and_b32 v{tt+1}, 0xffff0000, v{x}
  v_pk_add_f32 {v(d,2)}, {v(c,2)}, {v(tt,2)}""")
                k += 1
        A(f"""  s_lshl_b32 s{sT}, s{sW}, 11
  s_add_u32 s{sT}, s{sT}, {OUTS}
  v_add_u32 v{self.vST}, s{sT}, v{self.vST}""")
        for sl in range(3): A(f"  v_accvgpr_read_b32 v{self.vOD[sl]}, {a_(aOUT+sl)}")
    def final_poll(self):
        A = self.A
        r = 244; t = 86
        A(f"""  s_cmp_lg_u32 s{sW}, 0
  s_cbranch_scc1 L_nofin
  s_and_b32 s{sT}, s2, {NREP-1}
  s_lshl_b32 s{sT}, s{sT}, 11
  s_add_u32 s{sT}, s{sT}, {FIN_OFF}
  v_add_u32 v{t}, s{sT}, v{vLANE16}
  s_mov_b32 s{sT+2}, 0""")
        for k in range(6): A(f"  v_lshlrev_b32 v{80+k}, 16, v{80+k}")
        A(f"""  s_mov_b32 s{sT+10}, {hex(f2u(1.0/(ALPHA*ALPHA)))}
  v_mov_b32 v{t+1}, {hex(f2u(1e-6))}
  v_mov_b32 v{t+4}, {hex(f2u(1.0/384))}
  v_mov_b32 v{t+3}, {hex(f2u(1.0/ALPHA))}
  v_lshrrev_b32 v{t+5}, 2, v{vLANE16}
  v_add_u32 v{t+5}, {SP}, v{t+5}
L_poll2:
  global_load_dwordx4 {v(r,4)}, v{t}, s[20:21] sc1
  global_load_dwordx4 {v(r+4,4)}, v{t}, s[20:21] offset:1024 sc1
  s_add_u32 s{sT+2}, s{sT+2}, 1
  s_waitcnt vmcnt(0)
  v_cmp_eq_u32 vcc, s{sTAG}, v{r+3}
  v_cmp_eq_u32 s[{sT+4}:{sT+5}], s{sTAG}, v{r+7}
  s_and_b64 vcc, vcc, s[{sT+4}:{sT+5}]
  s_cmp_eq_u64 vcc, exec
  s_cbranch_scc1 L_fin_go
  s_cmp_lt_u32 s{sT+2}, {self.o.spin}
  s_cbranch_scc1 L_poll2
L_fin_go:""")
        vals = [r, r+1, r+2, r+4, r+5, r+6]
        for x in vals: A(f"  v_fma_f32 v{x}, v{x}, s{sT+10}, v{t+1}")
        for x in vals: A(f"  v_sqrt_f32 v{x}, v{x}")
        A(f"""  v_add_f32 v{t+2}, v{r}, v{r+1}
  v_add_f32 v{r+3}, v{r+2}, v{r+4}
  v_add_f32 v{r+7}, v{r+5}, v{r+6}
  v_add_f32 v{t+2}, v{t+2}, v{r+3}
  v_add_f32 v{t+2}, v{t+2}, v{r+7}""")
        gm = [f"  v_mul_f32 v{80+k}, v{80+k}, v{x}" for k, x in enumerate(vals)]
        for k, d in enumerate(("row_shr:1 row_mask:0xf", "row_shr:2 row_mask:0xf", "row_shr:4 row_mask:0xf", "row_shr:8 row_mask:0xf", "row_bcast:15 row_mask:0xa", "row_bcast:31 row_mask:0xc")):
            A(gm[k])
            A(f"  v_add_f32_dpp v{t+2}, v{t+2}, v{t+2} {d} bank_mask:0xf")
        A(f"""  v_readlane_b32 s{sT+4}, v{t+2}, 63
  v_fma_f32 v{t+2}, s{sT+4}, v{t+4}, v{t+1}
  v_rcp_f32 v{t+2}, v{t+2}
  s_nop 0
  v_mul_f32 v{t+2}, v{t+2}, v{t+3}""")
        for k in range(6): A(f"  v_fma_f32 v{80+k}, v{80+k}, v{t+2}, v{t+3}")
        for z in range(2):
            for c in range(3): A(f"  ds_write_b32 v{t+5}, v{80+3*z+c} offset:{256*z + 512*c}")
        A(f"""  s_cmp_lg_u32 s2, 0
  s_cbranch_scc1 L_noepoch
  v_mov_b32 v{t}, {EPOCH_OFF}
  v_mov_b32 v{t+1}, s{sTAG}
  s_mov_b64 exec, 1
  global_store_dword v{t}, v{t+1}, s[20:21] sc1
  s_mov_b64 exec, -1
L_noepoch:
L_nofin:
  s_waitcnt lgkmcnt(0)
  s_barrier"""); self.lg.done = self.lg.n

    def prep_round(self, a, pk):
        L = []
        for b in range(2):
            for ul in range(3):
                M = []
                for z in range(2):
                    d = self.dw2(2*ul+z, a, b); s_ = self.spr(2*ul+z)
                    if pk:
                        M.append(('v', f"  v_pk_mul_f32 {v(d,2)}, {v(d,2)}, {v(s_,2)}"))
                        M.append(('v', f"  v_pk_mul_f32 {v(d+2,2)}, {v(d+2,2)}, {v(s_+2,2)}"))
                    else:
                        for j in range(4): M.append(('v', f"  v_mul_f32 v{d+j}, v{d+j}, v{s_+j}"))
                d0 = self.dw2(2*ul, a, b); d1 = self.dw2(2*ul+1, a, b)
                M.append(('v', f"  v_cvt_pk_bf16_f32 v{d0}, v{d0}, v{d0+1}"))
                M.append(('v', f"  v_cvt_pk_bf16_f32 v{d0+1}, v{d0+2}, v{d0+3}"))
                M.append(('v', f"  v_cvt_pk_bf16_f32 v{d0+2}, v{d1}, v{d1+1}"))
                M.append(('v', f"  v_cvt_pk_bf16_f32 v{d0+3}, v{d1+2}, v{d1+3}"))
                M.append(('w', lambda d0=d0, b=b, ul=ul: setattr(self, 'prep_id', self.ds(f"  ds_write_b128 v{self.vW2W}, {v(d0,4)} offset:{(2*a+b)*12288 + ul*1024}"))))
                L += M
        return L
    def w2_prep0(self):
        A = self.A
        ids = [self.ds(f"  ds_read_b128 {v(self.spr(tl),4)}, v{self.vSPA} offset:{64*tl}") for tl in range(6)]
        self.wait(lg=ids[-1])
        items = self.prep_round(0, True)
        for kind, x in items + self.prep_round(1, True):
            if kind == 'v' and 'pk_mul' in x: A(x)
        for kind, x in items:
            if kind == 'w': x()
            elif 'pk_mul' not in x: A(x)
        self.drain(); A("  s_barrier")

    def gemm2(self):
        A = self.A
        A("; ==== gemm2")
        ACC = [100, 148, 100]; ACL = [140, 172, 140]; RING = 124; NR = 4; TQ = [180, 184]; RQ = [188, 192]
        steps = [(a, u, b) for a in range(3) for u in range(12) for b in range(2)]
        rid = {}
        def rd(k):
            a, u, b = steps[k]
            rid[k] = self.ds(f"  ds_read_b128 {v(RING+4*(k%NR),4)}, v{self.vB2+u//3} offset:{(2*a+b)*12288 + (u%3)*1024}")
        def epilogue_direct(a):
            L = []
            for sl in range(3):
                acc = ACC[a] + sl * 8; tq = TQ[sl % 2]
                for j in range(4): L.append(f"  v_cvt_pk_bf16_f32 v{tq+j}, v{acc+2*j}, v{acc+2*j+1}")
                L.append(lambda sl=sl, tq=tq: self.vmem(f"  buffer_store_dwordx4 {v(tq,4)}, v{self.vOD[sl]}, {srd(sO)}, 0 offen offset:{64*a}{self.o.stmod}"))
            return L
        def epilogue_staged(a):
            L = []; st = {}
            Rq = [188, 192, 196]
            for sl in range(3):
                acc = ACC[a] + sl * 8; tq = TQ[sl % 2]
                for j in range(4): L.append(f"  v_cvt_pk_bf16_f32 v{tq+j}, v{acc+2*j}, v{acc+2*j+1}")
                L.append(lambda tq=tq: self.ds(f"  ds_write_b128 v{self.vST}, {v(tq,4)}"))
                L.append(lambda sl=sl: st.__setitem__(sl, self.ds(f"  ds_read_b128 {v(Rq[sl],4)}, v{self.vRD}")))
            for sl in range(3): L.append(lambda sl=sl: self.out_store(a, sl, Rq[sl], st[sl]))
            return L
        def leftover_write(a):
            l = ACL[a]
            def go():
                A("  s_mov_b32 exec_lo, 0x000f000f\n  s_mov_b32 exec_hi, 0x000f000f")
                self.ds(f"  ds_write_b128 v{self.vLP}, {v(l,4)} offset:{128*a}")
                self.lw_id = self.ds(f"  ds_write_b128 v{self.vLP}, {v(l+4,4)} offset:{128*a+16}")
                A("  s_mov_b64 exec, -1")
            return [go]
        def norm(L): return [x if isinstance(x, tuple) else (('n', None) if x is None else (('v', x))) for x in L]
        def pop(fill, wslot=False):
            if not fill: return
            kind, f = fill[0]
            if kind == 'w' and not wslot:
                return
            fill.pop(0)
            if f is None: return
            f() if callable(f) else A(f)
        def flush(fill):
            while fill: pop(fill, True)
        p1 = [x for x in self.prep_round(1, True) if not (x[0] == 'v' and 'pk_mul' in x[1])]
        p2all = self.prep_round(2, False)
        p2m = [x for x in p2all if x[0] == 'v' and 'v_mul_f32' in x[1]]
        p2 = [x for x in p2all if not (x[0] == 'v' and 'v_mul_f32' in x[1])]
        fill = list(p1) + p2m
        ok = {0: False, 1: False}
        A("; @nopad")
        for k in range(NR - 1): rd(k)
        for k, (a, u, b) in enumerate(steps):
            if u == 0 and b == 0:
                A(f"; ---- gemm2 round {a}")
                if self.o.g2stamp and a > 0: self.stamp(f'g2r{a-1}')
                if a == 1: fill = norm(epilogue_direct(0)) + fill
                if a == 2: fill = norm(epilogue_direct(1)) + fill
            nk = k + NR - 1
            if (a == 0 and u == 10 and b == 1) or (a == 1 and u == 10 and b == 1):
                if a == 1: flush(fill)
                assert not any(k_ == 'w' for k_, _ in fill)
                self.wait(lg=max(self.prep_id, self.lw_id)); A("  s_barrier"); ok[a] = True
            self.wait(lg=rid[k])
            fr = v(RING + 4*(k % NR), 4)
            first = (u == 0 and b == 0)
            for sl in range(3):
                d = ACC[a] + sl*8 + 4*b
                C = v(self.xc(sl, a, b), 4) if u == 0 else v(d, 4)
                A(f"  v_mfma_f32_16x16x32_bf16 {v(d,4)}, {fr}, {a_(H[sl]+4*u,4)}, {C}")
                if sl == 0 and nk < len(steps):
                    na = steps[nk][0]
                    if na != a and not ok[a]: raise RuntimeError("next round fragments not published yet")
                    rd(nk)
                    if not first: pop(fill)
                elif not first:
                    pop(fill, wslot=(sl == 1))
                    if sl == 1: pop(fill)
            if u < 3:
                d = ACL[a] + 4*b
                A(f"  v_mfma_f32_16x16x32_bf16 {v(d,4)}, {fr}, {a_(HL+4*u,4)}, " + ("0" if u == 0 else v(d,4)))
                if not first: pop(fill); pop(fill)
            if u == 4 and b == 1: fill = [('w', leftover_write(a)[0])] + fill
            if a == 1 and u == 1 and b == 1: fill = fill + p2; p2 = []
            if a == 2 and u == 7 and b == 0:
                flush(fill)
                self.wait(lg=self.lw_id); A("  s_barrier")
                fill = norm(self.leftover_combine())
        flush(fill)
        A("; @pad")
        if self.o.g2stamp: self.stamp('g2r2')
        A("  s_nop 4")
        ep = norm(epilogue_staged(2))
        flush(ep)

    def out_store(self, a, sl, rq, lid):
        self.wait(lg=lid)
        self.vmem(f"  buffer_store_dwordx4 {v(rq,4)}, v{self.vOUT+sl}, {srd(sO)}, 0 offen offset:{64*a}{self.o.stmod}")

    def leftover_combine(self):
        A = self.A
        L = []; st = {}
        L += [f"  v_lshrrev_b32 v200, 4, v{vLANE16}",
              f"  s_mul_i32 s{sT}, s{sW}, 384", f"  s_add_u32 s{sT}, s{sT}, {LP}",
              f"  v_min_u32 v200, 47, v200",
              f"  v_lshlrev_b32 v201, 3, v200", f"  v_add_u32 v202, {CV}, v201", f"  v_add_u32 v201, s{sT}, v201",
              f"  s_mul_i32 s{sT}, s{sY0}, 224", f"  s_add_u32 s{sT}, s{sT}, s{sX0}", f"  s_add_u32 s{sT}, s{sT}, s{sW}", f"  s_mul_i32 s{sT}, s{sT}, 192",
              f"  v_lshlrev_b32 v203, 2, v200", f"  v_add_u32 v203, s{sT}, v203"]
        L.append(lambda: st.__setitem__('x', self.vmem(f"  buffer_load_dword v204, v203, {srd(sX)}, 0 offen")))
        for w in range(4): L.append(lambda w=w: self.ds(f"  ds_read_b64 {v(208+2*w,2)}, v201 offset:{w*1536}"))
        L.append(lambda: st.__setitem__('l', self.ds("  ds_read_b64 v[216:217], v202")))
        L += [None] * 8
        L.append(lambda: self.wait(lg=st['l']))
        L += ["  v_add_f32 v208, v208, v210", "  v_add_f32 v209, v209, v211", "  v_add_f32 v212, v212, v214", "  v_add_f32 v213, v213, v215",
              "  v_add_f32 v208, v208, v216", "  v_add_f32 v209, v209, v217", "  v_add_f32 v208, v208, v212", "  v_add_f32 v209, v209, v213"]
        L += [None] * 6
        L.append(lambda: self.wait(vm=st['x']))
        L += ["  v_lshlrev_b32 v216, 16, v204", "  v_and_b32 v217, 0xffff0000, v204", "  v_add_f32 v208, v208, v216", "  v_add_f32 v209, v209, v217",
              "  v_cvt_pk_bf16_f32 v220, v208, v209"]
        def store():
            A("  s_mov_b32 exec_hi, 0xffff")
            self.vmem(f"  buffer_store_dword v220, v203, {srd(sO)}, 0 offen{self.o.stmod}")
            A("  s_mov_b32 exec_hi, -1")
        L.append(store)
        return L

    def stamp_dump(self):
        if not self.o.prof: return
        A = self.A
        A(f"""  s_mov_b64 exec, -1
  s_memrealtime s[78:79]
  s_lshl_b32 s{sT}, s2, 2
  s_add_u32 s{sT}, s{sT}, s{sW}
  s_lshl_b32 s{sT}, s{sT}, 7
  s_add_u32 s{sT}, s{sT}, {DBG_OFF}
  v_mov_b32 v5, s{sT}
  s_waitcnt lgkmcnt(0)
  s_mov_b64 exec, 1""")
        for k in range(len(self.stamps)):
            A(f"  v_mov_b32 v6, s{80+k}\n  global_store_dword v5, v6, s[20:21] offset:{4*k}")
        A(f"  v_mov_b32 v6, s78\n  global_store_dword v5, v6, s[20:21] offset:{4*30}")
        A(f"  v_mov_b32 v6, s49\n  global_store_dword v5, v6, s[20:21] offset:{4*31}")
        if self.o.dbgstamp:
            A(f"  s_cmp_lg_u32 s2, 100\n  s_cbranch_scc1 L_nodbg\n  s_cmp_lg_u32 s{sW}, 0\n  s_cbranch_scc1 L_nodbg\n  v_mov_b32 v7, 0")
            for j in range(min(16, len(self.stamps) - 1)):
                A(f"  s_sub_u32 s78, s{81+j}, s80\n  v_mov_b32 v6, s78\n  global_store_dword v7, v6, s[18:19] offset:{4*j}")
            A("L_nodbg:")
    def dump_regs(self, label, regs, wsoff):
        A = self.A
        n = len(regs)
        A(f"""  s_waitcnt vmcnt(0) lgkmcnt(0)
  v_lshlrev_b32 v6, 2, v0
  s_mul_i32 s{sT}, s2, {n*1024}
  s_add_u32 s{sT}, s{sT}, {wsoff}
  v_add_u32 v6, s{sT}, v6""")
        for k, r in enumerate(regs):
            A(f"  global_store_dword v6, v{r}, s[20:21]\n  v_add_u32 v6, 1024, v6")
            if k % 32 == 31: A("  s_waitcnt vmcnt(0)")
        A("  s_waitcnt vmcnt(0)")

    def build(self):
        o = self.o; A = self.A
        self.prologue()
        if o.stop == 'ln':
            self.dump_regs('yhat', list(range(YH[0], YH[0]+36)) + [YL[0]+k for k in range(4)] + [YL[1]+k for k in range(4)] + [YL[2]+k for k in range(4)], DBG_OFF)
            A("  s_branch L_end")
        self.gelu()
        t = self.publish()
        self.stamp('gelu')
        if o.stop == 'gelu':
            self.dump_regs('h', list(range(100, 256)) + list(range(ST, ST+6)), DBG_OFF)
            A("  s_branch L_end")
        self.publish2(t)
        self.stamp('pub')
        self.wait_work_a()
        self.stamp('wwa')
        self.wait_work_b()
        self.stamp('wwb')
        self.final_poll()
        self.stamp('fin')
        self.w2_prep0()
        self.stamp('prep')
        self.gemm2()
        self.stamp('gemm2')
        self.stamp_dump()
        A("L_end:\n  s_endpgm")
        body = A.finalize(verbose=not o.quiet, align=o.align)
        hdr = f"""; Fused block: 5x5 depthwise conv + LayerNorm + GEMM(96->384) + GELU + GRN + GEMM(384->96) + residual.
; @launch grid=(256,1,1) block=(256,1,1) lds={LDS_BYTES}
.amdgcn_target "amdgcn-amd-amdhsa--gfx950"
.text
.globl {KNAME}
.p2align 8
.type {KNAME},@function
{KNAME}:
"""
        tail = f""".section .rodata,"a"
.p2align 6
.amdhsa_kernel {KNAME}
  .amdhsa_next_free_vgpr 512
  .amdhsa_next_free_sgpr 102
  .amdhsa_accum_offset 256
  .amdhsa_group_segment_fixed_size 0
  .amdhsa_kernarg_size 72
  .amdhsa_user_sgpr_count 2
  .amdhsa_user_sgpr_kernarg_segment_ptr 1
  .amdhsa_system_sgpr_workgroup_id_x 1
  .amdhsa_float_denorm_mode_32 3
.end_amdhsa_kernel
"""
        if o.names: open(o.names, 'w').write(",".join(self.stamps))
        return hdr + body + tail

if __name__ == '__main__':
    ap = argparse.ArgumentParser()
    ap.add_argument('-o', default='out.s')
    ap.add_argument('--stop', default='')
    ap.add_argument('--spin', type=int, default=200000)
    ap.add_argument('--quiet', action='store_true')
    ap.add_argument('--prof', action='store_true')
    ap.add_argument('--dbgstamp', action='store_true')
    ap.add_argument('--align', action='store_true')
    ap.add_argument('--lnsplit', action='store_true')
    ap.add_argument('--stmod', default='')
    ap.add_argument('--names', default='')
    ap.add_argument('--gpad', type=int, default=-1)
    ap.add_argument('--dmapos', type=int, default=0)
    ap.add_argument('--w1mask', action='store_true')
    ap.add_argument('--tlb', action='store_true')
    ap.add_argument('--g2stamp', action='store_true')
    ap.add_argument('--blkstamp', action='store_true')
    ap.add_argument('--nojobs', action='store_true')
    ap.add_argument('--codekb', type=int, default=0)
    o = ap.parse_args()
    if o.stmod: o.stmod = ' ' + o.stmod
    g = G(o)
    open(o.o, 'w').write(g.build())
    print("wrote", o.o)
```

```python
import sys, struct, math, argparse
from asmlib import Asm

def f2u(x): return struct.unpack('<I', struct.pack('<f', x))[0]
KNAME = "standalone__modern_conv_block_slak__vision_kernel"

C1 = -2.0 * math.sqrt(2.0 / math.pi) * math.log2(math.e)
C2 = C1 * 0.044715
ALPHA = -((-C2) ** (1.0 / 3.0))
BETA = C1 / ALPHA
W1L = 0
W1P = 800
YB = 76800
XB = YB + 7680
XROW = 3840
DWT = XB + 18 * XROW
W2S = YB
CP = YB + 73728
CV = CP + 1536
GBL = DWT
PS = DWT + 1536
SP = PS + 6144
RES = 0
OUTS = YB
LP = YB + 8192
W2F = 0
LDS_BYTES = 163840
EPOCH_OFF = 0
L1_OFF = 4096
FIN_OFF = L1_OFF + 128 * 4096
NREP = 16
TAG_STEP = 0x9E3779B1
DBG_OFF = 0x200000
sX, sDW, sW1, sW2, sO = 24, 28, 32, 36, 40
sW, sX0, sY0, sTAG = 44, 45, 46, 47
sBETA = 50
sM0, sM1, sM2, sM3 = 52, 54, 56, 58
sDIAG, sLEFT, sBIG = 60, 62, 64
sXM, sRB = 65, 48
sT = 66
def srd(b): return f"s[{b}:{b+3}]"
def sp(b): return f"s[{b}:{b+1}]"
def v(a, n=1): return f"v{a}" if n == 1 else f"v[{a}:{a+n-1}]"
def a_(a, n=1): return f"a{a}" if n == 1 else f"a[{a}:{a+n-1}]"
vLANE16, vN, vQ, vAADR = 1, 2, 3, 4
YH = [8, 20, 32]
P0, P1, TT, AS, DP, ST = 44, 56, 68, 80, 84, 87
H = [100, 148, 196]; HL = 244
YL = [140, 144, 188]
P0L, P1L, TTL = 192, 236, 240
aNAT, aFR, aSEL, aONE, aOUT = 0, 72, 84, 92, 96
aRES = 32
aF, aG = 100, 196


class Track:
    def __init__(self): self.n = 0; self.done = 0
    def issue(self, k=1):
        self.n += k; return self.n
    def after(self, tid): return self.n - tid


class G:
    def __init__(self, opts):
        self.o = opts; self.A = Asm(); self.stamps = []
        self.vm = Track(); self.lg = Track(); self.w2id = 0
    def stamp(self, name):
        if not self.o.prof: return
        if len(self.stamps) >= 22: return
        k = len(self.stamps); self.stamps.append(name)
        self.A(f"  s_memtime s[78:79]\n  s_waitcnt lgkmcnt(0)\n  s_mov_b32 s{80+k}, s78"); self.lg.done = self.lg.n
    def ds(self, text):
        if self.lg.n - self.lg.done >= 15:
            self.A("  s_waitcnt lgkmcnt(13)"); self.lg.done = self.lg.n - 13
        self.A(text); return self.lg.issue()
    def drain(self, vm=False):
        self.A("  s_waitcnt " + ("vmcnt(0) " if vm else "") + "lgkmcnt(0)"); self.lg.done = self.lg.n
    def vmem(self, text):
        self.A(text); return self.vm.issue()
    def wait(self, vm=None, lg=None):
        p = []
        if vm is not None: p.append(f"vmcnt({min(63, self.vm.after(vm))})")
        if lg is not None:
            n = self.lg.after(lg); assert n <= 15, n
            p.append(f"lgkmcnt({n})"); self.lg.done = max(self.lg.done, lg)
        self.A("  s_waitcnt " + " ".join(p))
    def interleave(self, main, fill, per=1, start=0):
        fill = list(fill)
        for k, m in enumerate(main):
            m() if callable(m) else self.A(m)
            if k >= start:
                for _ in range(per):
                    if fill:
                        f = fill.pop(0); f() if callable(f) else self.A(f)
        return fill
    def emit(self, l):
        for f in l: f() if callable(f) else self.A(f)

    def xrow(self, r):
        A = self.A
        if r in (0, 1, 16, 17):
            A(f"""  s_add_u32 s{sT+1}, s{sRB}, {r*43008}
  s_cmp_eq_u32 s{sY0}, {0 if r < 2 else 210}
  s_cselect_b32 s{sT+1}, s{sBIG}, s{sT+1}
  s_add_u32 m0, s{sXM}, {r*XROW}""")
            A("  s_nop 0")
        else:
            A(f"  s_add_u32 m0, s{sXM}, {r*XROW}\n  s_add_u32 s{sT+1}, s{sRB}, {r*43008}")
        self.xid[r] = self.vmem(f"  buffer_load_dwordx4 v10, {srd(sX)}, s{sT+1} offen lds")
    def w1row(self, k):
        A = self.A
        A(f"  s_add_u32 m0, s{sT+10}, {k*W1P}\n  s_add_u32 s{sT}, s{sT+11}, {k*768}")
        msk = (k == 23) or self.o.w1mask
        if msk: A("  s_mov_b32 exec_hi, 0xffff")
        self.w1id = self.vmem(f"  buffer_load_dwordx4 v7, {srd(sW1)}, s{sT} offen lds")
        if msk: A("  s_mov_b32 exec_hi, -1")
    def job_gb(self):
        A = self.A
        A(f"""  s_cmp_eq_u32 s{sW}, 1
  s_cselect_b32 s72, s14, s12
  s_cselect_b32 s73, s15, s13
  s_mul_i32 s{sT+2}, s{sW}, 768
  s_add_u32 s{sT+2}, s{sT+2}, {GBL}
  s_and_b32 s73, s73, 0xffff
  s_mov_b32 s74, 768
  s_mov_b32 s75, 0x20000
  s_mov_b32 m0, s{sT+2}
  s_cmp_lt_u32 s{sW}, 2
  s_cbranch_scc0 L_nogb
  s_mov_b32 exec_hi, 0xffff
  buffer_load_dwordx4 v{vLANE16}, s[72:75], 0 offen lds
  s_mov_b32 exec_hi, -1
L_nogb:""")
    def job_touch_w2(self):
        A = self.A
        A(f"""  s_lshr_b32 s{sT}, s2, 3
  s_lshl_b32 s{sT}, s{sT}, 2
  s_add_u32 s{sT}, s{sT}, s{sW}
  s_lshl_b32 s{sT}, s{sT}, 10""")
        self.vmem(f"  buffer_load_dwordx4 a[244:247], v{vLANE16}, {srd(sW2)}, s{sT} offen")
    def job_touch_code(self):
        A = self.A
        n = self.o.codekb
        A(f"""  s_getpc_b64 s[{sT+2}:{sT+3}]
L_pcref:
  s_sub_u32 s{sT+2}, s{sT+2}, L_pcref-{KNAME}
  s_subb_u32 s{sT+3}, s{sT+3}, 0
  s_lshr_b32 s{sT}, s2, 3
  s_lshl_b32 s{sT}, s{sT}, 2
  s_add_u32 s{sT}, s{sT}, s{sW}
  s_lshl_b32 s{sT}, s{sT}, 10
  s_min_u32 s{sT}, s{sT}, L_end-{KNAME}-1020
  v_add_u32 v20, s{sT}, v{vLANE16}
  v_mov_b32 v23, s{sT+3}
  v_add_co_u32 v22, vcc, s{sT+2}, v20
  v_addc_co_u32 v23, vcc, 0, v23, vcc""")
        self.vmem(f"  global_load_dwordx4 a[248:251], v[22:23], off")
    def job_touch_tlb(self):
        A = self.A
        A(f"""  s_mul_i32 s{sT}, s{sY0}, 224
  s_add_u32 s{sT}, s{sT}, s{sX0}
  s_mul_i32 s{sT}, s{sT}, 192
  v_mov_b32 v11, {L1_OFF}""")
        self.vmem(f"  buffer_load_dword a252, v{vLANE16}, {srd(sO)}, s{sT} offen")
        self.vmem(f"  global_load_dword a253, v11, s[20:21] sc1")
    def job(self):
        if self.jobs: self.jobs.pop(0)()

    def setup(self):
        A = self.A; o = self.o
        self.xid = {}
        A("; ==== setup")
        A("  s_cmp_ge_u32 s2, 256\n  s_cbranch_scc1 L_end")
        if o.prof:
            A("  s_memrealtime s[78:79]\n  s_waitcnt lgkmcnt(0)\n  s_mov_b32 s49, s78\n  s_memtime s[78:79]\n  s_waitcnt lgkmcnt(0)\n  s_mov_b32 s80, s78")
            self.stamps.append('start')
        A(f"""
  s_load_dwordx16 s[4:19], s[0:1], 0
  s_load_dwordx2 s[20:21], s[0:1], 64
  v_lshrrev_b32 v5, 6, v0
  v_and_b32 v6, 63, v0
  v_readfirstlane_b32 s{sW}, v5
  v_lshlrev_b32 v{vLANE16}, 4, v6
  v_and_b32 v{vN}, 15, v6
  v_lshrrev_b32 v{vQ}, 4, v6""")
        if o.codekb: self.job_touch_code()
        A(f"""  s_and_b32 s{sT}, s2, 7
  s_lshr_b32 s{sT+1}, s2, 3
  s_and_b32 s{sT+2}, s{sT}, 3
  s_lshl_b32 s{sT+2}, s{sT+2}, 2
  s_and_b32 s{sT+3}, s{sT+1}, 3
  s_add_u32 s{sT+2}, s{sT+2}, s{sT+3}
  s_mul_i32 s{sX0}, s{sT+2}, 14
  s_lshr_b32 s{sT}, s{sT}, 2
  s_lshl_b32 s{sT}, s{sT}, 3
  s_lshr_b32 s{sT+1}, s{sT+1}, 2
  s_add_u32 s{sT}, s{sT}, s{sT+1}
  s_mul_i32 s{sY0}, s{sT}, 14
  s_mov_b32 s{sBIG}, 0x40000000
  s_lshl_b32 s{sT+7}, s{sW}, 6
  s_min_u32 s{sT+7}, s{sT+7}, 176
  v_add_u32 v11, s{sT+7}, v6
  v_mul_u32_u24 v7, 5042, v11
  v_lshrrev_b32 v7, 16, v7
  v_mul_u32_u24 v8, 13, v7
  v_sub_u32 v8, v11, v8
  s_sub_i32 s{sT}, s{sX0}, 2
  v_add_u32 v9, s{sT}, v7
  v_mul_u32_u24 v10, 192, v9
  v_lshl_add_u32 v10, v8, 4, v10
  s_movk_i32 s{sT+1}, 224
  v_cmp_gt_u32 vcc, s{sT+1}, v9
  v_cmp_gt_u32 s[{sT+2}:{sT+3}], 12, v8
  s_movk_i32 s{sT+1}, 234
  v_cmp_gt_u32 s[{sT+4}:{sT+5}], s{sT+1}, v11
  v_mov_b32 v11, s{sBIG}
  v_lshlrev_b32 v12, 4, v0
  v_subrev_u32 v13, 960, v12
  s_and_b64 vcc, vcc, s[{sT+2}:{sT+3}]
  s_and_b64 vcc, vcc, s[{sT+4}:{sT+5}]
  v_cndmask_b32 v10, v11, v10, vcc
  v_cmp_le_u32 vcc, 60, v0
  v_add_u32 v12, 3136, v12
  s_lshl_b32 s{sT+7}, s{sT+7}, 4
  s_add_u32 s{sXM}, s{sT+7}, {XB}
  v_cndmask_b32 v13, v11, v13, vcc
  s_lshl_b32 s{sT+6}, s{sW}, 10
  s_add_u32 s{sT+6}, s{sT+6}, {DWT}
  s_sub_i32 s{sRB}, s{sY0}, 2
  s_mul_i32 s{sRB}, s{sRB}, 43008
  s_waitcnt lgkmcnt(0)
""")
        def mksrd(base, ptr, n):
            A(f"""  s_mov_b32 s{base}, s{ptr}
  s_and_b32 s{base+1}, s{ptr+1}, 0xffff
  s_mov_b32 s{base+2}, {n}
  s_mov_b32 s{base+3}, 0x20000""")
        mksrd(sDW, 6, 4800); mksrd(sX, 4, 9633792)
        A(f"  s_mov_b32 m0, s{sT+6}\n  s_add_u32 s{sT+6}, s{sT+6}, 4096")
        self.vmem(f"  buffer_load_dwordx4 v13, {srd(sDW)}, 0 offen lds")
        A(f"  s_mov_b32 m0, s{sT+6}\n  s_nop 0")
        self.vmem(f"  buffer_load_dwordx4 v12, {srd(sDW)}, 0 offen lds")
        A(f"  s_mov_b32 m0, {DWT + 8192}\n  v_add_u32 v12, {8192 - 960}, v{vLANE16}")
        self.dwid = self.vmem(f"  buffer_load_dwordx4 v12, {srd(sDW)}, 0 offen lds")
        n0 = 7 if o.codekb else 8
        for r in range(n0): self.xrow(r)
        self.stamp('x0-7')
        self.jobs = [lambda r=r: self.xrow(r) for r in range(n0, 18)]
        rest = [lambda k=k: self.w1row(k) for k in range(24)]
        rest.insert(1, self.job_gb); rest.insert(6, self.job_touch_w2)
        self.jobs += rest
        A(f"  s_load_dword s{sTAG}, s[20:21], {EPOCH_OFF}")
        mksrd(sW1, 8, 73728); mksrd(sW2, 10, 73728); mksrd(sO, 16, 9633792)
        A(f"""  s_mul_i32 s{sT+10}, s{sW}, {24*W1P}
  s_add_u32 s{sT+10}, s{sT+10}, {W1L}
  s_mul_i32 s{sT+11}, s{sW}, {24*768}
  s_mov_b32 s{sBETA}, {hex(f2u(BETA))}
  s_mov_b32 s{sBETA+1}, {hex(f2u(BETA))}
  s_mov_b32 s{sM0}, 0x11111111
  s_mov_b32 s{sM0+1}, 0x11111111
  s_mov_b32 s{sM1}, 0x22222222
  s_mov_b32 s{sM1+1}, 0x22222222
  s_mov_b32 s{sM2}, 0x44444444
  s_mov_b32 s{sM2+1}, 0x44444444
  s_mov_b32 s{sM3}, 0x88888888
  s_mov_b32 s{sM3+1}, 0x88888888
  s_mov_b32 s{sDIAG}, 0x00f0000f
  s_mov_b32 s{sDIAG+1}, 0xf0000f00
  s_mov_b32 s{sLEFT}, 0x000f000f
  s_mov_b32 s{sLEFT+1}, 0x000f000f
  v_subrev_u32 v7, 32, v{vLANE16}
  v_cmp_gt_u32 vcc, 48, v6
  v_subrev_u32 v8, 48, v6
  v_cndmask_b32 v7, v7, v{vLANE16}, vcc
  v_cmp_gt_u32 vcc, 2, v8
  s_nop 1
  v_cndmask_b32 v7, v7, v11, vcc
  v_mov_b32 v18, 0x3f803f80""")
        for j in range(4): A(f"  v_accvgpr_write_b32 {a_(aONE+j)}, v18")
        A(f"""  v_and_b32 v14, 1, v{vN}
  v_lshlrev_b32 v14, 4, v14
  v_mov_b32 v15, 0x3f80
  v_lshlrev_b32 v14, v14, v15
  v_lshrrev_b32 v15, 2, v{vN}
  v_cmp_eq_u32 vcc, v15, v{vQ}
  v_bfe_u32 v15, v{vN}, 1, 1
  v_cndmask_b32 v14, 0, v14, vcc
  v_cmp_eq_u32 vcc, 0, v15
  v_mov_b32 v18, 0
  v_cndmask_b32 v16, 0, v14, vcc
  v_cndmask_b32 v17, v14, 0, vcc
  v_accvgpr_write_b32 {a_(aSEL+0)}, v16
  v_accvgpr_write_b32 {a_(aSEL+1)}, v17
  v_accvgpr_write_b32 {a_(aSEL+2)}, v18
  v_accvgpr_write_b32 {a_(aSEL+3)}, v18
  v_accvgpr_write_b32 {a_(aSEL+4)}, v18
  v_accvgpr_write_b32 {a_(aSEL+5)}, v18
  v_accvgpr_write_b32 {a_(aSEL+6)}, v16
  v_accvgpr_write_b32 {a_(aSEL+7)}, v17""")
        self.conv_addr()
        self.ln_addrs()
        self.late_addrs()
        self.stamp('precomp')

    cA, cIDX, cBF, cBG0, cBG1, cYW = 44, 92, 93, 94, 95, 96
    cD = [[208, 212, 216], [220, 224, 228]]
    cT = 232
    cAF, cAG, cML, cMH = 240, 241, 242, 243
    vLN = {'L': 97, 0: 98, 1: 99, 2: 5}
    vRES = [238, 239, 204]

    def conv_addr(self):
        A = self.A; t = 100
        A(f"""; conv addresses
  v_lshrrev_b32 v{t}, 3, v{vN}
  v_and_b32 v{t+1}, 7, v{vN}
  v_lshrrev_b32 v{t+2}, 1, v{vQ}
  v_sub_u32 v{t+2}, v{t+2}, v{t}
  v_add_u32 v{t+2}, 1, v{t+2}
  v_mul_u32_u24 v{t+2}, 960, v{t+2}
  v_and_b32 v{t+3}, 1, v{vQ}
  v_mul_u32_u24 v{t+3}, 384, v{t+3}
  v_add_u32 v{t+2}, v{t+2}, v{t+3}
  v_lshl_add_u32 v{t+2}, v{t+1}, 1, v{t+2}
  s_mul_i32 s{sT}, s{sW}, 48
  s_add_u32 s{sT+1}, s{sT}, {DWT}
  v_add_u32 v{self.cAF}, s{sT+1}, v{t+2}
  v_lshlrev_b32 v{t+3}, 1, v{vQ}
  v_sub_u32 v{t+3}, v{t+3}, v{t}
  v_add_u32 v{t+3}, 1, v{t+3}
  v_mul_u32_u24 v{t+3}, 960, v{t+3}
  v_lshl_add_u32 v{t+3}, v{t+1}, 1, v{t+3}
  s_add_u32 s{sT+1}, s{sT+1}, 768
  v_add_u32 v{self.cAG}, s{sT+1}, v{t+3}
  v_cmp_gt_u32 vcc, 4, v{t+1}
  v_and_b32 v{t+4}, 3, v{t+1}
  v_add_u32 v{t+5}, 1, v{t+4}
  v_and_b32 v{t+5}, 3, v{t+5}
  v_lshl_or_b32 v{t+4}, v{t+5}, 2, v{t+4}
  s_movk_i32 s{sT+2}, 0x1111
  v_mul_u32_u24 v{self.cIDX}, s{sT+2}, v{t+4}
  v_cndmask_b32 v{self.cML}, 0, -1, vcc
  v_not_b32 v{self.cMH}, v{self.cML}
  v_add_u32 v{t+6}, v{vN}, v{vQ}
  v_mul_u32_u24 v{t+6}, 208, v{t+6}
  s_add_u32 s{sT+1}, s{sT}, {XB}
  v_add_u32 v{self.cBF}, s{sT+1}, v{t+6}
  v_mul_u32_u24 v{t+6}, 208, v{vN}
  s_add_u32 s{sT+2}, s{sT+1}, {4*208}
  v_add_u32 v{t+8}, s{sT+2}, v{t+6}
  v_mul_u32_u24 v{t+7}, {XROW}, v{vQ}
  v_add_u32 v{self.cBG0}, v{t+8}, v{t+7}
  v_min_u32 v{t+7}, 1, v{vQ}
  v_add_u32 v{t+7}, 4, v{t+7}
  v_mul_u32_u24 v{t+7}, {XROW}, v{t+7}
  v_add_u32 v{self.cBG1}, v{t+8}, v{t+7}
  v_lshrrev_b32 v{t+7}, 1, v{vQ}
  v_mul_u32_u24 v{t+7}, 3328, v{t+7}
  v_add_u32 v{t+6}, v{t+6}, v{t+7}
  v_and_b32 v{t+7}, 1, v{vQ}
  v_lshl_add_u32 v{t+6}, v{t+7}, 3, v{t+6}
  s_add_u32 s{sT+1}, s{sT}, {YB}
  v_add_u32 v{self.cYW}, s{sT+1}, v{t+6}""")

    def ln_addrs(self):
        A = self.A; t = 100
        for slot in ('L', 0, 1, 2):
            d = self.vLN[slot]
            if slot == 'L': A(f"  v_min_u32 v{t}, 3, v{vN}")
            else:
                A(f"  s_lshl_b32 s{sT}, s{sW}, 4\n  s_add_u32 s{sT}, s{sT}, {4 + 64*slot}\n  v_add_u32 v{t}, s{sT}, v{vN}")
            A(f"""  v_mul_u32_u24 v{t+1}, 4682, v{t}
  v_lshrrev_b32 v{t+1}, 16, v{t+1}
  v_mul_u32_u24 v{t+2}, 14, v{t+1}
  v_sub_u32 v{t}, v{t}, v{t+2}
  v_mul_u32_u24 v{d}, 208, v{t}
  v_lshl_add_u32 v{d}, v{vQ}, 3, v{d}
  v_lshrrev_b32 v{t+2}, 1, v{t+1}
  v_mul_u32_u24 v{t+2}, 7680, v{t+2}
  v_add_u32 v{d}, v{d}, v{t+2}
  v_and_b32 v{t+2}, 1, v{t+1}
  v_mul_u32_u24 v{t+2}, 3328, v{t+2}
  v_add_u32 v{d}, v{d}, v{t+2}
  v_add_u32 v{d}, {YB}, v{d}""")
            if slot != 'L':
                r_ = self.vRES[slot]
                A(f"""  v_mul_u32_u24 v{r_}, 208, v{t}
  v_mul_u32_u24 v{t+2}, {XROW}, v{t+1}
  v_add_u32 v{r_}, v{r_}, v{t+2}
  v_lshl_add_u32 v{r_}, v{vQ}, 4, v{r_}
  v_add_u32 v{r_}, {XB + 2*XROW + 2*208}, v{r_}""")

    SK = {n: k for k, n in enumerate(['p0', 'p1', 'p2', 'rd', 'st', 'o0', 'o1', 'o2', 'r0', 'r1', 'r2', 'd0', 'd1', 'd2',
                                      'b0', 'b1', 'b2', 'b3', 'w2w', 'lp', 'spa', 'w2r', 'br', 'gr',
                                      'ps0', 'ps1', 'ps2', 'ps3', 'ps4', 'ps5', 'psr', 'l1'])}
    def put(self, name, reg): self.A(f"  v_accvgpr_write_b32 a{self.SK[name]}, v{reg}")
    def get(self, reg, name): self.A(f"  v_accvgpr_read_b32 v{reg}, a{self.SK[name]}")
    def late_addrs(self):
        A = self.A
        t = 100
        A(f"  v_lshrrev_b32 v{t+3}, 4, v{vLANE16}")
        for jj in range(3):
            A(f"""  v_add_u32 v{t+4}, {64*jj}, v{t+3}
  v_mul_u32_u24 v{t+5}, 5462, v{t+4}
  v_lshrrev_b32 v{t+5}, 16, v{t+5}
  v_mul_u32_u24 v{t+6}, 12, v{t+5}
  v_sub_u32 v{t+6}, v{t+4}, v{t+6}
  v_lshrrev_b32 v{t+7}, 3, v{t+5}
  v_mul_u32_u24 v{t+7}, 3, v{t+7}
  v_xor_b32 v{t+6}, v{t+6}, v{t+7}
  v_mul_u32_u24 v{t+5}, 192, v{t+5}
  v_lshl_add_u32 v{t+5}, v{t+6}, 4, v{t+5}
  v_subrev_u32 v{t+5}, {1024*jj}, v{t+5}""")
            self.put(f'p{jj}', t + 5)
        if self.o.late == 0: self.late_mid()
        A(f"""  v_and_b32 v{t}, 3, v{vN}
  s_mul_i32 s{sT}, s{sW}, 6
  v_add_u32 v{t}, s{sT}, v{t}
  v_lshrrev_b32 v{t+1}, 2, v{vN}
  v_and_b32 v{t+2}, 1, v{t+1}
  v_lshrrev_b32 v{t+1}, 1, v{t+1}
  v_lshl_or_b32 v{t+1}, v{t+2}, 1, v{t+1}
  v_lshl_add_u32 v{t+1}, v{vQ}, 2, v{t+1}
  v_lshlrev_b32 v{t+1}, 2, v{t+1}
  s_mul_i32 s{sT}, s{sW}, 1536
  s_add_u32 s{sT}, s{sT}, {PS}
  v_add_u32 v{t+1}, s{sT}, v{t+1}""")
        for k in range(6):
            A(f"""  v_add_u32 v{t+2}, {4*k}, v{t}
  v_subrev_u32 v{t+3}, 24, v{t+2}
  v_min_u32 v{t+2}, v{t+2}, v{t+3}
  v_lshl_add_u32 v{t+2}, v{t+2}, 6, v{t+1}""")
            self.put(f'ps{k}', t + 2)
        A(f"  v_lshlrev_b32 v{t}, 2, v0\n  v_add_u32 v{t}, {PS}, v{t}"); self.put('psr', t)
        A(f"""  v_lshlrev_b32 v{t+1}, 12, v0
  s_lshl_b32 s{sT}, s2, 4
  s_add_u32 s{sT}, s{sT}, {L1_OFF}
  v_add_u32 v{t+1}, s{sT}, v{t+1}"""); self.put('l1', t + 1)

    def late_mid(self, t=100):
        A = self.A
        A(f"""  v_lshrrev_b32 v{t}, 6, v{vLANE16}
  v_bfe_u32 v{t+1}, v{vLANE16}, 4, 2
  v_bfe_u32 v{t+2}, v{t}, 1, 2
  v_xor_b32 v{t+2}, v{t+2}, v{t+1}
  v_lshlrev_b32 v{t+3}, 6, v{t}
  v_lshl_add_u32 v{t+3}, v{t+2}, 4, v{t+3}
  s_lshl_b32 s{sT+1}, s{sW}, 11
  s_add_u32 s{sT+1}, s{sT+1}, {OUTS}
  v_add_u32 v{t+3}, s{sT+1}, v{t+3}""")
        self.put('rd', t + 3)
        A(f"""  v_bfe_u32 v{t+3}, v{vN}, 1, 2
  v_xor_b32 v{t+3}, v{t+3}, v{vQ}
  v_lshlrev_b32 v{t+4}, 6, v{vN}
  v_lshl_add_u32 v{t+3}, v{t+3}, 4, v{t+4}""")
        self.put('st', t + 3)
        def pxoff(d, src, sl):
            A(f"""  s_lshl_b32 s{sT}, s{sW}, 4
  s_add_u32 s{sT}, s{sT}, {4 + 64*sl}
  v_add_u32 v{d}, s{sT}, v{src}
  v_mul_u32_u24 v{t+4}, 4682, v{d}
  v_lshrrev_b32 v{t+4}, 16, v{t+4}
  v_mul_u32_u24 v{t+5}, 14, v{t+4}
  v_sub_u32 v{d}, v{d}, v{t+5}
  v_add_u32 v{t+4}, s{sY0}, v{t+4}
  v_mul_u32_u24 v{t+4}, 224, v{t+4}
  v_add_u32 v{d}, v{d}, v{t+4}
  v_add_u32 v{d}, s{sX0}, v{d}
  v_mul_u32_u24 v{d}, 192, v{d}""")
        for sl in range(3):
            pxoff(t + 6, t, sl)
            A(f"  v_lshl_add_u32 v{t+7}, v{t+1}, 4, v{t+6}")
            self.put(f'o{sl}', t + 7)
            pxoff(t + 6, vN, sl)
            A(f"  v_lshl_add_u32 v{t+6}, v{vQ}, 4, v{t+6}")
            self.put(f'd{sl}', t + 6)
        for k in range(4):
            A(f"""  s_add_u32 s{sT}, s{sW}, {k}
  s_and_b32 s{sT}, s{sT}, 3
  s_mul_i32 s{sT}, s{sT}, 3072
  v_add_u32 v{t+6}, s{sT}, v{vLANE16}""")
            self.put(f'b{k}', t + 6)
        A(f"  s_mul_i32 s{sT}, s{sW}, 3072\n  v_add_u32 v{t+6}, s{sT}, v{vLANE16}"); self.put('w2w', t + 6)
        A(f"""  s_mul_i32 s{sT}, s{sW}, 1536
  s_add_u32 s{sT}, s{sT}, {LP}
  v_mul_u32_u24 v{t+6}, 384, v{vN}
  v_lshl_add_u32 v{t+6}, v{vQ}, 5, v{t+6}
  v_add_u32 v{t+6}, s{sT}, v{t+6}"""); self.put('lp', t + 6)
        A(f"""  s_mul_i32 s{sT}, s{sW}, 384
  s_add_u32 s{sT}, s{sT}, {SP}
  v_lshlrev_b32 v{t+6}, 4, v{vQ}
  v_add_u32 v{t+6}, s{sT}, v{t+6}"""); self.put('spa', t + 6)
        A(f"""  s_mul_i32 s{sT}, s{sW}, 18432
  s_add_u32 s{sT}, s{sT}, {W2S}
  v_lshrrev_b32 v{t+3}, 3, v{vN}
  v_mul_u32_u24 v{t+3}, 3, v{t+3}
  v_xor_b32 v{t+3}, v{t+3}, v{vQ}
  v_mul_u32_u24 v{t+6}, 192, v{vN}
  v_lshl_add_u32 v{t+6}, v{t+3}, 4, v{t+6}
  v_add_u32 v{t+6}, s{sT}, v{t+6}"""); self.put('w2r', t + 6)
        A(f"""  s_mul_i32 s{sT}, s{sW}, 192
  s_add_u32 s{sT}, s{sT}, {GBL + 768}
  v_lshlrev_b32 v{t+6}, 3, v{vQ}
  v_add_u32 v{t+6}, s{sT}, v{t+6}"""); self.put('br', t + 6)
        A(f"  v_lshrrev_b32 v{t+6}, 3, v{vLANE16}\n  v_add_u32 v{t+6}, {GBL}, v{t+6}"); self.put('gr', t + 6)

    def a_build(self):
        A = self.A
        self.drain()
        self.wait(vm=self.dwid)
        A("  s_barrier")
        W = 100
        ids = []
        for gl in range(3):
            for f in range(4):
                for z in range(2):
                    r = W + (gl * 4 + f) * 2 + z
                    if f < 3: ids.append(self.ds(f"  ds_read_u16 v{r}, v{self.cAF} offset:{f*1920 + z*192 + 16*gl}"))
                    else: ids.append(self.ds(f"  ds_read_u16 v{r}, v{self.cAG} offset:{z*960 + 16*gl}"))
            self.job()
            if gl == 0: continue
            self.wait(lg=ids[8*gl - 1]); self.a_and(gl - 1, W); self.job()
        self.wait(lg=ids[-1]); self.a_and(2, W); self.job()
    def a_and(self, gl, W):
        for f in range(4):
            r = W + (gl * 4 + f) * 2; d = self.cA + (gl * 4 + f) * 4
            self.A(f"""  v_and_b32 v{d}, v{r}, v{self.cML}
  v_and_b32 v{d+1}, v{r}, v{self.cMH}
  v_and_b32 v{d+2}, v{r+1}, v{self.cML}
  v_and_b32 v{d+3}, v{r+1}, v{self.cMH}""")

    def Freg(self, gl, rho): return aF + (((rho // 2) % 4) * 3 + gl) * 8
    def Greg(self, gl, b): return aG + ((b % 2) * 3 + gl) * 8
    def conv_reads(self, b):
        Y = 2 * b; L = []
        def rd(dst, base, off): L.append(lambda: setattr(self, 'lastrd', self.ds(f"  ds_read_b128 {a_(dst,4)}, v{base} offset:{off}")))
        for gl in range(3):
            rhos = [0, 2, 4] if b == 0 else [Y + 4]
            for rho in rhos:
                rd(self.Freg(gl, rho), self.cBF, rho * XROW + 16 * gl)
                rd(self.Freg(gl, rho) + 4, self.cBF, (rho + 1) * XROW + 16 * gl)
            rd(self.Greg(gl, b), self.cBG0, Y * XROW + 16 * gl)
            rd(self.Greg(gl, b) + 4, self.cBG1, Y * XROW + 16 * gl)
        return L
    def conv_zero(self, b): return [f"  v_mov_b64 {v(self.cD[b%2][gl]+2*h,2)}, 0" for gl in range(3) for h in range(2)]
    def conv_mfmas(self, b):
        Y = 2 * b; L = []
        for f in range(4):
            for gl in range(3):
                B = a_(self.Freg(gl, Y + 2*f), 8) if f < 3 else a_(self.Greg(gl, b), 8)
                L.append(f"  v_smfmac_f32_16x16x64_bf16 {v(self.cD[b%2][gl],4)}, {v(self.cA+(gl*4+f)*4,4)}, {B}, v{self.cIDX}")
        return L
    def conv_epi(self, b):
        L = []
        for gl in range(3):
            d = self.cD[b % 2][gl]; t = self.cT + 2 * gl
            L.append(f"  v_cvt_pk_bf16_f32 v{t}, v{d}, v{d+1}")
            L.append(f"  v_cvt_pk_bf16_f32 v{t+1}, v{d+2}, v{d+3}")
            L.append(lambda t=t, gl=gl: self.ds(f"  ds_write_b64 v{self.cYW}, {v(t,2)} offset:{b*7680 + 16*gl}"))
        return L

    def conv_all(self):
        A = self.A
        self.job()
        self.wait(vm=self.xid[5]); A("  s_barrier")
        rd = self.conv_reads(0)
        for k, r in enumerate(rd):
            r()
            if k == 7: self.emit(self.conv_zero(0))
            if k == 15: self.job()
        for b in range(7):
            A(f"; ==== conv block {b}")
            nxt = []
            if b < 6:
                while 2 * b + 7 not in self.xid: self.job()
                self.wait(vm=self.xid[2 * b + 7]); A("  s_barrier")
                nxt = self.conv_reads(b + 1)
            else:
                A("  s_barrier")
            self.wait(lg=self.lastrd)
            if b in (0, 2, 4):
                sl = b // 2
                for a in range(3): self.ds(f"  ds_read_b128 {a_(aRES+(sl*3+a)*4,4)}, v{self.vRES[sl]} offset:{64*a}")
            mf = self.conv_mfmas(b)
            for k, m in enumerate(mf):
                A(m)
                if nxt: nxt.pop(0)()
                if k % 3 == 1 and (b < 2 or k != 10): self.job()
            self.emit(nxt)
            if b < 6: self.emit(self.conv_zero(b + 1))
            else: A("  s_nop 4")
            self.emit(self.conv_epi(b))
            if self.o.blkstamp: self.stamp(f'b{b}')
            if b == 5:
                self.ln_tiles(['L', 0], jobs=True)
                if self.o.blkstamp: self.stamp('lnL0')
        while self.jobs: self.job()
        self.drain(); A("  s_barrier")
        self.stamp('conv')
        self.ln_tiles([1, 2])
    def ln_tiles(self, slots, jobs=False):
        A = self.A
        A(f"; ==== LN tiles {slots}")
        bases = [100, 148]
        R = []
        for k, sl in enumerate(slots):
            b = bases[k]
            R.append(dict(sl=sl, U=b, Dg=b + 24, Ds=b + 28, st=b + 32, raw=(192 if k == 0 else 244),
                          dest=(lambda q, sl=sl: YH[sl] + q) if sl != 'L' else (lambda q: YL[q // 4] + q % 4)))
        for r in R:
            for s in range(3):
                for z in range(2):
                    r['id'] = self.ds(f"  ds_read_b64 {v(r['raw']+4*s+2*z,2)}, v{self.vLN[r['sl']]} offset:{64*s + 32*z}")
        def mfs(r):
            raw = r['raw']; mf = []
            for s in range(3):
                mf.append(f"  v_mfma_f32_16x16x32_bf16 {v(r['Dg'],4)}, {v(raw+4*s,4)}, {v(raw+4*s,4)}, " + ("0" if s == 0 else v(r['Dg'],4)))
                mf.append(f"  v_mfma_f32_16x16x32_bf16 {v(r['Ds'],4)}, {a_(aONE,4)}, {v(raw+4*s,4)}, " + ("0" if s == 0 else v(r['Ds'],4)))
            return mf
        def unp(r):
            raw = r['raw']; un = []
            for k in range(12):
                un.append(f"  v_lshlrev_b32 v{r['U']+2*k}, 16, v{raw+k}")
                un.append(f"  v_and_b32 v{r['U']+2*k+1}, 0xffff0000, v{raw+k}")
            return un
        def sel(r):
            st, Dg = r['st'], r['Dg']
            return [f"  v_cndmask_b32 v{st}, v{Dg}, v{Dg+1}, {sp(sM1)}",
                    f"  v_cndmask_b32 v{st}, v{st}, v{Dg+2}, {sp(sM2)}",
                    f"  v_cndmask_b32 v{st}, v{st}, v{Dg+3}, {sp(sM3)}",
                    f"  v_cndmask_b32 v{st}, 0, v{st}, {sp(sDIAG)}",
                    f"  v_mov_b32 v{st+1}, 1.0",
                    f"  v_mul_f32 v{st+2}, {hex(f2u(1.0/96))}, v{r['Ds']}"]
        def f32m(r): return f"  v_mfma_f32_16x16x4_f32 {v(r['Dg'],4)}, v{r['st']+1}, v{r['st']}, 0"
        def stats(r):
            st, Dg = r['st'], r['Dg']
            s_ = [f"  v_mul_f32 v{st+3}, {hex(f2u(1.0/96))}, v{Dg}",
                  f"  v_fma_f32 v{st+3}, -v{st+2}, v{st+2}, v{st+3}",
                  f"  v_max_f32 v{st+3}, 0, v{st+3}",
                  f"  v_add_f32 v{st+3}, {hex(f2u(1e-5))}, v{st+3}",
                  f"  v_rsq_f32 v{st+3}, v{st+3}",
                  f"  v_mul_f32 v{st+2}, {hex(f2u(-ALPHA))}, v{st+2}",
                  f"  v_mul_f32 v{st+4}, {hex(f2u(ALPHA))}, v{st+3}"]
            if r['sl'] == 'L': s_.append(f"  v_cndmask_b32 v{st+4}, 0, v{st+4}, {sp(sLEFT)}")
            s_.append(f"  v_mul_f32 v{st}, v{st+2}, v{st+3}")
            if r['sl'] == 'L': s_.append(f"  v_cndmask_b32 v{st}, 0, v{st}, {sp(sLEFT)}")
            return s_
        def norm(r):
            U, st = r['U'], r['st']
            return [f"  v_pk_fma_f32 {v(U+2*k,2)}, {v(U+2*k,2)}, {v(st+4,2)}, {v(st,2)} op_sel_hi:[1,0,0]" for k in range(12)]
        def cvt(r): return [f"  v_cvt_pk_bf16_f32 v{r['dest'](k)}, v{r['U']+2*k}, v{r['U']+2*k+1}" for k in range(12)]
        a, b = R
        self.wait(lg=a['id'])
        J = (lambda: self.job()) if jobs else (lambda: None)
        self.emit(self.interleave(mfs(a), unp(a), per=2)); J()
        ub = unp(b)
        self.wait(lg=b['id'])
        mb = mfs(b); fill = ub[:6] + sel(a) + ub[6:]
        left = self.interleave(mb, fill, per=2)
        A(f32m(a)); J(); self.emit(left); J()
        self.emit(sel(b)); A(f32m(b)); J()
        self.emit(stats(a))
        sb = stats(b)
        na = norm(a)
        A("  s_nop 1")
        self.emit(sb[:2])
        self.emit(self.interleave(na, sb[2:], per=1))
        self.emit(cvt(a)[:4]); J()
        self.emit(norm(b)); J(); self.emit(cvt(a)[4:]); J(); self.emit(cvt(b)); J()
    def prologue(self):
        self.setup()
        self.a_build()
        self.stamp('abuild')
        self.conv_all()
        self.stamp('ln')

    def a_addr(self, seg):
        self.A(f"""  s_add_u32 s{sT}, s{sW}, {seg}
  s_and_b32 s{sT}, s{sT}, 3
  s_mul_i32 s{sT}, s{sT}, 192
  v_add_u32 v{vAADR}, s{sT}, v6""")
    def a_loads(self, i):
        L = []
        for s in range(3):
            for z in range(2):
                L.append(lambda s=s, z=z: setattr(self, 'afr_id', self.ds(f"  ds_read_b64_tr_b16 {a_(aFR+4*s+2*z,2)}, v{vAADR} offset:{s*32*W1P + z*16*W1P + 32*(i%6)}")))
        return L
    def tiles(self, i): return 4 if i < 6 else 3
    def accregs(self, i):
        base = P0 if i % 2 == 0 else P1
        l = [base, base + 4, base + 8]
        if i < 6: l.append(P0L if i % 2 == 0 else P1L)
        return l
    def gemm1_mfmas(self, i):
        acc = self.accregs(i); out = []
        for s in range(3):
            for tl in range(self.tiles(i)):
                B = v(YH[tl] + 4 * s, 4) if tl < 3 else v(YL[s], 4)
                C = "0" if s == 0 else v(acc[tl], 4)
                out.append(f"  v_mfma_f32_16x16x32_bf16 {v(acc[tl],4)}, {a_(aFR+4*s,4)}, {B}, {C}")
        return out
    def dpp_tail(self, i):
        b0, b1, c = DP, DP + 1, DP + 2
        mj = [sM0, sM1, sM2, sM3][i % 4]
        return [f"  v_add_f32_dpp v{b0}, v{AS}, v{AS} row_ror:8 row_mask:0xf bank_mask:0x3",
                f"  v_add_f32_dpp v{b0}, v{AS+1}, v{AS+1} row_ror:8 row_mask:0xf bank_mask:0xc",
                f"  v_add_f32_dpp v{b1}, v{AS+2}, v{AS+2} row_ror:8 row_mask:0xf bank_mask:0x3",
                f"  v_add_f32_dpp v{b1}, v{AS+3}, v{AS+3} row_ror:8 row_mask:0xf bank_mask:0xc",
                f"  v_add_f32_dpp v{c}, v{b0}, v{b0} row_half_mirror row_mask:0xf bank_mask:0x5",
                f"  v_add_f32_dpp v{c}, v{b1}, v{b1} row_half_mirror row_mask:0xf bank_mask:0xa",
                f"  v_add_f32_dpp v{c}, v{c}, v{c} quad_perm:[1,0,3,2] row_mask:0xf bank_mask:0xf",
                f"  v_add_f32_dpp v{c}, v{c}, v{c} quad_perm:[2,3,0,1] row_mask:0xf bank_mask:0xf",
                f"  v_cndmask_b32 v{ST + i//4}, v{ST + i//4}, v{c}, {sp(mj)}"]
    def hdst(self, i, tl, j): return (H[tl] + 2 * i + j) if tl < 3 else (HL + 2 * i + j)
    def w2dma(self, j):
        gi, jj = j // 3, j % 3
        if jj == 0:
            self.A(f"  s_add_u32 m0, s{sT+11}, {3072*gi}\n  s_add_u32 s{sT+1}, s{sT+10}, {3072*gi}")
        self.w2id = self.vmem(f"  buffer_load_dwordx4 v{93+jj}, {srd(sW2)}, s{sT+1} offen offset:{1024*jj} lds")
    def gelu_iter(self, i, pend):
        A = self.A
        A(f"; ==== gelu iter {i}")
        nt = self.tiles(i); acc = self.accregs(i)
        T = [TT, TT + 4, TT + 8] + ([TTL] if nt == 4 else [])
        pairs = [(tl, h) for tl in range(nt) for h in range(2)]
        U = lambda tl, h: v(acc[tl] + 2 * h, 2)
        TP = lambda tl, h: v(T[tl] + 2 * h, 2)
        seq = [f"  v_pk_fma_f32 {TP(tl,h)}, {U(tl,h)}, {U(tl,h)}, {sp(sBETA)}" for tl, h in pairs] + \
              [f"  v_pk_mul_f32 {TP(tl,h)}, {TP(tl,h)}, {U(tl,h)}" for tl, h in pairs]
        slots = {0: [0, 1], 1: [2, 3], 3: [4, 5], 6: [6], 9: [7], 11: [8]} if pend else {}
        for k, ins in enumerate(seq):
            A(ins)
            for x in slots.get(k, []): A(pend[x])
        exps = [f"  v_exp_f32 v{T[tl]+j}, v{T[tl]+j}" for tl in range(nt) for j in range(4)]
        if i + 1 < 24:
            mf = self.gemm1_mfmas(i + 1)
            self.wait(lg=self.afr_id)
            e = 0
            for k, m in enumerate(mf):
                A(m)
                if self.o.dmapos == 0 and k == 1 and 1 <= i < 19: self.w2dma(i - 1)
                if k < len(mf) - 1: A(exps[e]); e += 1
            if i + 2 < 24:
                if (i + 2) % 6 == 0: self.a_addr((i + 2) // 6)
                self.emit(self.a_loads(i + 2))
            if self.o.dmapos == 3 and 1 <= i < 19: self.w2dma(i - 1)
            while e < len(exps): A(exps[e]); e += 1
        else:
            for x in exps: A(x)
        for tl, h in pairs: A(f"  v_pk_add_f32 {TP(tl,h)}, {TP(tl,h)}, 1.0 op_sel_hi:[1,0]")
        for tl in range(nt):
            for j in range(4): A(f"  v_rcp_f32 v{T[tl]+j}, v{T[tl]+j}")
            if self.o.dmapos == 1 and tl == 1 and 1 <= i < 19: self.w2dma(i - 1)
        if self.o.dmapos == 2 and 1 <= i < 19: self.w2dma(i - 1)
        for tl, h in pairs: A(f"  v_pk_mul_f32 {TP(tl,h)}, {TP(tl,h)}, {U(tl,h)}")
        for tl in range(nt):
            for h in range(2):
                if tl == 0: A(f"  v_pk_mul_f32 {v(AS+2*h,2)}, {TP(tl,h)}, {TP(tl,h)}")
                else: A(f"  v_pk_fma_f32 {v(AS+2*h,2)}, {TP(tl,h)}, {TP(tl,h)}, {v(AS+2*h,2)}")
        for tl, h in pairs: A(f"  v_cvt_pk_bf16_f32 v{self.hdst(i,tl,h)}, v{T[tl]+2*h}, v{T[tl]+2*h+1}")
        return self.dpp_tail(i)
    def gelu(self):
        A = self.A
        A("; ==== gelu prologue")
        A(f"""  v_lshrrev_b32 v6, 2, v{vN}
  v_lshl_add_u32 v6, v{vQ}, 2, v6
  v_mul_u32_u24 v6, {W1P}, v6
  v_and_b32 v7, 3, v{vN}
  v_lshl_add_u32 v6, v7, 3, v6""")
        self.a_addr(0)
        for jj in range(3): self.get(93 + jj, f'p{jj}')
        A(f"""  s_mul_i32 s{sT+10}, s{sW}, 18432
  s_add_u32 s{sT+11}, s{sT+10}, {W2S}""")
        A("  s_waitcnt vmcnt(0)\n  s_barrier")
        self.emit(self.a_loads(0))
        for k in range(6): A(f"  v_mov_b32 v{ST+k}, 0")
        self.wait(lg=self.afr_id)
        for m in self.gemm1_mfmas(0): A(m)
        self.emit(self.a_loads(1))
        A("  s_nop 3")
        if self.o.gpad >= 0:
            A("; @align64")
            for _ in range(self.o.gpad): A("  s_nop 0")
        pend = []
        for i in range(24): pend = self.gelu_iter(i, pend)
        A("; ==== gelu tail")
        for l in pend: A(l)

    def publish(self):
        A = self.A
        self.wait(vm=self.w2id)
        t = TT
        for k in range(6): self.get(t + 4 + k, f'ps{k}')
        self.get(t, 'psr'); self.get(t + 1, 'l1')
        return t
    def publish2(self, t):
        A = self.A
        for k in range(6): self.ds(f"  ds_write_b32 v{t+4+k}, v{ST+k}")
        A(f"""  s_add_u32 s{sTAG}, s{sTAG}, {hex(TAG_STEP)}
  s_cmp_eq_u32 s{sTAG}, 0
  s_cselect_b32 s{sT}, {hex(TAG_STEP)}, 0
  s_add_u32 s{sTAG}, s{sTAG}, s{sT}
  s_waitcnt lgkmcnt(0)
  s_barrier
  s_cmp_ge_u32 s{sW}, 2
  s_cbranch_scc1 L_nopub"""); self.lg.done = self.lg.n
        r = P0
        for w in range(4): A(f"  ds_read2st64_b32 {v(r+2*w,2)}, v{t} offset0:{6*w} offset1:{6*w+2}")
        A(f"  ds_read2st64_b32 {v(r+8,2)}, v{t} offset0:4 offset1:10")
        A(f"  ds_read2st64_b32 {v(r+10,2)}, v{t} offset0:16 offset1:22")
        A(f"""  v_mov_b32 v{t+7}, s{sTAG}
  s_waitcnt lgkmcnt(0)
  v_add_f32 v{t+4}, v{r}, v{r+2}
  v_add_f32 v{t+5}, v{r+1}, v{r+3}
  v_add_f32 v{t+6}, v{r+8}, v{r+9}
  v_add_f32 v{r+4}, v{r+4}, v{r+6}
  v_add_f32 v{r+5}, v{r+5}, v{r+7}
  v_add_f32 v{r+10}, v{r+10}, v{r+11}
  v_add_f32 v{t+4}, v{t+4}, v{r+4}
  v_add_f32 v{t+5}, v{t+5}, v{r+5}
  v_add_f32 v{t+6}, v{t+6}, v{r+10}
  global_store_dwordx4 v{t+1}, {v(t+4,4)}, s[20:21] sc1
L_nopub:""")

    def reducer(self, t, r):
        A = self.A
        A(f"""  s_cmp_lg_u32 s{sW}, 3
  s_cbranch_scc1 L_nored
  s_cmp_ge_u32 s2, 128
  s_cbranch_scc1 L_nored
  s_lshl_b32 s{sT}, s2, 12
  s_add_u32 s{sT}, s{sT}, {L1_OFF}
  v_add_u32 v{t}, s{sT}, v{vLANE16}
  s_mov_b32 s{sT+2}, 0
L_poll1:""")
        for k in range(4): A(f"  global_load_dwordx4 {v(r+4*k,4)}, v{t}, s[20:21] offset:{1024*k} sc1")
        A(f"""  s_add_u32 s{sT+2}, s{sT+2}, 1
  s_waitcnt vmcnt(0)
  v_cmp_eq_u32 vcc, s{sTAG}, v{r+3}
  v_cmp_eq_u32 s[{sT+4}:{sT+5}], s{sTAG}, v{r+7}
  v_cmp_eq_u32 s[{sT+6}:{sT+7}], s{sTAG}, v{r+11}
  v_cmp_eq_u32 s[{sT+8}:{sT+9}], s{sTAG}, v{r+15}
  s_and_b64 vcc, vcc, s[{sT+4}:{sT+5}]
  s_and_b64 s[{sT+6}:{sT+7}], s[{sT+6}:{sT+7}], s[{sT+8}:{sT+9}]
  s_and_b64 vcc, vcc, s[{sT+6}:{sT+7}]
  s_cmp_eq_u64 vcc, exec
  s_cbranch_scc1 L_red_go
  s_cmp_lt_u32 s{sT+2}, {self.o.spin}
  s_cbranch_scc1 L_poll1
L_red_go:""")
        for c in range(3): A(f"  v_add_f32 v{r+c}, v{r+c}, v{r+4+c}\n  v_add_f32 v{r+8+c}, v{r+8+c}, v{r+12+c}")
        for c in range(3): A(f"  v_add_f32 v{r+c}, v{r+c}, v{r+8+c}")
        for d in ("row_shr:1 row_mask:0xf", "row_shr:2 row_mask:0xf", "row_shr:4 row_mask:0xf", "row_shr:8 row_mask:0xf", "row_bcast:15 row_mask:0xa", "row_bcast:31 row_mask:0xc"):
            for c in range(3): A(f"  v_add_f32_dpp v{r+c}, v{r+c}, v{r+c} {d} bank_mask:0xf")
        for c in range(3): A(f"  v_readlane_b32 s{sT+4+c}, v{r+c}, 63")
        A(f"""  s_lshl_b32 s{sT}, s2, 4
  s_add_u32 s{sT}, s{sT}, {FIN_OFF}
  v_lshlrev_b32 v{t}, 11, v{vN}
  v_add_u32 v{t}, s{sT}, v{t}
  v_mov_b32 v{r}, s{sT+4}
  v_mov_b32 v{r+1}, s{sT+5}
  v_mov_b32 v{r+2}, s{sT+6}
  v_mov_b32 v{r+3}, s{sTAG}
  s_mov_b64 exec, {(1<<NREP)-1}
  global_store_dwordx4 v{t}, {v(r,4)}, s[20:21] sc1
  s_mov_b64 exec, -1
L_nored:""")

    XC = 8
    vOUT = 92
    vB2 = 95
    vW2W, vLP, vSPA = 99, 5, 6
    vST, vRD = 4, 7
    vOD = [0, 2, 3]
    def spr(self, tl): return (80 + 4 * tl) if tl < 3 else (244 + 4 * (tl - 3))
    def dw2(self, tl, a, b): return 100 + a * 48 + (b * 6 + tl) * 4
    def xc(self, sl, a, b): return self.XC + (sl * 3 + a) * 8 + 4 * b

    def wait_work_a(self):
        A = self.A
        if self.o.late == 1: self.late_mid(t=56)
        self.get(50, 'w2r'); self.get(51, 'br'); self.get(53, 'gr')
        for ul in range(3):
            for z in range(2):
                self.ds(f"  ds_read_b64 {a_(aFR+4*ul+2*z,2)}, v51 offset:{64*ul + 32*z}")
        for z in range(2):
            for c in range(3):
                self.ds(f"  ds_read_u16 v{80 + z*3 + c}, v53 offset:{128*z + 256*c}")
        self.get(self.vRD, 'rd'); self.get(self.vST, 'st')
        for sl in range(3): self.get(self.vOUT + sl, f'o{sl}')
        for k in range(4): self.get(self.vB2 + k, f'b{k}')
        self.get(self.vW2W, 'w2w'); self.get(self.vLP, 'lp'); self.get(self.vSPA, 'spa')
        for sl in range(3): self.get(54 + sl, f'd{sl}'); A(f"  v_accvgpr_write_b32 {a_(aOUT+sl)}, v{54+sl}")
        self.order = [(tl, a) for a in range(3) for tl in range(6)]
        self.nids = {}
        for k in range(8):
            tl, a = self.order[k]
            self.nids[k] = self.ds(f"  ds_read_b128 {a_(4*(k%8),4)}, v50 offset:{tl*3072 + 64*a}")
        for k in range(100, 256): A(f"  v_accvgpr_write_b32 a{k}, v{k}")
    def wait_work_b(self):
        A = self.A
        order = self.order
        for k in range(18):
            ptl, pa = order[k]
            self.wait(lg=self.nids[k])
            for b in range(2): A(f"  v_mfma_f32_16x16x32_bf16 {v(self.dw2(ptl,pa,b),4)}, {a_(4*(k%8),4)}, {a_(aSEL+4*b,4)}, 0")
            if k + 8 < 18:
                tl, a = order[k + 8]
                self.nids[k + 8] = self.ds(f"  ds_read_b128 {a_(4*(k%8),4)}, v50 offset:{tl*3072 + 64*a}")
        Q = [244, 248]
        jobs = [(t_, ul) for ul in range(3) for t_ in range(6)]
        for k, (t_, ul) in enumerate(jobs):
            a, b = t_ // 2, t_ % 2
            q = Q[k % 2]
            d0, d1 = self.dw2(2*ul, a, b), self.dw2(2*ul+1, a, b)
            A(f"""  v_cvt_pk_bf16_f32 v{q}, v{d0}, v{d0+1}
  v_cvt_pk_bf16_f32 v{q+1}, v{d0+2}, v{d0+3}""")
            if k > 0:
                pt, pul = jobs[k-1]; pq = Q[(k-1) % 2]; c = self.xc(0, pt // 2, pt % 2)
                A(f"  v_mfma_f32_16x16x32_bf16 {v(c,4)}, {v(pq,4)}, {a_(aFR+4*pul,4)}, " + ("0" if pul == 0 else v(c,4)))
            A(f"""  v_cvt_pk_bf16_f32 v{q+2}, v{d1}, v{d1+1}
  v_cvt_pk_bf16_f32 v{q+3}, v{d1+2}, v{d1+3}""")
        pt, pul = jobs[-1]; c = self.xc(0, pt // 2, pt % 2)
        A(f"  s_nop 1\n  v_mfma_f32_16x16x32_bf16 {v(c,4)}, {v(Q[(len(jobs)-1)%2],4)}, {a_(aFR+4*pul,4)}, {v(c,4)}")
        A(f"""  s_mul_i32 s{sT}, s{sW}, 384
  s_add_u32 s{sT}, s{sT}, {CP}
  v_lshlrev_b32 v252, 5, v{vQ}
  v_add_u32 v253, {CP}, v252
  v_add_u32 v252, s{sT}, v252
  s_mov_b32 exec_lo, 0x00010001
  s_mov_b32 exec_hi, 0x00010001
  s_nop 2""")
        for t_ in range(6):
            a, b = t_ // 2, t_ % 2
            self.ds(f"  ds_write_b128 v252, {v(self.xc(0,a,b),4)} offset:{128*a + 16*b}")
        A("  s_mov_b64 exec, -1")
        self.stamp('cpart')
        self.reducer(58, 32)
        self.stamp('red')
        self.drain(); A("  s_barrier")
        for half in range(2):
            ts = [3*half + j for j in range(3)]
            ids = []
            for j, t_ in enumerate(ts):
                a, b = t_ // 2, t_ % 2
                for w in range(4):
                    dst = self.xc(0, a, b) if w == 0 else 32 + (j * 3 + (w - 1)) * 4
                    ids.append(self.ds(f"  ds_read_b128 {v(dst,4)}, v253 offset:{w*384 + 128*a + 16*b}"))
            for j, t_ in enumerate(ts):
                a, b = t_ // 2, t_ % 2
                self.wait(lg=ids[4*j+3])
                c = self.xc(0, a, b); o = 32 + j * 12
                for h in range(2):
                    A(f"  v_pk_add_f32 {v(c+2*h,2)}, {v(c+2*h,2)}, {v(o+2*h,2)}\n  v_pk_add_f32 {v(o+4+2*h,2)}, {v(o+4+2*h,2)}, {v(o+8+2*h,2)}")
                for h in range(2): A(f"  v_pk_add_f32 {v(c+2*h,2)}, {v(c+2*h,2)}, {v(o+4+2*h,2)}")
        A(f"""  s_cmp_lg_u32 s{sW}, 0
  s_cbranch_scc1 L_nocv
  v_add_u32 v253, {CV - CP}, v253
  s_mov_b32 exec_lo, 0x00010001
  s_mov_b32 exec_hi, 0x00010001""")
        for t_ in range(6):
            a, b = t_ // 2, t_ % 2
            A(f"  ds_write_b128 v253, {v(self.xc(0,a,b),4)} offset:{128*a + 16*b}")
        A("  s_mov_b64 exec, -1\n  s_waitcnt lgkmcnt(0)\nL_nocv:"); self.lg.done = self.lg.n
        k = 0
        for sl in (1, 2, 0):
            for a in range(3):
                for j in range(4): A(f"  v_accvgpr_read_b32 v{244+4*(k%2)+j}, {a_(aRES+(sl*3+a)*4+j)}")
                for j in range(4):
                    b, r = j // 2, (j % 2) * 2
                    c = self.xc(0, a, b) + r; d = self.xc(sl, a, b) + r; x = 244 + 4*(k%2) + j
                    tt = 90 if j % 2 == 0 else 86
                    A(f"""  v_lshlrev_b32 v{tt}, 16, v{x}
  v_and_b32 v{tt+1}, 0xffff0000, v{x}
  v_pk_add_f32 {v(d,2)}, {v(c,2)}, {v(tt,2)}""")
                k += 1
        A(f"""  s_lshl_b32 s{sT}, s{sW}, 11
  s_add_u32 s{sT}, s{sT}, {OUTS}
  v_add_u32 v{self.vST}, s{sT}, v{self.vST}""")
        for sl in range(3): A(f"  v_accvgpr_read_b32 v{self.vOD[sl]}, {a_(aOUT+sl)}")
    def final_poll(self):
        A = self.A
        r = 244; t = 86
        A(f"""  s_cmp_lg_u32 s{sW}, 0
  s_cbranch_scc1 L_nofin
  s_and_b32 s{sT}, s2, {NREP-1}
  s_lshl_b32 s{sT}, s{sT}, 11
  s_add_u32 s{sT}, s{sT}, {FIN_OFF}
  v_add_u32 v{t}, s{sT}, v{vLANE16}
  s_mov_b32 s{sT+2}, 0""")
        for k in range(6): A(f"  v_lshlrev_b32 v{80+k}, 16, v{80+k}")
        A(f"""  s_mov_b32 s{sT+10}, {hex(f2u(1.0/(ALPHA*ALPHA)))}
  v_mov_b32 v{t+1}, {hex(f2u(1e-6))}
  v_mov_b32 v{t+4}, {hex(f2u(1.0/384))}
  v_mov_b32 v{t+3}, {hex(f2u(1.0/ALPHA))}
  v_lshrrev_b32 v{t+5}, 2, v{vLANE16}
  v_add_u32 v{t+5}, {SP}, v{t+5}
L_poll2:
  global_load_dwordx4 {v(r,4)}, v{t}, s[20:21] sc1
  global_load_dwordx4 {v(r+4,4)}, v{t}, s[20:21] offset:1024 sc1
  s_add_u32 s{sT+2}, s{sT+2}, 1
  s_waitcnt vmcnt(0)
  v_cmp_eq_u32 vcc, s{sTAG}, v{r+3}
  v_cmp_eq_u32 s[{sT+4}:{sT+5}], s{sTAG}, v{r+7}
  s_and_b64 vcc, vcc, s[{sT+4}:{sT+5}]
  s_cmp_eq_u64 vcc, exec
  s_cbranch_scc1 L_fin_go
  s_cmp_lt_u32 s{sT+2}, {self.o.spin}
  s_cbranch_scc1 L_poll2
L_fin_go:""")
        vals = [r, r+1, r+2, r+4, r+5, r+6]
        for x in vals: A(f"  v_fma_f32 v{x}, v{x}, s{sT+10}, v{t+1}")
        for x in vals: A(f"  v_sqrt_f32 v{x}, v{x}")
        A(f"""  v_add_f32 v{t+2}, v{r}, v{r+1}
  v_add_f32 v{r+3}, v{r+2}, v{r+4}
  v_add_f32 v{r+7}, v{r+5}, v{r+6}
  v_add_f32 v{t+2}, v{t+2}, v{r+3}
  v_add_f32 v{t+2}, v{t+2}, v{r+7}""")
        gm = [f"  v_mul_f32 v{80+k}, v{80+k}, v{x}" for k, x in enumerate(vals)]
        for k, d in enumerate(("row_shr:1 row_mask:0xf", "row_shr:2 row_mask:0xf", "row_shr:4 row_mask:0xf", "row_shr:8 row_mask:0xf", "row_bcast:15 row_mask:0xa", "row_bcast:31 row_mask:0xc")):
            A(gm[k])
            A(f"  v_add_f32_dpp v{t+2}, v{t+2}, v{t+2} {d} bank_mask:0xf")
        A(f"""  v_readlane_b32 s{sT+4}, v{t+2}, 63
  v_fma_f32 v{t+2}, s{sT+4}, v{t+4}, v{t+1}
  v_rcp_f32 v{t+2}, v{t+2}
  s_nop 0
  v_mul_f32 v{t+2}, v{t+2}, v{t+3}""")
        for k in range(6): A(f"  v_fma_f32 v{80+k}, v{80+k}, v{t+2}, v{t+3}")
        for z in range(2):
            for c in range(3): A(f"  ds_write_b32 v{t+5}, v{80+3*z+c} offset:{256*z + 512*c}")
        A(f"""  s_cmp_lg_u32 s2, 0
  s_cbranch_scc1 L_noepoch
  v_mov_b32 v{t}, {EPOCH_OFF}
  v_mov_b32 v{t+1}, s{sTAG}
  s_mov_b64 exec, 1
  global_store_dword v{t}, v{t+1}, s[20:21] sc1
  s_mov_b64 exec, -1
L_noepoch:
L_nofin:
  s_waitcnt lgkmcnt(0)
  s_barrier"""); self.lg.done = self.lg.n

    def prep_round(self, a, pk):
        L = []
        for b in range(2):
            for ul in range(3):
                M = []
                for z in range(2):
                    d = self.dw2(2*ul+z, a, b); s_ = self.spr(2*ul+z)
                    if pk:
                        M.append(('v', f"  v_pk_mul_f32 {v(d,2)}, {v(d,2)}, {v(s_,2)}"))
                        M.append(('v', f"  v_pk_mul_f32 {v(d+2,2)}, {v(d+2,2)}, {v(s_+2,2)}"))
                    else:
                        for j in range(4): M.append(('v', f"  v_mul_f32 v{d+j}, v{d+j}, v{s_+j}"))
                d0 = self.dw2(2*ul, a, b); d1 = self.dw2(2*ul+1, a, b)
                M.append(('v', f"  v_cvt_pk_bf16_f32 v{d0}, v{d0}, v{d0+1}"))
                M.append(('v', f"  v_cvt_pk_bf16_f32 v{d0+1}, v{d0+2}, v{d0+3}"))
                M.append(('v', f"  v_cvt_pk_bf16_f32 v{d0+2}, v{d1}, v{d1+1}"))
                M.append(('v', f"  v_cvt_pk_bf16_f32 v{d0+3}, v{d1+2}, v{d1+3}"))
                M.append(('w', lambda d0=d0, b=b, ul=ul: setattr(self, 'prep_id', self.ds(f"  ds_write_b128 v{self.vW2W}, {v(d0,4)} offset:{(2*a+b)*12288 + ul*1024}"))))
                L += M
        return L
    def w2_prep0(self):
        A = self.A
        ids = [self.ds(f"  ds_read_b128 {v(self.spr(tl),4)}, v{self.vSPA} offset:{64*tl}") for tl in range(6)]
        self.wait(lg=ids[-1])
        items = self.prep_round(0, True)
        for kind, x in items + self.prep_round(1, True):
            if kind == 'v' and 'pk_mul' in x: A(x)
        for kind, x in items:
            if kind == 'w': x()
            elif 'pk_mul' not in x: A(x)
        self.drain(); A("  s_barrier")

    def gemm2(self):
        A = self.A
        A("; ==== gemm2")
        ACC = [100, 148, 100]; ACL = [140, 172, 140]; RING = 124; NR = 4; TQ = [180, 184]; RQ = [188, 192]
        steps = [(a, u, b) for a in range(3) for u in range(12) for b in range(2)]
        rid = {}
        def rd(k):
            a, u, b = steps[k]
            rid[k] = self.ds(f"  ds_read_b128 {v(RING+4*(k%NR),4)}, v{self.vB2+u//3} offset:{(2*a+b)*12288 + (u%3)*1024}")
        def epilogue_direct(a):
            L = []
            for sl in range(3):
                acc = ACC[a] + sl * 8; tq = TQ[sl % 2]
                for j in range(4): L.append(f"  v_cvt_pk_bf16_f32 v{tq+j}, v{acc+2*j}, v{acc+2*j+1}")
                L.append(lambda sl=sl, tq=tq: self.vmem(f"  buffer_store_dwordx4 {v(tq,4)}, v{self.vOD[sl]}, {srd(sO)}, 0 offen offset:{64*a}{self.o.stmod}"))
            return L
        def epilogue_staged(a):
            L = []; st = {}
            Rq = [188, 192, 196]
            for sl in range(3):
                acc = ACC[a] + sl * 8; tq = TQ[sl % 2]
                for j in range(4): L.append(f"  v_cvt_pk_bf16_f32 v{tq+j}, v{acc+2*j}, v{acc+2*j+1}")
                L.append(lambda tq=tq: self.ds(f"  ds_write_b128 v{self.vST}, {v(tq,4)}"))
                L.append(lambda sl=sl: st.__setitem__(sl, self.ds(f"  ds_read_b128 {v(Rq[sl],4)}, v{self.vRD}")))
            for sl in range(3): L.append(lambda sl=sl: self.out_store(a, sl, Rq[sl], st[sl]))
            return L
        def leftover_write(a):
            l = ACL[a]
            def go():
                A("  s_mov_b32 exec_lo, 0x000f000f\n  s_mov_b32 exec_hi, 0x000f000f")
                self.ds(f"  ds_write_b128 v{self.vLP}, {v(l,4)} offset:{128*a}")
                self.lw_id = self.ds(f"  ds_write_b128 v{self.vLP}, {v(l+4,4)} offset:{128*a+16}")
                A("  s_mov_b64 exec, -1")
            return [go]
        def norm(L): return [x if isinstance(x, tuple) else (('n', None) if x is None else (('v', x))) for x in L]
        def pop(fill, wslot=False):
            if not fill: return
            kind, f = fill[0]
            if kind == 'w' and not wslot:
                return
            fill.pop(0)
            if f is None: return
            f() if callable(f) else A(f)
        def flush(fill):
            while fill: pop(fill, True)
        p1 = [x for x in self.prep_round(1, True) if not (x[0] == 'v' and 'pk_mul' in x[1])]
        p2all = self.prep_round(2, False)
        p2m = [x for x in p2all if x[0] == 'v' and 'v_mul_f32' in x[1]]
        p2 = [x for x in p2all if not (x[0] == 'v' and 'v_mul_f32' in x[1])]
        fill = list(p1) + p2m
        ok = {0: False, 1: False}
        A("; @nopad")
        for k in range(NR - 1): rd(k)
        for k, (a, u, b) in enumerate(steps):
            if u == 0 and b == 0:
                A(f"; ---- gemm2 round {a}")
                if self.o.g2stamp and a > 0: self.stamp(f'g2r{a-1}')
                if a == 1: fill = norm(epilogue_direct(0)) + fill
                if a == 2: fill = norm(epilogue_direct(1)) + fill
            nk = k + NR - 1
            if (a == 0 and u == 10 and b == 1) or (a == 1 and u == 10 and b == 1):
                if a == 1: flush(fill)
                assert not any(k_ == 'w' for k_, _ in fill)
                self.wait(lg=max(self.prep_id, self.lw_id)); A("  s_barrier"); ok[a] = True
            self.wait(lg=rid[k])
            fr = v(RING + 4*(k % NR), 4)
            first = (u == 0 and b == 0)
            for sl in range(3):
                d = ACC[a] + sl*8 + 4*b
                C = v(self.xc(sl, a, b), 4) if u == 0 else v(d, 4)
                A(f"  v_mfma_f32_16x16x32_bf16 {v(d,4)}, {fr}, {a_(H[sl]+4*u,4)}, {C}")
                if sl == 0 and nk < len(steps):
                    na = steps[nk][0]
                    if na != a and not ok[a]: raise RuntimeError("next round fragments not published yet")
                    rd(nk)
                    if not first: pop(fill)
                elif not first:
                    pop(fill, wslot=(sl == 1))
                    if sl == 1: pop(fill)
            if u < 3:
                d = ACL[a] + 4*b
                A(f"  v_mfma_f32_16x16x32_bf16 {v(d,4)}, {fr}, {a_(HL+4*u,4)}, " + ("0" if u == 0 else v(d,4)))
                if not first: pop(fill); pop(fill)
            if u == 4 and b == 1: fill = [('w', leftover_write(a)[0])] + fill
            if a == 1 and u == 1 and b == 1: fill = fill + p2; p2 = []
            if a == 2 and u == 7 and b == 0:
                flush(fill)
                self.wait(lg=self.lw_id); A("  s_barrier")
                fill = norm(self.leftover_combine())
        flush(fill)
        A("; @pad")
        if self.o.g2stamp: self.stamp('g2r2')
        A("  s_nop 4")
        ep = norm(epilogue_staged(2))
        flush(ep)

    def out_store(self, a, sl, rq, lid):
        self.wait(lg=lid)
        self.vmem(f"  buffer_store_dwordx4 {v(rq,4)}, v{self.vOUT+sl}, {srd(sO)}, 0 offen offset:{64*a}{self.o.stmod}")

    def leftover_combine(self):
        A = self.A
        L = []; st = {}
        L += [f"  v_lshrrev_b32 v200, 4, v{vLANE16}",
              f"  s_mul_i32 s{sT}, s{sW}, 384", f"  s_add_u32 s{sT}, s{sT}, {LP}",
              f"  v_min_u32 v200, 47, v200",
              f"  v_lshlrev_b32 v201, 3, v200", f"  v_add_u32 v202, {CV}, v201", f"  v_add_u32 v201, s{sT}, v201",
              f"  s_mul_i32 s{sT}, s{sY0}, 224", f"  s_add_u32 s{sT}, s{sT}, s{sX0}", f"  s_add_u32 s{sT}, s{sT}, s{sW}", f"  s_mul_i32 s{sT}, s{sT}, 192",
              f"  v_lshlrev_b32 v203, 2, v200", f"  v_add_u32 v203, s{sT}, v203"]
        L.append(lambda: st.__setitem__('x', self.vmem(f"  buffer_load_dword v204, v203, {srd(sX)}, 0 offen")))
        for w in range(4): L.append(lambda w=w: self.ds(f"  ds_read_b64 {v(208+2*w,2)}, v201 offset:{w*1536}"))
        L.append(lambda: st.__setitem__('l', self.ds("  ds_read_b64 v[216:217], v202")))
        L += [None] * 8
        L.append(lambda: self.wait(lg=st['l']))
        L += ["  v_add_f32 v208, v208, v210", "  v_add_f32 v209, v209, v211", "  v_add_f32 v212, v212, v214", "  v_add_f32 v213, v213, v215",
              "  v_add_f32 v208, v208, v216", "  v_add_f32 v209, v209, v217", "  v_add_f32 v208, v208, v212", "  v_add_f32 v209, v209, v213"]
        L += [None] * 6
        L.append(lambda: self.wait(vm=st['x']))
        L += ["  v_lshlrev_b32 v216, 16, v204", "  v_and_b32 v217, 0xffff0000, v204", "  v_add_f32 v208, v208, v216", "  v_add_f32 v209, v209, v217",
              "  v_cvt_pk_bf16_f32 v220, v208, v209"]
        def store():
            A("  s_mov_b32 exec_hi, 0xffff")
            self.vmem(f"  buffer_store_dword v220, v203, {srd(sO)}, 0 offen{self.o.stmod}")
            A("  s_mov_b32 exec_hi, -1")
        L.append(store)
        return L

    def stamp_dump(self):
        if not self.o.prof: return
        A = self.A
        A(f"""  s_mov_b64 exec, -1
  s_memrealtime s[78:79]
  s_lshl_b32 s{sT}, s2, 2
  s_add_u32 s{sT}, s{sT}, s{sW}
  s_lshl_b32 s{sT}, s{sT}, 7
  s_add_u32 s{sT}, s{sT}, {DBG_OFF}
  v_mov_b32 v5, s{sT}
  s_waitcnt lgkmcnt(0)
  s_mov_b64 exec, 1""")
        for k in range(len(self.stamps)):
            A(f"  v_mov_b32 v6, s{80+k}\n  global_store_dword v5, v6, s[20:21] offset:{4*k}")
        A(f"  v_mov_b32 v6, s78\n  global_store_dword v5, v6, s[20:21] offset:{4*30}")
        A(f"  v_mov_b32 v6, s49\n  global_store_dword v5, v6, s[20:21] offset:{4*31}")
        if self.o.dbgstamp:
            A(f"  s_cmp_lg_u32 s2, 100\n  s_cbranch_scc1 L_nodbg\n  s_cmp_lg_u32 s{sW}, 0\n  s_cbranch_scc1 L_nodbg\n  v_mov_b32 v7, 0")
            for j in range(min(16, len(self.stamps) - 1)):
                A(f"  s_sub_u32 s78, s{81+j}, s80\n  v_mov_b32 v6, s78\n  global_store_dword v7, v6, s[18:19] offset:{4*j}")
            A("L_nodbg:")
    def dump_regs(self, label, regs, wsoff):
        A = self.A
        n = len(regs)
        A(f"""  s_waitcnt vmcnt(0) lgkmcnt(0)
  v_lshlrev_b32 v6, 2, v0
  s_mul_i32 s{sT}, s2, {n*1024}
  s_add_u32 s{sT}, s{sT}, {wsoff}
  v_add_u32 v6, s{sT}, v6""")
        for k, r in enumerate(regs):
            A(f"  global_store_dword v6, v{r}, s[20:21]\n  v_add_u32 v6, 1024, v6")
            if k % 32 == 31: A("  s_waitcnt vmcnt(0)")
        A("  s_waitcnt vmcnt(0)")

    def build(self):
        o = self.o; A = self.A
        self.prologue()
        if o.stop == 'ln':
            self.dump_regs('yhat', list(range(YH[0], YH[0]+36)) + [YL[0]+k for k in range(4)] + [YL[1]+k for k in range(4)] + [YL[2]+k for k in range(4)], DBG_OFF)
            A("  s_branch L_end")
        self.gelu()
        t = self.publish()
        self.stamp('gelu')
        if o.stop == 'gelu':
            self.dump_regs('h', list(range(100, 256)) + list(range(ST, ST+6)), DBG_OFF)
            A("  s_branch L_end")
        self.publish2(t)
        self.stamp('pub')
        self.wait_work_a()
        self.stamp('wwa')
        self.wait_work_b()
        self.stamp('wwb')
        self.final_poll()
        self.stamp('fin')
        self.w2_prep0()
        self.stamp('prep')
        self.gemm2()
        self.stamp('gemm2')
        self.stamp_dump()
        A("L_end:\n  s_endpgm")
        body = A.finalize(verbose=not o.quiet, align=o.align)
        hdr = f"""; Fused block: 5x5 depthwise conv + LayerNorm + GEMM(96->384) + GELU + GRN + GEMM(384->96) + residual.
; @launch grid=(256,1,1) block=(256,1,1) lds={LDS_BYTES}
.amdgcn_target "amdgcn-amd-amdhsa--gfx950"
.text
.globl {KNAME}
.p2align 8
.type {KNAME},@function
{KNAME}:
"""
        tail = f""".section .rodata,"a"
.p2align 6
.amdhsa_kernel {KNAME}
  .amdhsa_next_free_vgpr 512
  .amdhsa_next_free_sgpr 102
  .amdhsa_accum_offset 256
  .amdhsa_group_segment_fixed_size 0
  .amdhsa_kernarg_size 72
  .amdhsa_user_sgpr_count 2
  .amdhsa_user_sgpr_kernarg_segment_ptr 1
  .amdhsa_system_sgpr_workgroup_id_x 1
  .amdhsa_float_denorm_mode_32 3
.end_amdhsa_kernel
"""
        if o.names: open(o.names, 'w').write(",".join(self.stamps))
        return hdr + body + tail

if __name__ == '__main__':
    ap = argparse.ArgumentParser()
    ap.add_argument('-o', default='out.s')
    ap.add_argument('--stop', default='')
    ap.add_argument('--spin', type=int, default=200000)
    ap.add_argument('--quiet', action='store_true')
    ap.add_argument('--prof', action='store_true')
    ap.add_argument('--dbgstamp', action='store_true')
    ap.add_argument('--align', action='store_true')
    ap.add_argument('--lnsplit', action='store_true')
    ap.add_argument('--stmod', default='')
    ap.add_argument('--names', default='')
    ap.add_argument('--late', type=int, default=0)
    ap.add_argument('--gpad', type=int, default=-1)
    ap.add_argument('--dmapos', type=int, default=0)
    ap.add_argument('--w1mask', action='store_true')
    ap.add_argument('--tlb', action='store_true')
    ap.add_argument('--g2stamp', action='store_true')
    ap.add_argument('--blkstamp', action='store_true')
    ap.add_argument('--nojobs', action='store_true')
    ap.add_argument('--codekb', type=int, default=0)
    o = ap.parse_args()
    if o.stmod: o.stmod = ' ' + o.stmod
    g = G(o)
    open(o.o, 'w').write(g.build())
    print("wrote", o.o)
```

```python
import sys, struct, math, argparse
from asmlib import Asm

def f2u(x): return struct.unpack('<I', struct.pack('<f', x))[0]
KNAME = "standalone__modern_conv_block_slak__vision_kernel"

C1 = -2.0 * math.sqrt(2.0 / math.pi) * math.log2(math.e)
C2 = C1 * 0.044715
ALPHA = -((-C2) ** (1.0 / 3.0))
BETA = C1 / ALPHA
W1L = 0
W1P = 800
YB = 76800
XB = YB + 7680
XROW = 3840
DWT = XB + 18 * XROW
W2S = YB
CP = YB + 73728
CV = CP + 1536
GBL = DWT
PS = DWT + 1536
SP = PS + 6144
RES = 0
OUTS = YB
LP = YB + 8192
W2F = 0
LDS_BYTES = 163840
EPOCH_OFF = 0
L1_OFF = 4096
FIN_OFF = L1_OFF + 128 * 4096
NREP = 16
TAG_STEP = 0x9E3779B1
DBG_OFF = 0x200000
sX, sDW, sW1, sW2, sO = 24, 28, 32, 36, 40
sW, sX0, sY0, sTAG = 44, 45, 46, 47
sBETA = 50
sM0, sM1, sM2, sM3 = 52, 54, 56, 58
sDIAG, sLEFT, sBIG = 60, 62, 64
sXM, sRB = 65, 48
sT = 66
def srd(b): return f"s[{b}:{b+3}]"
def sp(b): return f"s[{b}:{b+1}]"
def v(a, n=1): return f"v{a}" if n == 1 else f"v[{a}:{a+n-1}]"
def a_(a, n=1): return f"a{a}" if n == 1 else f"a[{a}:{a+n-1}]"
vLANE16, vN, vQ, vAADR = 1, 2, 3, 4
YH = [8, 20, 32]
P0, P1, TT, AS, DP, ST = 44, 56, 68, 80, 84, 87
H = [100, 148, 196]; HL = 244
YL = [140, 144, 188]
P0L, P1L, TTL = 192, 236, 240
aNAT, aFR, aSEL, aONE, aOUT = 0, 72, 84, 92, 96
aRES = 32
aF, aG = 100, 196


class Track:
    def __init__(self): self.n = 0; self.done = 0
    def issue(self, k=1):
        self.n += k; return self.n
    def after(self, tid): return self.n - tid


class G:
    def __init__(self, opts):
        self.o = opts; self.A = Asm(); self.stamps = []
        self.vm = Track(); self.lg = Track(); self.w2id = 0
    def stamp(self, name):
        if not self.o.prof: return
        if len(self.stamps) >= 22: return
        k = len(self.stamps); self.stamps.append(name)
        self.A(f"  s_memtime s[78:79]\n  s_waitcnt lgkmcnt(0)\n  s_mov_b32 s{80+k}, s78"); self.lg.done = self.lg.n
    def ds(self, text):
        if self.lg.n - self.lg.done >= 15:
            self.A("  s_waitcnt lgkmcnt(13)"); self.lg.done = self.lg.n - 13
        self.A(text); return self.lg.issue()
    def drain(self, vm=False):
        self.A("  s_waitcnt " + ("vmcnt(0) " if vm else "") + "lgkmcnt(0)"); self.lg.done = self.lg.n
    def vmem(self, text):
        self.A(text); return self.vm.issue()
    def wait(self, vm=None, lg=None):
        p = []
        if vm is not None: p.append(f"vmcnt({min(63, self.vm.after(vm))})")
        if lg is not None:
            n = self.lg.after(lg); assert n <= 15, n
            p.append(f"lgkmcnt({n})"); self.lg.done = max(self.lg.done, lg)
        self.A("  s_waitcnt " + " ".join(p))
    def interleave(self, main, fill, per=1, start=0):
        fill = list(fill)
        for k, m in enumerate(main):
            m() if callable(m) else self.A(m)
            if k >= start:
                for _ in range(per):
                    if fill:
                        f = fill.pop(0); f() if callable(f) else self.A(f)
        return fill
    def emit(self, l):
        for f in l: f() if callable(f) else self.A(f)

    def xrow(self, r):
        A = self.A
        if r in (0, 1, 16, 17):
            A(f"""  s_add_u32 s{sT+1}, s{sRB}, {r*43008}
  s_cmp_eq_u32 s{sY0}, {0 if r < 2 else 210}
  s_cselect_b32 s{sT+1}, s{sBIG}, s{sT+1}
  s_add_u32 m0, s{sXM}, {r*XROW}""")
            A("  s_nop 0")
        else:
            A(f"  s_add_u32 m0, s{sXM}, {r*XROW}\n  s_add_u32 s{sT+1}, s{sRB}, {r*43008}")
        self.xid[r] = self.vmem(f"  buffer_load_dwordx4 v10, {srd(sX)}, s{sT+1} offen lds")
    def w1row(self, k):
        A = self.A
        A(f"  s_add_u32 m0, s{sT+10}, {k*W1P}\n  s_add_u32 s{sT}, s{sT+11}, {k*768}")
        msk = (k == 23) or self.o.w1mask
        if msk: A("  s_mov_b32 exec_hi, 0xffff")
        self.w1id = self.vmem(f"  buffer_load_dwordx4 v7, {srd(sW1)}, s{sT} offen lds")
        if msk: A("  s_mov_b32 exec_hi, -1")
    def job_gb(self):
        A = self.A
        A(f"""  s_cmp_eq_u32 s{sW}, 1
  s_cselect_b32 s72, s14, s12
  s_cselect_b32 s73, s15, s13
  s_mul_i32 s{sT+2}, s{sW}, 768
  s_add_u32 s{sT+2}, s{sT+2}, {GBL}
  s_and_b32 s73, s73, 0xffff
  s_mov_b32 s74, 768
  s_mov_b32 s75, 0x20000
  s_mov_b32 m0, s{sT+2}
  s_cmp_lt_u32 s{sW}, 2
  s_cbranch_scc0 L_nogb
  s_mov_b32 exec_hi, 0xffff
  buffer_load_dwordx4 v{vLANE16}, s[72:75], 0 offen lds
  s_mov_b32 exec_hi, -1
L_nogb:""")
    def job_touch_w2(self):
        A = self.A
        A(f"""  s_lshr_b32 s{sT}, s2, 3
  s_lshl_b32 s{sT}, s{sT}, 2
  s_add_u32 s{sT}, s{sT}, s{sW}
  s_lshl_b32 s{sT}, s{sT}, 10""")
        self.vmem(f"  buffer_load_dwordx4 a[244:247], v{vLANE16}, {srd(sW2)}, s{sT} offen")
    def job_touch_code(self):
        A = self.A
        n = self.o.codekb
        A(f"""  s_getpc_b64 s[{sT+2}:{sT+3}]
L_pcref:
  s_sub_u32 s{sT+2}, s{sT+2}, L_pcref-{KNAME}
  s_subb_u32 s{sT+3}, s{sT+3}, 0
  s_lshr_b32 s{sT}, s2, 3
  s_lshl_b32 s{sT}, s{sT}, 2
  s_add_u32 s{sT}, s{sT}, s{sW}
  s_lshl_b32 s{sT}, s{sT}, 10
  s_cmp_ge_u32 s{sT}, L_end-{KNAME}
  s_cbranch_scc1 L_notouch
  s_min_u32 s{sT}, s{sT}, L_end-{KNAME}-1020
  v_add_u32 v20, s{sT}, v{vLANE16}
  v_mov_b32 v23, s{sT+3}
  v_add_co_u32 v22, vcc, s{sT+2}, v20
  v_addc_co_u32 v23, vcc, 0, v23, vcc""")
        A(f"  global_load_dwordx4 a[248:251], v[22:23], off\nL_notouch:")
    def job_touch_tlb(self):
        A = self.A
        A(f"""  s_mul_i32 s{sT}, s{sY0}, 224
  s_add_u32 s{sT}, s{sT}, s{sX0}
  s_mul_i32 s{sT}, s{sT}, 192
  v_mov_b32 v11, {L1_OFF}""")
        self.vmem(f"  buffer_load_dword a252, v{vLANE16}, {srd(sO)}, s{sT} offen")
        self.vmem(f"  global_load_dword a253, v11, s[20:21] sc1")
    def job(self):
        if self.jobs: self.jobs.pop(0)()

    def setup(self):
        A = self.A; o = self.o
        self.xid = {}
        A("; ==== setup")
        A("  s_cmp_ge_u32 s2, 256\n  s_cbranch_scc1 L_end")
        if o.prof:
            A("  s_memrealtime s[78:79]\n  s_waitcnt lgkmcnt(0)\n  s_mov_b32 s49, s78\n  s_memtime s[78:79]\n  s_waitcnt lgkmcnt(0)\n  s_mov_b32 s80, s78")
            self.stamps.append('start')
        A(f"""
  s_load_dwordx16 s[4:19], s[0:1], 0
  s_load_dwordx2 s[20:21], s[0:1], 64
  v_lshrrev_b32 v5, 6, v0
  v_and_b32 v6, 63, v0
  v_readfirstlane_b32 s{sW}, v5
  v_lshlrev_b32 v{vLANE16}, 4, v6
  v_and_b32 v{vN}, 15, v6
  v_lshrrev_b32 v{vQ}, 4, v6""")
        if o.codekb: self.job_touch_code()
        A(f"""  s_and_b32 s{sT}, s2, 7
  s_lshr_b32 s{sT+1}, s2, 3
  s_and_b32 s{sT+2}, s{sT}, 3
  s_lshl_b32 s{sT+2}, s{sT+2}, 2
  s_and_b32 s{sT+3}, s{sT+1}, 3
  s_add_u32 s{sT+2}, s{sT+2}, s{sT+3}
  s_mul_i32 s{sX0}, s{sT+2}, 14
  s_lshr_b32 s{sT}, s{sT}, 2
  s_lshl_b32 s{sT}, s{sT}, 3
  s_lshr_b32 s{sT+1}, s{sT+1}, 2
  s_add_u32 s{sT}, s{sT}, s{sT+1}
  s_mul_i32 s{sY0}, s{sT}, 14
  s_mov_b32 s{sBIG}, 0x40000000
  s_lshl_b32 s{sT+7}, s{sW}, 6
  s_min_u32 s{sT+7}, s{sT+7}, 176
  v_add_u32 v11, s{sT+7}, v6
  v_mul_u32_u24 v7, 5042, v11
  v_lshrrev_b32 v7, 16, v7
  v_mul_u32_u24 v8, 13, v7
  v_sub_u32 v8, v11, v8
  s_sub_i32 s{sT}, s{sX0}, 2
  v_add_u32 v9, s{sT}, v7
  v_mul_u32_u24 v10, 192, v9
  v_lshl_add_u32 v10, v8, 4, v10
  s_movk_i32 s{sT+1}, 224
  v_cmp_gt_u32 vcc, s{sT+1}, v9
  v_cmp_gt_u32 s[{sT+2}:{sT+3}], 12, v8
  s_movk_i32 s{sT+1}, 234
  v_cmp_gt_u32 s[{sT+4}:{sT+5}], s{sT+1}, v11
  v_mov_b32 v11, s{sBIG}
  s_and_b64 vcc, vcc, s[{sT+2}:{sT+3}]
  s_and_b64 vcc, vcc, s[{sT+4}:{sT+5}]
  v_cndmask_b32 v10, v11, v10, vcc
  s_lshl_b32 s{sT+7}, s{sT+7}, 4
  s_add_u32 s{sXM}, s{sT+7}, {XB}
  s_sub_i32 s{sRB}, s{sY0}, 2
  s_mul_i32 s{sRB}, s{sRB}, 43008
  s_waitcnt lgkmcnt(0)
""")
        def mksrd(base, ptr, n):
            A(f"""  s_mov_b32 s{base}, s{ptr}
  s_and_b32 s{base+1}, s{ptr+1}, 0xffff
  s_mov_b32 s{base+2}, {n}
  s_mov_b32 s{base+3}, 0x20000""")
        mksrd(sDW, 6, 4800); mksrd(sX, 4, 9633792)
        A(f"""  s_lshl_b32 s{sT+6}, s{sW}, 10
  s_add_u32 m0, s{sT+6}, {DWT + 960}
  v_add_u32 v12, s{sT+6}, v{vLANE16}""")
        self.dwid = self.vmem(f"  buffer_load_dwordx4 v12, {srd(sDW)}, 0 offen lds")
        A(f"""  s_cmp_lg_u32 s{sW}, 0
  s_cbranch_scc1 L_nodw4
  s_mov_b32 m0, {DWT + 960 + 4096}
  v_add_u32 v12, 4096, v{vLANE16}
  buffer_load_dwordx4 v12, {srd(sDW)}, 0 offen lds
L_nodw4:""")
        n0 = o.n0
        for r in range(n0): self.xrow(r)
        self.stamp('x0-7')
        self.jobs = [lambda r=r: self.xrow(r) for r in range(n0, 18)]
        rest = [lambda k=k: self.w1row(k) for k in range(24)]
        rest.insert(1, self.job_gb); rest.insert(6, self.job_touch_w2)
        self.jobs += rest
        A(f"  s_load_dword s{sTAG}, s[20:21], {EPOCH_OFF}")
        mksrd(sW1, 8, 73728); mksrd(sW2, 10, 73728); mksrd(sO, 16, 9633792)
        A(f"""  s_mul_i32 s{sT+10}, s{sW}, {24*W1P}
  s_add_u32 s{sT+10}, s{sT+10}, {W1L}
  s_mul_i32 s{sT+11}, s{sW}, {24*768}
  s_mov_b32 s{sBETA}, {hex(f2u(BETA))}
  s_mov_b32 s{sBETA+1}, {hex(f2u(BETA))}
  s_mov_b32 s{sM0}, 0x11111111
  s_mov_b32 s{sM0+1}, 0x11111111
  s_mov_b32 s{sM1}, 0x22222222
  s_mov_b32 s{sM1+1}, 0x22222222
  s_mov_b32 s{sM2}, 0x44444444
  s_mov_b32 s{sM2+1}, 0x44444444
  s_mov_b32 s{sM3}, 0x88888888
  s_mov_b32 s{sM3+1}, 0x88888888
  s_mov_b32 s{sDIAG}, 0x00f0000f
  s_mov_b32 s{sDIAG+1}, 0xf0000f00
  s_mov_b32 s{sLEFT}, 0x000f000f
  s_mov_b32 s{sLEFT+1}, 0x000f000f
  v_subrev_u32 v7, 32, v{vLANE16}
  v_cmp_gt_u32 vcc, 48, v6
  v_subrev_u32 v8, 48, v6
  v_cndmask_b32 v7, v7, v{vLANE16}, vcc
  v_cmp_gt_u32 vcc, 2, v8
  s_nop 1
  v_cndmask_b32 v7, v7, v11, vcc
  v_mov_b32 v18, 0x3f803f80""")
        for j in range(4): A(f"  v_accvgpr_write_b32 {a_(aONE+j)}, v18")
        A(f"""  v_and_b32 v14, 1, v{vN}
  v_lshlrev_b32 v14, 4, v14
  v_mov_b32 v15, 0x3f80
  v_lshlrev_b32 v14, v14, v15
  v_lshrrev_b32 v15, 2, v{vN}
  v_cmp_eq_u32 vcc, v15, v{vQ}
  v_bfe_u32 v15, v{vN}, 1, 1
  v_cndmask_b32 v14, 0, v14, vcc
  v_cmp_eq_u32 vcc, 0, v15
  v_mov_b32 v18, 0
  v_cndmask_b32 v16, 0, v14, vcc
  v_cndmask_b32 v17, v14, 0, vcc
  v_accvgpr_write_b32 {a_(aSEL+0)}, v16
  v_accvgpr_write_b32 {a_(aSEL+1)}, v17
  v_accvgpr_write_b32 {a_(aSEL+2)}, v18
  v_accvgpr_write_b32 {a_(aSEL+3)}, v18
  v_accvgpr_write_b32 {a_(aSEL+4)}, v18
  v_accvgpr_write_b32 {a_(aSEL+5)}, v18
  v_accvgpr_write_b32 {a_(aSEL+6)}, v16
  v_accvgpr_write_b32 {a_(aSEL+7)}, v17""")
        A(f"""  v_mov_b64 v[12:13], 0
  v_mov_b64 v[14:15], 0
  v_lshlrev_b32 v16, 4, v0
  v_add_u32 v17, {DWT + 5760}, v16
  v_add_u32 v16, {DWT}, v16
  v_cmp_gt_u32 vcc, 180, v0
  s_and_saveexec_b64 s[{sT}:{sT+1}], vcc
  s_cbranch_execz L_noz0
  ds_write_b128 v17, v[12:15]
L_noz0:
  s_mov_b64 exec, s[{sT}:{sT+1}]
  v_cmp_gt_u32 vcc, 60, v0
  s_and_saveexec_b64 s[{sT}:{sT+1}], vcc
  s_cbranch_execz L_noz
  ds_write_b128 v16, v[12:15]
L_noz:
  s_mov_b64 exec, s[{sT}:{sT+1}]""")
        self.lg.issue(2)
        self.conv_addr()
        self.ln_addrs()
        self.late_addrs()
        self.stamp('precomp')

    cA, cIDX, cBF, cBG0, cBG1, cYW = 44, 92, 93, 94, 95, 96
    cD = [[208, 212, 216], [220, 224, 228]]
    cT = 232
    cAF, cAG, cML, cMH = 240, 241, 242, 243
    vLN = {'L': 97, 0: 98, 1: 99, 2: 5}
    vRES = [238, 239, 204]

    def conv_addr(self):
        A = self.A; t = 100
        A(f"""; conv addresses
  v_lshrrev_b32 v{t}, 3, v{vN}
  v_and_b32 v{t+1}, 7, v{vN}
  v_lshrrev_b32 v{t+2}, 1, v{vQ}
  v_sub_u32 v{t+2}, v{t+2}, v{t}
  v_add_u32 v{t+2}, 1, v{t+2}
  v_mul_u32_u24 v{t+2}, 960, v{t+2}
  v_and_b32 v{t+3}, 1, v{vQ}
  v_mul_u32_u24 v{t+3}, 384, v{t+3}
  v_add_u32 v{t+2}, v{t+2}, v{t+3}
  v_lshl_add_u32 v{t+2}, v{t+1}, 1, v{t+2}
  s_mul_i32 s{sT}, s{sW}, 48
  s_add_u32 s{sT+1}, s{sT}, {DWT}
  v_add_u32 v{self.cAF}, s{sT+1}, v{t+2}
  v_lshlrev_b32 v{t+3}, 1, v{vQ}
  v_sub_u32 v{t+3}, v{t+3}, v{t}
  v_add_u32 v{t+3}, 1, v{t+3}
  v_mul_u32_u24 v{t+3}, 960, v{t+3}
  v_lshl_add_u32 v{t+3}, v{t+1}, 1, v{t+3}
  s_add_u32 s{sT+1}, s{sT+1}, 768
  v_add_u32 v{self.cAG}, s{sT+1}, v{t+3}
  v_cmp_gt_u32 vcc, 4, v{t+1}
  v_and_b32 v{t+4}, 3, v{t+1}
  v_add_u32 v{t+5}, 1, v{t+4}
  v_and_b32 v{t+5}, 3, v{t+5}
  v_lshl_or_b32 v{t+4}, v{t+5}, 2, v{t+4}
  s_movk_i32 s{sT+2}, 0x1111
  v_mul_u32_u24 v{self.cIDX}, s{sT+2}, v{t+4}
  v_cndmask_b32 v{self.cML}, 0, -1, vcc
  v_not_b32 v{self.cMH}, v{self.cML}
  v_add_u32 v{t+6}, v{vN}, v{vQ}
  v_mul_u32_u24 v{t+6}, 208, v{t+6}
  s_add_u32 s{sT+1}, s{sT}, {XB}
  v_add_u32 v{self.cBF}, s{sT+1}, v{t+6}
  v_mul_u32_u24 v{t+6}, 208, v{vN}
  s_add_u32 s{sT+2}, s{sT+1}, {4*208}
  v_add_u32 v{t+8}, s{sT+2}, v{t+6}
  v_mul_u32_u24 v{t+7}, {XROW}, v{vQ}
  v_add_u32 v{self.cBG0}, v{t+8}, v{t+7}
  v_min_u32 v{t+7}, 1, v{vQ}
  v_add_u32 v{t+7}, 4, v{t+7}
  v_mul_u32_u24 v{t+7}, {XROW}, v{t+7}
  v_add_u32 v{self.cBG1}, v{t+8}, v{t+7}
  v_lshrrev_b32 v{t+7}, 1, v{vQ}
  v_mul_u32_u24 v{t+7}, 3328, v{t+7}
  v_add_u32 v{t+6}, v{t+6}, v{t+7}
  v_and_b32 v{t+7}, 1, v{vQ}
  v_lshl_add_u32 v{t+6}, v{t+7}, 3, v{t+6}
  s_add_u32 s{sT+1}, s{sT}, {YB}
  v_add_u32 v{self.cYW}, s{sT+1}, v{t+6}""")

    def ln_addrs(self):
        A = self.A; t = 100
        for slot in ('L', 0, 1, 2):
            d = self.vLN[slot]
            if slot == 'L': A(f"  v_min_u32 v{t}, 3, v{vN}")
            else:
                A(f"  s_lshl_b32 s{sT}, s{sW}, 4\n  s_add_u32 s{sT}, s{sT}, {4 + 64*slot}\n  v_add_u32 v{t}, s{sT}, v{vN}")
            A(f"""  v_mul_u32_u24 v{t+1}, 4682, v{t}
  v_lshrrev_b32 v{t+1}, 16, v{t+1}
  v_mul_u32_u24 v{t+2}, 14, v{t+1}
  v_sub_u32 v{t}, v{t}, v{t+2}
  v_mul_u32_u24 v{d}, 208, v{t}
  v_lshl_add_u32 v{d}, v{vQ}, 3, v{d}
  v_lshrrev_b32 v{t+2}, 1, v{t+1}
  v_mul_u32_u24 v{t+2}, 7680, v{t+2}
  v_add_u32 v{d}, v{d}, v{t+2}
  v_and_b32 v{t+2}, 1, v{t+1}
  v_mul_u32_u24 v{t+2}, 3328, v{t+2}
  v_add_u32 v{d}, v{d}, v{t+2}
  v_add_u32 v{d}, {YB}, v{d}""")
            if slot != 'L':
                r_ = self.vRES[slot]
                A(f"""  v_mul_u32_u24 v{r_}, 208, v{t}
  v_mul_u32_u24 v{t+2}, {XROW}, v{t+1}
  v_add_u32 v{r_}, v{r_}, v{t+2}
  v_lshl_add_u32 v{r_}, v{vQ}, 4, v{r_}
  v_add_u32 v{r_}, {XB + 2*XROW + 2*208}, v{r_}""")

    SK = {n: k for k, n in enumerate(['p0', 'p1', 'p2', 'rd', 'st', 'o0', 'o1', 'o2', 'r0', 'r1', 'r2', 'd0', 'd1', 'd2',
                                      'b0', 'b1', 'b2', 'b3', 'w2w', 'lp', 'spa', 'w2r', 'br', 'gr',
                                      'ps0', 'ps1', 'ps2', 'ps3', 'ps4', 'ps5', 'psr', 'l1'])}
    def put(self, name, reg): self.A(f"  v_accvgpr_write_b32 a{self.SK[name]}, v{reg}")
    def get(self, reg, name): self.A(f"  v_accvgpr_read_b32 v{reg}, a{self.SK[name]}")
    def late_addrs(self):
        A = self.A
        t = 100
        A(f"  v_lshrrev_b32 v{t+3}, 4, v{vLANE16}")
        for jj in range(3):
            A(f"""  v_add_u32 v{t+4}, {64*jj}, v{t+3}
  v_mul_u32_u24 v{t+5}, 5462, v{t+4}
  v_lshrrev_b32 v{t+5}, 16, v{t+5}
  v_mul_u32_u24 v{t+6}, 12, v{t+5}
  v_sub_u32 v{t+6}, v{t+4}, v{t+6}
  v_lshrrev_b32 v{t+7}, 3, v{t+5}
  v_mul_u32_u24 v{t+7}, 3, v{t+7}
  v_xor_b32 v{t+6}, v{t+6}, v{t+7}
  v_mul_u32_u24 v{t+5}, 192, v{t+5}
  v_lshl_add_u32 v{t+5}, v{t+6}, 4, v{t+5}
  v_subrev_u32 v{t+5}, {1024*jj}, v{t+5}""")
            self.put(f'p{jj}', t + 5)
        if self.o.late == 0: self.late_mid()
        A(f"""  v_and_b32 v{t}, 3, v{vN}
  s_mul_i32 s{sT}, s{sW}, 6
  v_add_u32 v{t}, s{sT}, v{t}
  v_lshrrev_b32 v{t+1}, 2, v{vN}
  v_and_b32 v{t+2}, 1, v{t+1}
  v_lshrrev_b32 v{t+1}, 1, v{t+1}
  v_lshl_or_b32 v{t+1}, v{t+2}, 1, v{t+1}
  v_lshl_add_u32 v{t+1}, v{vQ}, 2, v{t+1}
  v_lshlrev_b32 v{t+1}, 2, v{t+1}
  s_mul_i32 s{sT}, s{sW}, 1536
  s_add_u32 s{sT}, s{sT}, {PS}
  v_add_u32 v{t+1}, s{sT}, v{t+1}""")
        for k in range(6):
            A(f"""  v_add_u32 v{t+2}, {4*k}, v{t}
  v_subrev_u32 v{t+3}, 24, v{t+2}
  v_min_u32 v{t+2}, v{t+2}, v{t+3}
  v_lshl_add_u32 v{t+2}, v{t+2}, 6, v{t+1}""")
            self.put(f'ps{k}', t + 2)
        A(f"  v_lshlrev_b32 v{t}, 2, v0\n  v_add_u32 v{t}, {PS}, v{t}"); self.put('psr', t)
        A(f"""  v_lshlrev_b32 v{t+1}, 12, v0
  s_lshl_b32 s{sT}, s2, 4
  s_add_u32 s{sT}, s{sT}, {L1_OFF}
  v_add_u32 v{t+1}, s{sT}, v{t+1}"""); self.put('l1', t + 1)

    def late_mid(self, t=100):
        A = self.A
        A(f"""  v_lshrrev_b32 v{t}, 6, v{vLANE16}
  v_bfe_u32 v{t+1}, v{vLANE16}, 4, 2
  v_bfe_u32 v{t+2}, v{t}, 1, 2
  v_xor_b32 v{t+2}, v{t+2}, v{t+1}
  v_lshlrev_b32 v{t+3}, 6, v{t}
  v_lshl_add_u32 v{t+3}, v{t+2}, 4, v{t+3}
  s_lshl_b32 s{sT+1}, s{sW}, 11
  s_add_u32 s{sT+1}, s{sT+1}, {OUTS}
  v_add_u32 v{t+3}, s{sT+1}, v{t+3}""")
        self.put('rd', t + 3)
        A(f"""  v_bfe_u32 v{t+3}, v{vN}, 1, 2
  v_xor_b32 v{t+3}, v{t+3}, v{vQ}
  v_lshlrev_b32 v{t+4}, 6, v{vN}
  v_lshl_add_u32 v{t+3}, v{t+3}, 4, v{t+4}""")
        self.put('st', t + 3)
        def pxoff(d, src, sl):
            A(f"""  s_lshl_b32 s{sT}, s{sW}, 4
  s_add_u32 s{sT}, s{sT}, {4 + 64*sl}
  v_add_u32 v{d}, s{sT}, v{src}
  v_mul_u32_u24 v{t+4}, 4682, v{d}
  v_lshrrev_b32 v{t+4}, 16, v{t+4}
  v_mul_u32_u24 v{t+5}, 14, v{t+4}
  v_sub_u32 v{d}, v{d}, v{t+5}
  v_add_u32 v{t+4}, s{sY0}, v{t+4}
  v_mul_u32_u24 v{t+4}, 224, v{t+4}
  v_add_u32 v{d}, v{d}, v{t+4}
  v_add_u32 v{d}, s{sX0}, v{d}
  v_mul_u32_u24 v{d}, 192, v{d}""")
        for sl in range(3):
            pxoff(t + 6, t, sl)
            A(f"  v_lshl_add_u32 v{t+7}, v{t+1}, 4, v{t+6}")
            self.put(f'o{sl}', t + 7)
            pxoff(t + 6, vN, sl)
            A(f"  v_lshl_add_u32 v{t+6}, v{vQ}, 4, v{t+6}")
            self.put(f'd{sl}', t + 6)
        for k in range(4):
            A(f"""  s_add_u32 s{sT}, s{sW}, {k}
  s_and_b32 s{sT}, s{sT}, 3
  s_mul_i32 s{sT}, s{sT}, 3072
  v_add_u32 v{t+6}, s{sT}, v{vLANE16}""")
            self.put(f'b{k}', t + 6)
        A(f"  s_mul_i32 s{sT}, s{sW}, 3072\n  v_add_u32 v{t+6}, s{sT}, v{vLANE16}"); self.put('w2w', t + 6)
        A(f"""  s_mul_i32 s{sT}, s{sW}, 1536
  s_add_u32 s{sT}, s{sT}, {LP}
  v_mul_u32_u24 v{t+6}, 384, v{vN}
  v_lshl_add_u32 v{t+6}, v{vQ}, 5, v{t+6}
  v_add_u32 v{t+6}, s{sT}, v{t+6}"""); self.put('lp', t + 6)
        A(f"""  s_mul_i32 s{sT}, s{sW}, 384
  s_add_u32 s{sT}, s{sT}, {SP}
  v_lshlrev_b32 v{t+6}, 4, v{vQ}
  v_add_u32 v{t+6}, s{sT}, v{t+6}"""); self.put('spa', t + 6)
        A(f"""  s_mul_i32 s{sT}, s{sW}, 18432
  s_add_u32 s{sT}, s{sT}, {W2S}
  v_lshrrev_b32 v{t+3}, 3, v{vN}
  v_mul_u32_u24 v{t+3}, 3, v{t+3}
  v_xor_b32 v{t+3}, v{t+3}, v{vQ}
  v_mul_u32_u24 v{t+6}, 192, v{vN}
  v_lshl_add_u32 v{t+6}, v{t+3}, 4, v{t+6}
  v_add_u32 v{t+6}, s{sT}, v{t+6}"""); self.put('w2r', t + 6)
        A(f"""  s_mul_i32 s{sT}, s{sW}, 192
  s_add_u32 s{sT}, s{sT}, {GBL + 768}
  v_lshlrev_b32 v{t+6}, 3, v{vQ}
  v_add_u32 v{t+6}, s{sT}, v{t+6}"""); self.put('br', t + 6)
        A(f"  v_lshrrev_b32 v{t+6}, 3, v{vLANE16}\n  v_add_u32 v{t+6}, {GBL}, v{t+6}"); self.put('gr', t + 6)

    def a_build(self):
        A = self.A
        self.drain()
        self.wait(vm=self.dwid)
        A("  s_barrier")
        W = 100
        ids = []
        for gl in range(3):
            for f in range(4):
                for z in range(2):
                    r = W + (gl * 4 + f) * 2 + z
                    if f < 3: ids.append(self.ds(f"  ds_read_u16 v{r}, v{self.cAF} offset:{f*1920 + z*192 + 16*gl}"))
                    else: ids.append(self.ds(f"  ds_read_u16 v{r}, v{self.cAG} offset:{z*960 + 16*gl}"))
            self.job()
            if gl == 0: continue
            self.wait(lg=ids[8*gl - 1]); self.a_and(gl - 1, W); self.job()
        self.wait(lg=ids[-1]); self.a_and(2, W); self.job()
    def a_and(self, gl, W):
        for f in range(4):
            r = W + (gl * 4 + f) * 2; d = self.cA + (gl * 4 + f) * 4
            self.A(f"""  v_and_b32 v{d}, v{r}, v{self.cML}
  v_and_b32 v{d+1}, v{r}, v{self.cMH}
  v_and_b32 v{d+2}, v{r+1}, v{self.cML}
  v_and_b32 v{d+3}, v{r+1}, v{self.cMH}""")

    def Freg(self, gl, rho): return aF + (((rho // 2) % 4) * 3 + gl) * 8
    def Greg(self, gl, b): return aG + ((b % 2) * 3 + gl) * 8
    def conv_reads(self, b):
        Y = 2 * b; L = []
        def rd(dst, base, off): L.append(lambda: setattr(self, 'lastrd', self.ds(f"  ds_read_b128 {a_(dst,4)}, v{base} offset:{off}")))
        for gl in range(3):
            rhos = [0, 2, 4] if b == 0 else [Y + 4]
            for rho in rhos:
                rd(self.Freg(gl, rho), self.cBF, rho * XROW + 16 * gl)
                rd(self.Freg(gl, rho) + 4, self.cBF, (rho + 1) * XROW + 16 * gl)
            rd(self.Greg(gl, b), self.cBG0, Y * XROW + 16 * gl)
            rd(self.Greg(gl, b) + 4, self.cBG1, Y * XROW + 16 * gl)
        return L
    def conv_zero(self, b): return [f"  v_mov_b64 {v(self.cD[b%2][gl]+2*h,2)}, 0" for gl in range(3) for h in range(2)]
    def conv_mfmas(self, b):
        Y = 2 * b; L = []
        for f in range(4):
            for gl in range(3):
                B = a_(self.Freg(gl, Y + 2*f), 8) if f < 3 else a_(self.Greg(gl, b), 8)
                L.append(f"  v_smfmac_f32_16x16x64_bf16 {v(self.cD[b%2][gl],4)}, {v(self.cA+(gl*4+f)*4,4)}, {B}, v{self.cIDX}")
        return L
    def conv_epi(self, b):
        L = []
        for gl in range(3):
            d = self.cD[b % 2][gl]; t = self.cT + 2 * gl
            L.append(f"  v_cvt_pk_bf16_f32 v{t}, v{d}, v{d+1}")
            L.append(f"  v_cvt_pk_bf16_f32 v{t+1}, v{d+2}, v{d+3}")
            L.append(lambda t=t, gl=gl: self.ds(f"  ds_write_b64 v{self.cYW}, {v(t,2)} offset:{b*7680 + 16*gl}"))
        return L

    def conv_all(self):
        A = self.A
        self.job()
        self.wait(vm=self.xid[5]); A("  s_barrier")
        rd = self.conv_reads(0)
        for k, r in enumerate(rd):
            r()
            if k == 7: self.emit(self.conv_zero(0))
            if k == 15: self.job()
        for b in range(7):
            A(f"; ==== conv block {b}")
            nxt = []
            if b < 6:
                while 2 * b + 7 not in self.xid: self.job()
                self.wait(vm=self.xid[2 * b + 7]); A("  s_barrier")
                nxt = self.conv_reads(b + 1)
            else:
                A("  s_barrier")
            self.wait(lg=self.lastrd)
            if b in (0, 2, 4):
                sl = b // 2
                for a in range(3): self.ds(f"  ds_read_b128 {a_(aRES+(sl*3+a)*4,4)}, v{self.vRES[sl]} offset:{64*a}")
            mf = self.conv_mfmas(b)
            for k, m in enumerate(mf):
                A(m)
                if nxt: nxt.pop(0)()
                if k % 3 == 1 and (b < 2 or k != 10): self.job()
            self.emit(nxt)
            if b < 6: self.emit(self.conv_zero(b + 1))
            else: A("  s_nop 4")
            self.emit(self.conv_epi(b))
            if self.o.blkstamp: self.stamp(f'b{b}')
            if b == 5:
                self.ln_tiles(['L', 0], jobs=True)
                if self.o.blkstamp: self.stamp('lnL0')
        while self.jobs: self.job()
        self.drain(); A("  s_barrier")
        self.stamp('conv')
        self.ln_tiles([1, 2])
    def ln_tiles(self, slots, jobs=False):
        A = self.A
        A(f"; ==== LN tiles {slots}")
        bases = [100, 148]
        R = []
        for k, sl in enumerate(slots):
            b = bases[k]
            R.append(dict(sl=sl, U=b, Dg=b + 24, Ds=b + 28, st=b + 32, raw=(192 if k == 0 else 244),
                          dest=(lambda q, sl=sl: YH[sl] + q) if sl != 'L' else (lambda q: YL[q // 4] + q % 4)))
        for r in R:
            for s in range(3):
                for z in range(2):
                    r['id'] = self.ds(f"  ds_read_b64 {v(r['raw']+4*s+2*z,2)}, v{self.vLN[r['sl']]} offset:{64*s + 32*z}")
        def mfs(r):
            raw = r['raw']; mf = []
            for s in range(3):
                mf.append(f"  v_mfma_f32_16x16x32_bf16 {v(r['Dg'],4)}, {v(raw+4*s,4)}, {v(raw+4*s,4)}, " + ("0" if s == 0 else v(r['Dg'],4)))
                mf.append(f"  v_mfma_f32_16x16x32_bf16 {v(r['Ds'],4)}, {a_(aONE,4)}, {v(raw+4*s,4)}, " + ("0" if s == 0 else v(r['Ds'],4)))
            return mf
        def unp(r):
            raw = r['raw']; un = []
            for k in range(12):
                un.append(f"  v_lshlrev_b32 v{r['U']+2*k}, 16, v{raw+k}")
                un.append(f"  v_and_b32 v{r['U']+2*k+1}, 0xffff0000, v{raw+k}")
            return un
        def sel(r):
            st, Dg = r['st'], r['Dg']
            return [f"  v_cndmask_b32 v{st}, v{Dg}, v{Dg+1}, {sp(sM1)}",
                    f"  v_cndmask_b32 v{st}, v{st}, v{Dg+2}, {sp(sM2)}",
                    f"  v_cndmask_b32 v{st}, v{st}, v{Dg+3}, {sp(sM3)}",
                    f"  v_cndmask_b32 v{st}, 0, v{st}, {sp(sDIAG)}",
                    f"  v_mov_b32 v{st+1}, 1.0",
                    f"  v_mul_f32 v{st+2}, {hex(f2u(1.0/96))}, v{r['Ds']}"]
        def f32m(r): return f"  v_mfma_f32_16x16x4_f32 {v(r['Dg'],4)}, v{r['st']+1}, v{r['st']}, 0"
        def stats(r):
            st, Dg = r['st'], r['Dg']
            s_ = [f"  v_mul_f32 v{st+3}, {hex(f2u(1.0/96))}, v{Dg}",
                  f"  v_fma_f32 v{st+3}, -v{st+2}, v{st+2}, v{st+3}",
                  f"  v_max_f32 v{st+3}, 0, v{st+3}",
                  f"  v_add_f32 v{st+3}, {hex(f2u(1e-5))}, v{st+3}",
                  f"  v_rsq_f32 v{st+3}, v{st+3}",
                  f"  v_mul_f32 v{st+2}, {hex(f2u(-ALPHA))}, v{st+2}",
                  f"  v_mul_f32 v{st+4}, {hex(f2u(ALPHA))}, v{st+3}"]
            if r['sl'] == 'L': s_.append(f"  v_cndmask_b32 v{st+4}, 0, v{st+4}, {sp(sLEFT)}")
            s_.append(f"  v_mul_f32 v{st}, v{st+2}, v{st+3}")
            if r['sl'] == 'L': s_.append(f"  v_cndmask_b32 v{st}, 0, v{st}, {sp(sLEFT)}")
            return s_
        def norm(r):
            U, st = r['U'], r['st']
            return [f"  v_pk_fma_f32 {v(U+2*k,2)}, {v(U+2*k,2)}, {v(st+4,2)}, {v(st,2)} op_sel_hi:[1,0,0]" for k in range(12)]
        def cvt(r): return [f"  v_cvt_pk_bf16_f32 v{r['dest'](k)}, v{r['U']+2*k}, v{r['U']+2*k+1}" for k in range(12)]
        a, b = R
        self.wait(lg=a['id'])
        J = (lambda: self.job()) if jobs else (lambda: None)
        self.emit(self.interleave(mfs(a), unp(a), per=2)); J()
        ub = unp(b)
        self.wait(lg=b['id'])
        mb = mfs(b); fill = ub[:6] + sel(a) + ub[6:]
        left = self.interleave(mb, fill, per=2)
        A(f32m(a)); J(); self.emit(left); J()
        self.emit(sel(b)); A(f32m(b)); J()
        self.emit(stats(a))
        sb = stats(b)
        na = norm(a)
        A("  s_nop 1")
        self.emit(sb[:2])
        self.emit(self.interleave(na, sb[2:], per=1))
        self.emit(cvt(a)[:4]); J()
        self.emit(norm(b)); J(); self.emit(cvt(a)[4:]); J(); self.emit(cvt(b)); J()
    def prologue(self):
        self.setup()
        self.a_build()
        self.stamp('abuild')
        self.conv_all()
        self.stamp('ln')

    def a_addr(self, seg):
        self.A(f"""  s_add_u32 s{sT}, s{sW}, {seg}
  s_and_b32 s{sT}, s{sT}, 3
  s_mul_i32 s{sT}, s{sT}, 192
  v_add_u32 v{vAADR}, s{sT}, v6""")
    def a_loads(self, i):
        L = []
        for s in range(3):
            for z in range(2):
                L.append(lambda s=s, z=z: setattr(self, 'afr_id', self.ds(f"  ds_read_b64_tr_b16 {a_(aFR+4*s+2*z,2)}, v{vAADR} offset:{s*32*W1P + z*16*W1P + 32*(i%6)}")))
        return L
    def tiles(self, i): return 4 if i < 6 else 3
    def accregs(self, i):
        base = P0 if i % 2 == 0 else P1
        l = [base, base + 4, base + 8]
        if i < 6: l.append(P0L if i % 2 == 0 else P1L)
        return l
    def gemm1_mfmas(self, i):
        acc = self.accregs(i); out = []
        for s in range(3):
            for tl in range(self.tiles(i)):
                B = v(YH[tl] + 4 * s, 4) if tl < 3 else v(YL[s], 4)
                C = "0" if s == 0 else v(acc[tl], 4)
                out.append(f"  v_mfma_f32_16x16x32_bf16 {v(acc[tl],4)}, {a_(aFR+4*s,4)}, {B}, {C}")
        return out
    def dpp_tail(self, i):
        b0, b1, c = DP, DP + 1, DP + 2
        mj = [sM0, sM1, sM2, sM3][i % 4]
        return [f"  v_add_f32_dpp v{b0}, v{AS}, v{AS} row_ror:8 row_mask:0xf bank_mask:0x3",
                f"  v_add_f32_dpp v{b0}, v{AS+1}, v{AS+1} row_ror:8 row_mask:0xf bank_mask:0xc",
                f"  v_add_f32_dpp v{b1}, v{AS+2}, v{AS+2} row_ror:8 row_mask:0xf bank_mask:0x3",
                f"  v_add_f32_dpp v{b1}, v{AS+3}, v{AS+3} row_ror:8 row_mask:0xf bank_mask:0xc",
                f"  v_add_f32_dpp v{c}, v{b0}, v{b0} row_half_mirror row_mask:0xf bank_mask:0x5",
                f"  v_add_f32_dpp v{c}, v{b1}, v{b1} row_half_mirror row_mask:0xf bank_mask:0xa",
                f"  v_add_f32_dpp v{c}, v{c}, v{c} quad_perm:[1,0,3,2] row_mask:0xf bank_mask:0xf",
                f"  v_add_f32_dpp v{c}, v{c}, v{c} quad_perm:[2,3,0,1] row_mask:0xf bank_mask:0xf",
                f"  v_cndmask_b32 v{ST + i//4}, v{ST + i//4}, v{c}, {sp(mj)}"]
    def hdst(self, i, tl, j): return (H[tl] + 2 * i + j) if tl < 3 else (HL + 2 * i + j)
    def w2dma(self, j):
        gi, jj = j // 3, j % 3
        if jj == 0:
            self.A(f"  s_add_u32 m0, s{sT+11}, {3072*gi}\n  s_add_u32 s{sT+1}, s{sT+10}, {3072*gi}")
        self.w2id = self.vmem(f"  buffer_load_dwordx4 v{93+jj}, {srd(sW2)}, s{sT+1} offen offset:{1024*jj} lds")
    def gelu_iter(self, i, pend):
        A = self.A
        A(f"; ==== gelu iter {i}")
        nt = self.tiles(i); acc = self.accregs(i)
        T = [TT, TT + 4, TT + 8] + ([TTL] if nt == 4 else [])
        pairs = [(tl, h) for tl in range(nt) for h in range(2)]
        U = lambda tl, h: v(acc[tl] + 2 * h, 2)
        TP = lambda tl, h: v(T[tl] + 2 * h, 2)
        seq = [f"  v_pk_fma_f32 {TP(tl,h)}, {U(tl,h)}, {U(tl,h)}, {sp(sBETA)}" for tl, h in pairs] + \
              [f"  v_pk_mul_f32 {TP(tl,h)}, {TP(tl,h)}, {U(tl,h)}" for tl, h in pairs]
        slots = {0: [0, 1], 1: [2, 3], 3: [4, 5], 6: [6], 9: [7], 11: [8]} if pend else {}
        for k, ins in enumerate(seq):
            A(ins)
            for x in slots.get(k, []): A(pend[x])
        exps = [f"  v_exp_f32 v{T[tl]+j}, v{T[tl]+j}" for tl in range(nt) for j in range(4)]
        if i + 1 < 24:
            mf = self.gemm1_mfmas(i + 1)
            self.wait(lg=self.afr_id)
            e = 0
            for k, m in enumerate(mf):
                A(m)
                if self.o.dmapos == 0 and k == 1 and 1 <= i < 19: self.w2dma(i - 1)
                if k < len(mf) - 1: A(exps[e]); e += 1
            if i + 2 < 24:
                if (i + 2) % 6 == 0: self.a_addr((i + 2) // 6)
                self.emit(self.a_loads(i + 2))
            if self.o.dmapos == 3 and 1 <= i < 19: self.w2dma(i - 1)
            while e < len(exps): A(exps[e]); e += 1
        else:
            for x in exps: A(x)
        for tl, h in pairs: A(f"  v_pk_add_f32 {TP(tl,h)}, {TP(tl,h)}, 1.0 op_sel_hi:[1,0]")
        for tl in range(nt):
            for j in range(4): A(f"  v_rcp_f32 v{T[tl]+j}, v{T[tl]+j}")
            if self.o.dmapos == 1 and tl == 1 and 1 <= i < 19: self.w2dma(i - 1)
        if self.o.dmapos == 2 and 1 <= i < 19: self.w2dma(i - 1)
        for tl, h in pairs: A(f"  v_pk_mul_f32 {TP(tl,h)}, {TP(tl,h)}, {U(tl,h)}")
        for tl in range(nt):
            for h in range(2):
                if tl == 0: A(f"  v_pk_mul_f32 {v(AS+2*h,2)}, {TP(tl,h)}, {TP(tl,h)}")
                else: A(f"  v_pk_fma_f32 {v(AS+2*h,2)}, {TP(tl,h)}, {TP(tl,h)}, {v(AS+2*h,2)}")
        for tl, h in pairs: A(f"  v_cvt_pk_bf16_f32 v{self.hdst(i,tl,h)}, v{T[tl]+2*h}, v{T[tl]+2*h+1}")
        return self.dpp_tail(i)
    def gelu(self):
        A = self.A
        A("; ==== gelu prologue")
        A(f"""  v_lshrrev_b32 v6, 2, v{vN}
  v_lshl_add_u32 v6, v{vQ}, 2, v6
  v_mul_u32_u24 v6, {W1P}, v6
  v_and_b32 v7, 3, v{vN}
  v_lshl_add_u32 v6, v7, 3, v6""")
        self.a_addr(0)
        for jj in range(3): self.get(93 + jj, f'p{jj}')
        A(f"""  s_mul_i32 s{sT+10}, s{sW}, 18432
  s_add_u32 s{sT+11}, s{sT+10}, {W2S}""")
        A("  s_waitcnt vmcnt(0)\n  s_barrier")
        self.emit(self.a_loads(0))
        for k in range(6): A(f"  v_mov_b32 v{ST+k}, 0")
        self.wait(lg=self.afr_id)
        for m in self.gemm1_mfmas(0): A(m)
        self.emit(self.a_loads(1))
        A("  s_nop 3")
        if self.o.gpad >= 0:
            A("; @align64")
            for _ in range(self.o.gpad): A("  s_nop 0")
        pend = []
        for i in range(24): pend = self.gelu_iter(i, pend)
        A("; ==== gelu tail")
        for l in pend: A(l)

    def publish(self):
        A = self.A
        self.wait(vm=self.w2id)
        t = TT
        for k in range(6): self.get(t + 4 + k, f'ps{k}')
        self.get(t, 'psr'); self.get(t + 1, 'l1')
        return t
    def publish2(self, t):
        A = self.A
        for k in range(6): self.ds(f"  ds_write_b32 v{t+4+k}, v{ST+k}")
        A(f"""  s_add_u32 s{sTAG}, s{sTAG}, {hex(TAG_STEP)}
  s_cmp_eq_u32 s{sTAG}, 0
  s_cselect_b32 s{sT}, {hex(TAG_STEP)}, 0
  s_add_u32 s{sTAG}, s{sTAG}, s{sT}
  s_waitcnt lgkmcnt(0)
  s_barrier
  s_cmp_ge_u32 s{sW}, 2
  s_cbranch_scc1 L_nopub"""); self.lg.done = self.lg.n
        r = P0
        for w in range(4): A(f"  ds_read2st64_b32 {v(r+2*w,2)}, v{t} offset0:{6*w} offset1:{6*w+2}")
        A(f"  ds_read2st64_b32 {v(r+8,2)}, v{t} offset0:4 offset1:10")
        A(f"  ds_read2st64_b32 {v(r+10,2)}, v{t} offset0:16 offset1:22")
        A(f"""  v_mov_b32 v{t+7}, s{sTAG}
  s_waitcnt lgkmcnt(0)
  v_add_f32 v{t+4}, v{r}, v{r+2}
  v_add_f32 v{t+5}, v{r+1}, v{r+3}
  v_add_f32 v{t+6}, v{r+8}, v{r+9}
  v_add_f32 v{r+4}, v{r+4}, v{r+6}
  v_add_f32 v{r+5}, v{r+5}, v{r+7}
  v_add_f32 v{r+10}, v{r+10}, v{r+11}
  v_add_f32 v{t+4}, v{t+4}, v{r+4}
  v_add_f32 v{t+5}, v{t+5}, v{r+5}
  v_add_f32 v{t+6}, v{t+6}, v{r+10}
  global_store_dwordx4 v{t+1}, {v(t+4,4)}, s[20:21] sc1
L_nopub:""")

    def reducer(self, t, r):
        A = self.A
        A(f"""  s_cmp_lg_u32 s{sW}, 3
  s_cbranch_scc1 L_nored
  s_cmp_ge_u32 s2, 128
  s_cbranch_scc1 L_nored
  s_lshl_b32 s{sT}, s2, 12
  s_add_u32 s{sT}, s{sT}, {L1_OFF}
  v_add_u32 v{t}, s{sT}, v{vLANE16}
  s_mov_b32 s{sT+2}, 0
L_poll1:""")
        for k in range(4): A(f"  global_load_dwordx4 {v(r+4*k,4)}, v{t}, s[20:21] offset:{1024*k} sc1")
        A(f"""  s_add_u32 s{sT+2}, s{sT+2}, 1
  s_waitcnt vmcnt(0)
  v_cmp_eq_u32 vcc, s{sTAG}, v{r+3}
  v_cmp_eq_u32 s[{sT+4}:{sT+5}], s{sTAG}, v{r+7}
  v_cmp_eq_u32 s[{sT+6}:{sT+7}], s{sTAG}, v{r+11}
  v_cmp_eq_u32 s[{sT+8}:{sT+9}], s{sTAG}, v{r+15}
  s_and_b64 vcc, vcc, s[{sT+4}:{sT+5}]
  s_and_b64 s[{sT+6}:{sT+7}], s[{sT+6}:{sT+7}], s[{sT+8}:{sT+9}]
  s_and_b64 vcc, vcc, s[{sT+6}:{sT+7}]
  s_cmp_eq_u64 vcc, exec
  s_cbranch_scc1 L_red_go
  s_cmp_lt_u32 s{sT+2}, {self.o.spin}
  s_cbranch_scc1 L_poll1
L_red_go:""")
        for c in range(3): A(f"  v_add_f32 v{r+c}, v{r+c}, v{r+4+c}\n  v_add_f32 v{r+8+c}, v{r+8+c}, v{r+12+c}")
        for c in range(3): A(f"  v_add_f32 v{r+c}, v{r+c}, v{r+8+c}")
        for d in ("row_shr:1 row_mask:0xf", "row_shr:2 row_mask:0xf", "row_shr:4 row_mask:0xf", "row_shr:8 row_mask:0xf", "row_bcast:15 row_mask:0xa", "row_bcast:31 row_mask:0xc"):
            for c in range(3): A(f"  v_add_f32_dpp v{r+c}, v{r+c}, v{r+c} {d} bank_mask:0xf")
        for c in range(3): A(f"  v_readlane_b32 s{sT+4+c}, v{r+c}, 63")
        A(f"""  s_lshl_b32 s{sT}, s2, 4
  s_add_u32 s{sT}, s{sT}, {FIN_OFF}
  v_lshlrev_b32 v{t}, 11, v{vN}
  v_add_u32 v{t}, s{sT}, v{t}
  v_mov_b32 v{r}, s{sT+4}
  v_mov_b32 v{r+1}, s{sT+5}
  v_mov_b32 v{r+2}, s{sT+6}
  v_mov_b32 v{r+3}, s{sTAG}
  s_mov_b64 exec, {(1<<NREP)-1}
  global_store_dwordx4 v{t}, {v(r,4)}, s[20:21] sc1
  s_mov_b64 exec, -1
L_nored:""")

    XC = 8
    vOUT = 92
    vB2 = 95
    vW2W, vLP, vSPA = 99, 5, 6
    vST, vRD = 4, 7
    vOD = [0, 2, 3]
    def spr(self, tl): return (80 + 4 * tl) if tl < 3 else (244 + 4 * (tl - 3))
    def dw2(self, tl, a, b): return 100 + a * 48 + (b * 6 + tl) * 4
    def xc(self, sl, a, b): return self.XC + (sl * 3 + a) * 8 + 4 * b

    def wait_work_a(self):
        A = self.A
        if self.o.late == 1: self.late_mid(t=56)
        self.get(50, 'w2r'); self.get(51, 'br'); self.get(53, 'gr')
        for ul in range(3):
            for z in range(2):
                self.ds(f"  ds_read_b64 {a_(aFR+4*ul+2*z,2)}, v51 offset:{64*ul + 32*z}")
        for z in range(2):
            for c in range(3):
                self.ds(f"  ds_read_u16 v{80 + z*3 + c}, v53 offset:{128*z + 256*c}")
        self.get(self.vRD, 'rd'); self.get(self.vST, 'st')
        for sl in range(3): self.get(self.vOUT + sl, f'o{sl}')
        for k in range(4): self.get(self.vB2 + k, f'b{k}')
        self.get(self.vW2W, 'w2w'); self.get(self.vLP, 'lp'); self.get(self.vSPA, 'spa')
        for sl in range(3): self.get(54 + sl, f'd{sl}'); A(f"  v_accvgpr_write_b32 {a_(aOUT+sl)}, v{54+sl}")
        self.order = [(tl, a) for a in range(3) for tl in range(6)]
        self.nids = {}
        for k in range(8):
            tl, a = self.order[k]
            self.nids[k] = self.ds(f"  ds_read_b128 {a_(4*(k%8),4)}, v50 offset:{tl*3072 + 64*a}")
        for k in range(100, 256): A(f"  v_accvgpr_write_b32 a{k}, v{k}")
    def wait_work_b(self):
        A = self.A
        order = self.order
        for k in range(18):
            ptl, pa = order[k]
            self.wait(lg=self.nids[k])
            for b in range(2): A(f"  v_mfma_f32_16x16x32_bf16 {v(self.dw2(ptl,pa,b),4)}, {a_(4*(k%8),4)}, {a_(aSEL+4*b,4)}, 0")
            if k + 8 < 18:
                tl, a = order[k + 8]
                self.nids[k + 8] = self.ds(f"  ds_read_b128 {a_(4*(k%8),4)}, v50 offset:{tl*3072 + 64*a}")
        Q = [244, 248]
        jobs = [(t_, ul) for ul in range(3) for t_ in range(6)]
        for k, (t_, ul) in enumerate(jobs):
            a, b = t_ // 2, t_ % 2
            q = Q[k % 2]
            d0, d1 = self.dw2(2*ul, a, b), self.dw2(2*ul+1, a, b)
            A(f"""  v_cvt_pk_bf16_f32 v{q}, v{d0}, v{d0+1}
  v_cvt_pk_bf16_f32 v{q+1}, v{d0+2}, v{d0+3}""")
            if k > 0:
                pt, pul = jobs[k-1]; pq = Q[(k-1) % 2]; c = self.xc(0, pt // 2, pt % 2)
                A(f"  v_mfma_f32_16x16x32_bf16 {v(c,4)}, {v(pq,4)}, {a_(aFR+4*pul,4)}, " + ("0" if pul == 0 else v(c,4)))
            A(f"""  v_cvt_pk_bf16_f32 v{q+2}, v{d1}, v{d1+1}
  v_cvt_pk_bf16_f32 v{q+3}, v{d1+2}, v{d1+3}""")
        pt, pul = jobs[-1]; c = self.xc(0, pt // 2, pt % 2)
        A(f"  s_nop 1\n  v_mfma_f32_16x16x32_bf16 {v(c,4)}, {v(Q[(len(jobs)-1)%2],4)}, {a_(aFR+4*pul,4)}, {v(c,4)}")
        A(f"""  s_mul_i32 s{sT}, s{sW}, 384
  s_add_u32 s{sT}, s{sT}, {CP}
  v_lshlrev_b32 v252, 5, v{vQ}
  v_add_u32 v253, {CP}, v252
  v_add_u32 v252, s{sT}, v252
  s_mov_b32 exec_lo, 0x00010001
  s_mov_b32 exec_hi, 0x00010001
  s_nop 2""")
        for t_ in range(6):
            a, b = t_ // 2, t_ % 2
            self.ds(f"  ds_write_b128 v252, {v(self.xc(0,a,b),4)} offset:{128*a + 16*b}")
        A("  s_mov_b64 exec, -1")
        self.stamp('cpart')
        self.reducer(58, 32)
        self.stamp('red')
        self.drain(); A("  s_barrier")
        for half in range(2):
            ts = [3*half + j for j in range(3)]
            ids = []
            for j, t_ in enumerate(ts):
                a, b = t_ // 2, t_ % 2
                for w in range(4):
                    dst = self.xc(0, a, b) if w == 0 else 32 + (j * 3 + (w - 1)) * 4
                    ids.append(self.ds(f"  ds_read_b128 {v(dst,4)}, v253 offset:{w*384 + 128*a + 16*b}"))
            for j, t_ in enumerate(ts):
                a, b = t_ // 2, t_ % 2
                self.wait(lg=ids[4*j+3])
                c = self.xc(0, a, b); o = 32 + j * 12
                for h in range(2):
                    A(f"  v_pk_add_f32 {v(c+2*h,2)}, {v(c+2*h,2)}, {v(o+2*h,2)}\n  v_pk_add_f32 {v(o+4+2*h,2)}, {v(o+4+2*h,2)}, {v(o+8+2*h,2)}")
                for h in range(2): A(f"  v_pk_add_f32 {v(c+2*h,2)}, {v(c+2*h,2)}, {v(o+4+2*h,2)}")
        A(f"""  s_cmp_lg_u32 s{sW}, 0
  s_cbranch_scc1 L_nocv
  v_add_u32 v253, {CV - CP}, v253
  s_mov_b32 exec_lo, 0x00010001
  s_mov_b32 exec_hi, 0x00010001""")
        for t_ in range(6):
            a, b = t_ // 2, t_ % 2
            A(f"  ds_write_b128 v253, {v(self.xc(0,a,b),4)} offset:{128*a + 16*b}")
        A("  s_mov_b64 exec, -1\n  s_waitcnt lgkmcnt(0)\nL_nocv:"); self.lg.done = self.lg.n
        k = 0
        for sl in (1, 2, 0):
            for a in range(3):
                for j in range(4): A(f"  v_accvgpr_read_b32 v{244+4*(k%2)+j}, {a_(aRES+(sl*3+a)*4+j)}")
                for j in range(4):
                    b, r = j // 2, (j % 2) * 2
                    c = self.xc(0, a, b) + r; d = self.xc(sl, a, b) + r; x = 244 + 4*(k%2) + j
                    tt = 90 if j % 2 == 0 else 86
                    A(f"""  v_lshlrev_b32 v{tt}, 16, v{x}
  v_and_b32 v{tt+1}, 0xffff0000, v{x}
  v_pk_add_f32 {v(d,2)}, {v(c,2)}, {v(tt,2)}""")
                k += 1
        A(f"""  s_lshl_b32 s{sT}, s{sW}, 11
  s_add_u32 s{sT}, s{sT}, {OUTS}
  v_add_u32 v{self.vST}, s{sT}, v{self.vST}""")
        for sl in range(3): A(f"  v_accvgpr_read_b32 v{self.vOD[sl]}, {a_(aOUT+sl)}")
    def final_poll(self):
        A = self.A
        r = 244; t = 86
        A(f"""  s_cmp_lg_u32 s{sW}, 0
  s_cbranch_scc1 L_nofin
  s_and_b32 s{sT}, s2, {NREP-1}
  s_lshl_b32 s{sT}, s{sT}, 11
  s_add_u32 s{sT}, s{sT}, {FIN_OFF}
  v_add_u32 v{t}, s{sT}, v{vLANE16}
  s_mov_b32 s{sT+2}, 0""")
        for k in range(6): A(f"  v_lshlrev_b32 v{80+k}, 16, v{80+k}")
        A(f"""  s_mov_b32 s{sT+10}, {hex(f2u(1.0/(ALPHA*ALPHA)))}
  v_mov_b32 v{t+1}, {hex(f2u(1e-6))}
  v_mov_b32 v{t+4}, {hex(f2u(1.0/384))}
  v_mov_b32 v{t+3}, {hex(f2u(1.0/ALPHA))}
  v_lshrrev_b32 v{t+5}, 2, v{vLANE16}
  v_add_u32 v{t+5}, {SP}, v{t+5}
L_poll2:
  global_load_dwordx4 {v(r,4)}, v{t}, s[20:21] sc1
  global_load_dwordx4 {v(r+4,4)}, v{t}, s[20:21] offset:1024 sc1
  s_add_u32 s{sT+2}, s{sT+2}, 1
  s_waitcnt vmcnt(0)
  v_cmp_eq_u32 vcc, s{sTAG}, v{r+3}
  v_cmp_eq_u32 s[{sT+4}:{sT+5}], s{sTAG}, v{r+7}
  s_and_b64 vcc, vcc, s[{sT+4}:{sT+5}]
  s_cmp_eq_u64 vcc, exec
  s_cbranch_scc1 L_fin_go
  s_cmp_lt_u32 s{sT+2}, {self.o.spin}
  s_cbranch_scc1 L_poll2
L_fin_go:""")
        vals = [r, r+1, r+2, r+4, r+5, r+6]
        for x in vals: A(f"  v_fma_f32 v{x}, v{x}, s{sT+10}, v{t+1}")
        for x in vals: A(f"  v_sqrt_f32 v{x}, v{x}")
        A(f"""  v_add_f32 v{t+2}, v{r}, v{r+1}
  v_add_f32 v{r+3}, v{r+2}, v{r+4}
  v_add_f32 v{r+7}, v{r+5}, v{r+6}
  v_add_f32 v{t+2}, v{t+2}, v{r+3}
  v_add_f32 v{t+2}, v{t+2}, v{r+7}""")
        gm = [f"  v_mul_f32 v{80+k}, v{80+k}, v{x}" for k, x in enumerate(vals)]
        for k, d in enumerate(("row_shr:1 row_mask:0xf", "row_shr:2 row_mask:0xf", "row_shr:4 row_mask:0xf", "row_shr:8 row_mask:0xf", "row_bcast:15 row_mask:0xa", "row_bcast:31 row_mask:0xc")):
            A(gm[k])
            A(f"  v_add_f32_dpp v{t+2}, v{t+2}, v{t+2} {d} bank_mask:0xf")
        A(f"""  v_readlane_b32 s{sT+4}, v{t+2}, 63
  v_fma_f32 v{t+2}, s{sT+4}, v{t+4}, v{t+1}
  v_rcp_f32 v{t+2}, v{t+2}
  s_nop 0
  v_mul_f32 v{t+2}, v{t+2}, v{t+3}""")
        for k in range(6): A(f"  v_fma_f32 v{80+k}, v{80+k}, v{t+2}, v{t+3}")
        for z in range(2):
            for c in range(3): A(f"  ds_write_b32 v{t+5}, v{80+3*z+c} offset:{256*z + 512*c}")
        A(f"""  s_cmp_lg_u32 s2, 0
  s_cbranch_scc1 L_noepoch
  v_mov_b32 v{t}, {EPOCH_OFF}
  v_mov_b32 v{t+1}, s{sTAG}
  s_mov_b64 exec, 1
  global_store_dword v{t}, v{t+1}, s[20:21] sc1
  s_mov_b64 exec, -1
L_noepoch:
L_nofin:
  s_waitcnt lgkmcnt(0)
  s_barrier"""); self.lg.done = self.lg.n

    def prep_round(self, a, pk):
        L = []
        for b in range(2):
            for ul in range(3):
                M = []
                for z in range(2):
                    d = self.dw2(2*ul+z, a, b); s_ = self.spr(2*ul+z)
                    if pk:
                        M.append(('v', f"  v_pk_mul_f32 {v(d,2)}, {v(d,2)}, {v(s_,2)}"))
                        M.append(('v', f"  v_pk_mul_f32 {v(d+2,2)}, {v(d+2,2)}, {v(s_+2,2)}"))
                    else:
                        for j in range(4): M.append(('v', f"  v_mul_f32 v{d+j}, v{d+j}, v{s_+j}"))
                d0 = self.dw2(2*ul, a, b); d1 = self.dw2(2*ul+1, a, b)
                M.append(('v', f"  v_cvt_pk_bf16_f32 v{d0}, v{d0}, v{d0+1}"))
                M.append(('v', f"  v_cvt_pk_bf16_f32 v{d0+1}, v{d0+2}, v{d0+3}"))
                M.append(('v', f"  v_cvt_pk_bf16_f32 v{d0+2}, v{d1}, v{d1+1}"))
                M.append(('v', f"  v_cvt_pk_bf16_f32 v{d0+3}, v{d1+2}, v{d1+3}"))
                M.append(('w', lambda d0=d0, b=b, ul=ul: setattr(self, 'prep_id', self.ds(f"  ds_write_b128 v{self.vW2W}, {v(d0,4)} offset:{(2*a+b)*12288 + ul*1024}"))))
                L += M
        return L
    def w2_prep0(self):
        A = self.A
        ids = [self.ds(f"  ds_read_b128 {v(self.spr(tl),4)}, v{self.vSPA} offset:{64*tl}") for tl in range(6)]
        self.wait(lg=ids[-1])
        items = self.prep_round(0, True)
        for kind, x in items + self.prep_round(1, True):
            if kind == 'v' and 'pk_mul' in x: A(x)
        for kind, x in items:
            if kind == 'w': x()
            elif 'pk_mul' not in x: A(x)
        self.drain(); A("  s_barrier")

    def gemm2(self):
        A = self.A
        A("; ==== gemm2")
        ACC = [100, 148, 100]; ACL = [140, 172, 140]; RING = 124; NR = 4; TQ = [180, 184]; RQ = [188, 192]
        steps = [(a, u, b) for a in range(3) for u in range(12) for b in range(2)]
        rid = {}
        def rd(k):
            a, u, b = steps[k]
            rid[k] = self.ds(f"  ds_read_b128 {v(RING+4*(k%NR),4)}, v{self.vB2+u//3} offset:{(2*a+b)*12288 + (u%3)*1024}")
        def epilogue_direct(a):
            L = []
            for sl in range(3):
                acc = ACC[a] + sl * 8; tq = TQ[sl % 2]
                for j in range(4): L.append(f"  v_cvt_pk_bf16_f32 v{tq+j}, v{acc+2*j}, v{acc+2*j+1}")
                L.append(lambda sl=sl, tq=tq: self.vmem(f"  buffer_store_dwordx4 {v(tq,4)}, v{self.vOD[sl]}, {srd(sO)}, 0 offen offset:{64*a}{self.o.stmod}"))
            return L
        def epilogue_staged(a):
            L = []; st = {}
            Rq = [188, 192, 196]
            for sl in range(3):
                acc = ACC[a] + sl * 8; tq = TQ[sl % 2]
                for j in range(4): L.append(f"  v_cvt_pk_bf16_f32 v{tq+j}, v{acc+2*j}, v{acc+2*j+1}")
                L.append(lambda tq=tq: self.ds(f"  ds_write_b128 v{self.vST}, {v(tq,4)}"))
                L.append(lambda sl=sl: st.__setitem__(sl, self.ds(f"  ds_read_b128 {v(Rq[sl],4)}, v{self.vRD}")))
            for sl in range(3): L.append(lambda sl=sl: self.out_store(a, sl, Rq[sl], st[sl]))
            return L
        def leftover_write(a):
            l = ACL[a]
            def go():
                A("  s_mov_b32 exec_lo, 0x000f000f\n  s_mov_b32 exec_hi, 0x000f000f")
                self.ds(f"  ds_write_b128 v{self.vLP}, {v(l,4)} offset:{128*a}")
                self.lw_id = self.ds(f"  ds_write_b128 v{self.vLP}, {v(l+4,4)} offset:{128*a+16}")
                A("  s_mov_b64 exec, -1")
            return [go]
        def norm(L): return [x if isinstance(x, tuple) else (('n', None) if x is None else (('v', x))) for x in L]
        def pop(fill, wslot=False):
            if not fill: return
            kind, f = fill[0]
            if kind == 'w' and not wslot:
                return
            fill.pop(0)
            if f is None: return
            f() if callable(f) else A(f)
        def flush(fill):
            while fill: pop(fill, True)
        p1 = [x for x in self.prep_round(1, True) if not (x[0] == 'v' and 'pk_mul' in x[1])]
        p2all = self.prep_round(2, False)
        p2m = [x for x in p2all if x[0] == 'v' and 'v_mul_f32' in x[1]]
        p2 = [x for x in p2all if not (x[0] == 'v' and 'v_mul_f32' in x[1])]
        fill = list(p1) + p2m
        ok = {0: False, 1: False}
        A("; @nopad")
        for k in range(NR - 1): rd(k)
        for k, (a, u, b) in enumerate(steps):
            if u == 0 and b == 0:
                A(f"; ---- gemm2 round {a}")
                if self.o.g2stamp and a > 0: self.stamp(f'g2r{a-1}')
                if a == 1: fill = norm(epilogue_direct(0)) + fill
                if a == 2: fill = norm(epilogue_direct(1)) + fill
            nk = k + NR - 1
            if (a == 0 and u == 10 and b == 1) or (a == 1 and u == 10 and b == 1):
                if a == 1: flush(fill)
                assert not any(k_ == 'w' for k_, _ in fill)
                self.wait(lg=max(self.prep_id, self.lw_id)); A("  s_barrier"); ok[a] = True
            self.wait(lg=rid[k])
            fr = v(RING + 4*(k % NR), 4)
            first = (u == 0 and b == 0)
            for sl in range(3):
                d = ACC[a] + sl*8 + 4*b
                C = v(self.xc(sl, a, b), 4) if u == 0 else v(d, 4)
                A(f"  v_mfma_f32_16x16x32_bf16 {v(d,4)}, {fr}, {a_(H[sl]+4*u,4)}, {C}")
                if sl == 0 and nk < len(steps):
                    na = steps[nk][0]
                    if na != a and not ok[a]: raise RuntimeError("next round fragments not published yet")
                    rd(nk)
                    if not first: pop(fill)
                elif not first:
                    pop(fill, wslot=(sl == 1))
                    if sl == 1: pop(fill)
            if u < 3:
                d = ACL[a] + 4*b
                A(f"  v_mfma_f32_16x16x32_bf16 {v(d,4)}, {fr}, {a_(HL+4*u,4)}, " + ("0" if u == 0 else v(d,4)))
                if not first: pop(fill); pop(fill)
            if u == 4 and b == 1: fill = [('w', leftover_write(a)[0])] + fill
            if a == 1 and u == 1 and b == 1: fill = fill + p2; p2 = []
            if a == 2 and u == 7 and b == 0:
                flush(fill)
                self.wait(lg=self.lw_id); A("  s_barrier")
                fill = norm(self.leftover_combine())
        flush(fill)
        A("; @pad")
        if self.o.g2stamp: self.stamp('g2r2')
        A("  s_nop 4")
        ep = norm(epilogue_staged(2))
        flush(ep)

    def out_store(self, a, sl, rq, lid):
        self.wait(lg=lid)
        self.vmem(f"  buffer_store_dwordx4 {v(rq,4)}, v{self.vOUT+sl}, {srd(sO)}, 0 offen offset:{64*a}{self.o.stmod}")

    def leftover_combine(self):
        A = self.A
        L = []; st = {}
        L += [f"  v_lshrrev_b32 v200, 4, v{vLANE16}",
              f"  s_mul_i32 s{sT}, s{sW}, 384", f"  s_add_u32 s{sT}, s{sT}, {LP}",
              f"  v_min_u32 v200, 47, v200",
              f"  v_lshlrev_b32 v201, 3, v200", f"  v_add_u32 v202, {CV}, v201", f"  v_add_u32 v201, s{sT}, v201",
              f"  s_mul_i32 s{sT}, s{sY0}, 224", f"  s_add_u32 s{sT}, s{sT}, s{sX0}", f"  s_add_u32 s{sT}, s{sT}, s{sW}", f"  s_mul_i32 s{sT}, s{sT}, 192",
              f"  v_lshlrev_b32 v203, 2, v200", f"  v_add_u32 v203, s{sT}, v203"]
        L.append(lambda: st.__setitem__('x', self.vmem(f"  buffer_load_dword v204, v203, {srd(sX)}, 0 offen")))
        for w in range(4): L.append(lambda w=w: self.ds(f"  ds_read_b64 {v(208+2*w,2)}, v201 offset:{w*1536}"))
        L.append(lambda: st.__setitem__('l', self.ds("  ds_read_b64 v[216:217], v202")))
        L += [None] * 8
        L.append(lambda: self.wait(lg=st['l']))
        L += ["  v_add_f32 v208, v208, v210", "  v_add_f32 v209, v209, v211", "  v_add_f32 v212, v212, v214", "  v_add_f32 v213, v213, v215",
              "  v_add_f32 v208, v208, v216", "  v_add_f32 v209, v209, v217", "  v_add_f32 v208, v208, v212", "  v_add_f32 v209, v209, v213"]
        L += [None] * 6
        L.append(lambda: self.wait(vm=st['x']))
        L += ["  v_lshlrev_b32 v216, 16, v204", "  v_and_b32 v217, 0xffff0000, v204", "  v_add_f32 v208, v208, v216", "  v_add_f32 v209, v209, v217",
              "  v_cvt_pk_bf16_f32 v220, v208, v209"]
        def store():
            A("  s_mov_b32 exec_hi, 0xffff")
            self.vmem(f"  buffer_store_dword v220, v203, {srd(sO)}, 0 offen{self.o.stmod}")
            A("  s_mov_b32 exec_hi, -1")
        L.append(store)
        return L

    def stamp_dump(self):
        if not self.o.prof: return
        A = self.A
        A(f"""  s_mov_b64 exec, -1
  s_memrealtime s[78:79]
  s_lshl_b32 s{sT}, s2, 2
  s_add_u32 s{sT}, s{sT}, s{sW}
  s_lshl_b32 s{sT}, s{sT}, 7
  s_add_u32 s{sT}, s{sT}, {DBG_OFF}
  v_mov_b32 v5, s{sT}
  s_waitcnt lgkmcnt(0)
  s_mov_b64 exec, 1""")
        for k in range(len(self.stamps)):
            A(f"  v_mov_b32 v6, s{80+k}\n  global_store_dword v5, v6, s[20:21] offset:{4*k}")
        A(f"  v_mov_b32 v6, s78\n  global_store_dword v5, v6, s[20:21] offset:{4*30}")
        A(f"  v_mov_b32 v6, s49\n  global_store_dword v5, v6, s[20:21] offset:{4*31}")
        if self.o.dbgstamp:
            A(f"  s_cmp_lg_u32 s2, 100\n  s_cbranch_scc1 L_nodbg\n  s_cmp_lg_u32 s{sW}, 0\n  s_cbranch_scc1 L_nodbg\n  v_mov_b32 v7, 0")
            for j in range(min(16, len(self.stamps) - 1)):
                A(f"  s_sub_u32 s78, s{81+j}, s80\n  v_mov_b32 v6, s78\n  global_store_dword v7, v6, s[18:19] offset:{4*j}")
            A("L_nodbg:")
    def dump_regs(self, label, regs, wsoff):
        A = self.A
        n = len(regs)
        A(f"""  s_waitcnt vmcnt(0) lgkmcnt(0)
  v_lshlrev_b32 v6, 2, v0
  s_mul_i32 s{sT}, s2, {n*1024}
  s_add_u32 s{sT}, s{sT}, {wsoff}
  v_add_u32 v6, s{sT}, v6""")
        for k, r in enumerate(regs):
            A(f"  global_store_dword v6, v{r}, s[20:21]\n  v_add_u32 v6, 1024, v6")
            if k % 32 == 31: A("  s_waitcnt vmcnt(0)")
        A("  s_waitcnt vmcnt(0)")

    def build(self):
        o = self.o; A = self.A
        self.prologue()
        if o.stop == 'ln':
            self.dump_regs('yhat', list(range(YH[0], YH[0]+36)) + [YL[0]+k for k in range(4)] + [YL[1]+k for k in range(4)] + [YL[2]+k for k in range(4)], DBG_OFF)
            A("  s_branch L_end")
        self.gelu()
        t = self.publish()
        self.stamp('gelu')
        if o.stop == 'gelu':
            self.dump_regs('h', list(range(100, 256)) + list(range(ST, ST+6)), DBG_OFF)
            A("  s_branch L_end")
        self.publish2(t)
        self.stamp('pub')
        self.wait_work_a()
        self.stamp('wwa')
        self.wait_work_b()
        self.stamp('wwb')
        self.final_poll()
        self.stamp('fin')
        self.w2_prep0()
        self.stamp('prep')
        self.gemm2()
        self.stamp('gemm2')
        self.stamp_dump()
        A("L_end:\n  s_endpgm")
        body = A.finalize(verbose=not o.quiet, align=o.align)
        hdr = f"""; Fused block: 5x5 depthwise conv + LayerNorm + GEMM(96->384) + GELU + GRN + GEMM(384->96) + residual.
; @launch grid=(256,1,1) block=(256,1,1) lds={LDS_BYTES}
.amdgcn_target "amdgcn-amd-amdhsa--gfx950"
.text
.globl {KNAME}
.p2align 8
.type {KNAME},@function
{KNAME}:
"""
        tail = f""".section .rodata,"a"
.p2align 6
.amdhsa_kernel {KNAME}
  .amdhsa_next_free_vgpr 512
  .amdhsa_next_free_sgpr 102
  .amdhsa_accum_offset 256
  .amdhsa_group_segment_fixed_size 0
  .amdhsa_kernarg_size 72
  .amdhsa_user_sgpr_count 2
  .amdhsa_user_sgpr_kernarg_segment_ptr 1
  .amdhsa_system_sgpr_workgroup_id_x 1
  .amdhsa_float_denorm_mode_32 3
.end_amdhsa_kernel
"""
        if o.names: open(o.names, 'w').write(",".join(self.stamps))
        return hdr + body + tail

if __name__ == '__main__':
    ap = argparse.ArgumentParser()
    ap.add_argument('-o', default='out.s')
    ap.add_argument('--stop', default='')
    ap.add_argument('--spin', type=int, default=200000)
    ap.add_argument('--quiet', action='store_true')
    ap.add_argument('--prof', action='store_true')
    ap.add_argument('--dbgstamp', action='store_true')
    ap.add_argument('--align', action='store_true')
    ap.add_argument('--lnsplit', action='store_true')
    ap.add_argument('--stmod', default='')
    ap.add_argument('--names', default='')
    ap.add_argument('--n0', type=int, default=10)
    ap.add_argument('--late', type=int, default=0)
    ap.add_argument('--gpad', type=int, default=-1)
    ap.add_argument('--dmapos', type=int, default=0)
    ap.add_argument('--w1mask', action='store_true')
    ap.add_argument('--tlb', action='store_true')
    ap.add_argument('--g2stamp', action='store_true')
    ap.add_argument('--blkstamp', action='store_true')
    ap.add_argument('--nojobs', action='store_true')
    ap.add_argument('--codekb', type=int, default=0)
    o = ap.parse_args()
    if o.stmod: o.stmod = ' ' + o.stmod
    g = G(o)
    open(o.o, 'w').write(g.build())
    print("wrote", o.o)
```

```python
import sys, struct, math, argparse
from asmlib import Asm

def f2u(x): return struct.unpack('<I', struct.pack('<f', x))[0]
KNAME = "standalone__modern_conv_block_slak__vision_kernel"

C1 = -2.0 * math.sqrt(2.0 / math.pi) * math.log2(math.e)
C2 = C1 * 0.044715
ALPHA = -((-C2) ** (1.0 / 3.0))
BETA = C1 / ALPHA
W1L = 0
W1P = 800
YB = 76800
XB = YB + 7680
XROW = 3840
DWT = XB + 18 * XROW
W2S = YB
CP = YB + 73728
CV = CP + 1536
GBL = DWT
PS = DWT + 1536
SP = PS + 6144
RES = 0
OUTS = YB
LP = YB + 8192
W2F = 0
LDS_BYTES = 163840
EPOCH_OFF = 0
L1_OFF = 4096
FIN_OFF = L1_OFF + 128 * 4096
NREP = 16
TAG_STEP = 0x9E3779B1
DBG_OFF = 0x200000
sX, sDW, sW1, sW2, sO = 24, 28, 32, 36, 40
sW, sX0, sY0, sTAG = 44, 45, 46, 47
sBETA = 50
sM0, sM1, sM2, sM3 = 52, 54, 56, 58
sDIAG, sLEFT, sBIG = 60, 62, 64
sXM, sRB = 65, 48
sT = 66
def srd(b): return f"s[{b}:{b+3}]"
def sp(b): return f"s[{b}:{b+1}]"
def v(a, n=1): return f"v{a}" if n == 1 else f"v[{a}:{a+n-1}]"
def a_(a, n=1): return f"a{a}" if n == 1 else f"a[{a}:{a+n-1}]"
vLANE16, vN, vQ, vAADR = 1, 2, 3, 4
YH = [8, 20, 32]
P0, P1, TT, AS, DP, ST = 44, 56, 68, 80, 84, 87
H = [100, 148, 196]; HL = 244
YL = [140, 144, 188]
P0L, P1L, TTL = 192, 236, 240
aNAT, aFR, aSEL, aONE, aOUT = 0, 72, 84, 92, 96
aRES = 32
aF, aG = 100, 196


class Track:
    def __init__(self): self.n = 0; self.done = 0
    def issue(self, k=1):
        self.n += k; return self.n
    def after(self, tid): return self.n - tid


class G:
    def __init__(self, opts):
        self.o = opts; self.A = Asm(); self.stamps = []
        self.vm = Track(); self.lg = Track(); self.w2id = 0
    def stamp(self, name):
        if not self.o.prof: return
        if len(self.stamps) >= 22: return
        k = len(self.stamps); self.stamps.append(name)
        self.A(f"  s_memtime s[78:79]\n  s_waitcnt lgkmcnt(0)\n  s_mov_b32 s{80+k}, s78"); self.lg.done = self.lg.n
    def ds(self, text):
        if self.lg.n - self.lg.done >= 15:
            self.A("  s_waitcnt lgkmcnt(13)"); self.lg.done = self.lg.n - 13
        self.A(text); return self.lg.issue()
    def drain(self, vm=False):
        self.A("  s_waitcnt " + ("vmcnt(0) " if vm else "") + "lgkmcnt(0)"); self.lg.done = self.lg.n
    def vmem(self, text):
        self.A(text); return self.vm.issue()
    def wait(self, vm=None, lg=None):
        p = []
        if vm is not None: p.append(f"vmcnt({min(63, self.vm.after(vm))})")
        if lg is not None:
            n = self.lg.after(lg); assert n <= 15, n
            p.append(f"lgkmcnt({n})"); self.lg.done = max(self.lg.done, lg)
        self.A("  s_waitcnt " + " ".join(p))
    def interleave(self, main, fill, per=1, start=0):
        fill = list(fill)
        for k, m in enumerate(main):
            m() if callable(m) else self.A(m)
            if k >= start:
                for _ in range(per):
                    if fill:
                        f = fill.pop(0); f() if callable(f) else self.A(f)
        return fill
    def emit(self, l):
        for f in l: f() if callable(f) else self.A(f)

    def xrow(self, r):
        A = self.A
        if r in (0, 1, 16, 17):
            A(f"""  s_add_u32 s{sT+1}, s{sRB}, {r*43008}
  s_cmp_eq_u32 s{sY0}, {0 if r < 2 else 210}
  s_cselect_b32 s{sT+1}, s{sBIG}, s{sT+1}
  s_add_u32 m0, s{sXM}, {r*XROW}""")
            A("  s_nop 0")
        else:
            A(f"  s_add_u32 m0, s{sXM}, {r*XROW}\n  s_add_u32 s{sT+1}, s{sRB}, {r*43008}")
        self.xid[r] = self.vmem(f"  buffer_load_dwordx4 v10, {srd(sX)}, s{sT+1} offen lds")
    def w1row(self, k):
        A = self.A
        A(f"  s_add_u32 m0, s{sT+10}, {k*W1P}\n  s_add_u32 s{sT}, s{sT+11}, {k*768}")
        msk = (k == 23) or self.o.w1mask
        if msk: A("  s_mov_b32 exec_hi, 0xffff")
        self.w1id = self.vmem(f"  buffer_load_dwordx4 v7, {srd(sW1)}, s{sT} offen lds")
        if msk: A("  s_mov_b32 exec_hi, -1")
    def job_gb(self):
        A = self.A
        A(f"""  s_cmp_eq_u32 s{sW}, 1
  s_cselect_b32 s72, s14, s12
  s_cselect_b32 s73, s15, s13
  s_mul_i32 s{sT+2}, s{sW}, 768
  s_add_u32 s{sT+2}, s{sT+2}, {GBL}
  s_and_b32 s73, s73, 0xffff
  s_mov_b32 s74, 768
  s_mov_b32 s75, 0x20000
  s_mov_b32 m0, s{sT+2}
  s_cmp_lt_u32 s{sW}, 2
  s_cbranch_scc0 L_nogb
  s_mov_b32 exec_hi, 0xffff
  buffer_load_dwordx4 v{vLANE16}, s[72:75], 0 offen lds
  s_mov_b32 exec_hi, -1
L_nogb:""")
    def job_touch_w2(self):
        A = self.A
        A(f"""  s_lshr_b32 s{sT}, s2, 3
  s_lshl_b32 s{sT}, s{sT}, 2
  s_add_u32 s{sT}, s{sT}, s{sW}
  s_lshl_b32 s{sT}, s{sT}, 10""")
        self.vmem(f"  buffer_load_dwordx4 a[244:247], v{vLANE16}, {srd(sW2)}, s{sT} offen")
    def job_touch_code(self):
        A = self.A
        n = self.o.codekb
        A(f"""  s_getpc_b64 s[{sT+2}:{sT+3}]
L_pcref:
  s_sub_u32 s{sT+2}, s{sT+2}, L_pcref-{KNAME}
  s_subb_u32 s{sT+3}, s{sT+3}, 0
  s_lshr_b32 s{sT}, s2, 3
  s_lshl_b32 s{sT}, s{sT}, 2
  s_add_u32 s{sT}, s{sT}, s{sW}
  s_lshl_b32 s{sT}, s{sT}, 10
  s_cmp_ge_u32 s{sT}, L_end-{KNAME}
  s_cbranch_scc1 L_notouch
  s_min_u32 s{sT}, s{sT}, L_end-{KNAME}-1020
  v_add_u32 v20, s{sT}, v{vLANE16}
  v_mov_b32 v23, s{sT+3}
  v_add_co_u32 v22, vcc, s{sT+2}, v20
  v_addc_co_u32 v23, vcc, 0, v23, vcc""")
        A(f"  global_load_dwordx4 a[248:251], v[22:23], off\nL_notouch:")
    def job_touch_tlb(self):
        A = self.A
        A(f"""  s_mul_i32 s{sT}, s{sY0}, 224
  s_add_u32 s{sT}, s{sT}, s{sX0}
  s_mul_i32 s{sT}, s{sT}, 192
  v_mov_b32 v11, {L1_OFF}""")
        self.vmem(f"  buffer_load_dword a252, v{vLANE16}, {srd(sO)}, s{sT} offen")
        self.vmem(f"  global_load_dword a253, v11, s[20:21] sc1")
    def job(self):
        if self.jobs: self.jobs.pop(0)()

    def setup(self):
        A = self.A; o = self.o
        self.xid = {}
        A("; ==== setup")
        A("  s_cmp_ge_u32 s2, 256\n  s_cbranch_scc1 L_end")
        if o.prof:
            A("  s_memrealtime s[78:79]\n  s_waitcnt lgkmcnt(0)\n  s_mov_b32 s49, s78\n  s_memtime s[78:79]\n  s_waitcnt lgkmcnt(0)\n  s_mov_b32 s80, s78")
            self.stamps.append('start')
        A(f"""
  s_load_dwordx16 s[4:19], s[0:1], 0
  s_load_dwordx2 s[20:21], s[0:1], 64
  v_lshrrev_b32 v5, 6, v0
  v_and_b32 v6, 63, v0
  v_readfirstlane_b32 s{sW}, v5
  v_lshlrev_b32 v{vLANE16}, 4, v6
  v_and_b32 v{vN}, 15, v6
  v_lshrrev_b32 v{vQ}, 4, v6""")
        if o.codekb: self.job_touch_code()
        A(f"""  s_and_b32 s{sT}, s2, 7
  s_lshr_b32 s{sT+1}, s2, 3
  s_and_b32 s{sT+2}, s{sT}, 3
  s_lshl_b32 s{sT+2}, s{sT+2}, 2
  s_and_b32 s{sT+3}, s{sT+1}, 3
  s_add_u32 s{sT+2}, s{sT+2}, s{sT+3}
  s_mul_i32 s{sX0}, s{sT+2}, 14
  s_lshr_b32 s{sT}, s{sT}, 2
  s_lshl_b32 s{sT}, s{sT}, 3
  s_lshr_b32 s{sT+1}, s{sT+1}, 2
  s_add_u32 s{sT}, s{sT}, s{sT+1}
  s_mul_i32 s{sY0}, s{sT}, 14
  s_mov_b32 s{sBIG}, 0x40000000
  s_lshl_b32 s{sT+7}, s{sW}, 6
  s_min_u32 s{sT+7}, s{sT+7}, 176
  v_add_u32 v11, s{sT+7}, v6
  v_mul_u32_u24 v7, 5042, v11
  v_lshrrev_b32 v7, 16, v7
  v_mul_u32_u24 v8, 13, v7
  v_sub_u32 v8, v11, v8
  s_sub_i32 s{sT}, s{sX0}, 2
  v_add_u32 v9, s{sT}, v7
  v_mul_u32_u24 v10, 192, v9
  v_lshl_add_u32 v10, v8, 4, v10
  s_movk_i32 s{sT+1}, 224
  v_cmp_gt_u32 vcc, s{sT+1}, v9
  v_cmp_gt_u32 s[{sT+2}:{sT+3}], 12, v8
  s_movk_i32 s{sT+1}, 234
  v_cmp_gt_u32 s[{sT+4}:{sT+5}], s{sT+1}, v11
  v_mov_b32 v11, s{sBIG}
  s_and_b64 vcc, vcc, s[{sT+2}:{sT+3}]
  s_and_b64 vcc, vcc, s[{sT+4}:{sT+5}]
  v_cndmask_b32 v10, v11, v10, vcc
  s_lshl_b32 s{sT+7}, s{sT+7}, 4
  s_add_u32 s{sXM}, s{sT+7}, {XB}
  s_sub_i32 s{sRB}, s{sY0}, 2
  s_mul_i32 s{sRB}, s{sRB}, 43008
  s_waitcnt lgkmcnt(0)
""")
        def mksrd(base, ptr, n):
            A(f"""  s_mov_b32 s{base}, s{ptr}
  s_and_b32 s{base+1}, s{ptr+1}, 0xffff
  s_mov_b32 s{base+2}, {n}
  s_mov_b32 s{base+3}, 0x20000""")
        mksrd(sDW, 6, 4800); mksrd(sX, 4, 9633792)
        A(f"""  s_lshl_b32 s{sT+6}, s{sW}, 10
  s_add_u32 m0, s{sT+6}, {DWT + 960}
  v_add_u32 v12, s{sT+6}, v{vLANE16}""")
        self.dwid = self.vmem(f"  buffer_load_dwordx4 v12, {srd(sDW)}, 0 offen lds")
        A(f"""  s_cmp_lg_u32 s{sW}, 0
  s_cbranch_scc1 L_nodw4
  s_mov_b32 m0, {DWT + 960 + 4096}
  v_add_u32 v12, 4096, v{vLANE16}
  buffer_load_dwordx4 v12, {srd(sDW)}, 0 offen lds
L_nodw4:""")
        n0 = o.n0
        for r in range(n0): self.xrow(r)
        self.stamp('x0-7')
        self.jobs = [lambda r=r: self.xrow(r) for r in range(n0, 18)]
        rest = [lambda k=k: self.w1row(k) for k in range(24)]
        rest.insert(1, self.job_gb); rest.insert(6, self.job_touch_w2)
        self.jobs += rest
        A(f"  s_load_dword s{sTAG}, s[20:21], {EPOCH_OFF}")
        mksrd(sW1, 8, 73728); mksrd(sW2, 10, 73728); mksrd(sO, 16, 9633792)
        A(f"""  s_mul_i32 s{sT+10}, s{sW}, {24*W1P}
  s_add_u32 s{sT+10}, s{sT+10}, {W1L}
  s_mul_i32 s{sT+11}, s{sW}, {24*768}
  s_mov_b32 s{sBETA}, {hex(f2u(BETA))}
  s_mov_b32 s{sBETA+1}, {hex(f2u(BETA))}
  s_mov_b32 s{sM0}, 0x11111111
  s_mov_b32 s{sM0+1}, 0x11111111
  s_mov_b32 s{sM1}, 0x22222222
  s_mov_b32 s{sM1+1}, 0x22222222
  s_mov_b32 s{sM2}, 0x44444444
  s_mov_b32 s{sM2+1}, 0x44444444
  s_mov_b32 s{sM3}, 0x88888888
  s_mov_b32 s{sM3+1}, 0x88888888
  s_mov_b32 s{sDIAG}, 0x00f0000f
  s_mov_b32 s{sDIAG+1}, 0xf0000f00
  s_mov_b32 s{sLEFT}, 0x000f000f
  s_mov_b32 s{sLEFT+1}, 0x000f000f
  v_subrev_u32 v7, 32, v{vLANE16}
  v_cmp_gt_u32 vcc, 48, v6
  v_subrev_u32 v8, 48, v6
  v_cndmask_b32 v7, v7, v{vLANE16}, vcc
  v_cmp_gt_u32 vcc, 2, v8
  s_nop 1
  v_cndmask_b32 v7, v7, v11, vcc
  v_mov_b32 v18, 0x3f803f80""")
        for j in range(4): A(f"  v_accvgpr_write_b32 {a_(aONE+j)}, v18")
        A(f"""  v_and_b32 v14, 1, v{vN}
  v_lshlrev_b32 v14, 4, v14
  v_mov_b32 v15, 0x3f80
  v_lshlrev_b32 v14, v14, v15
  v_lshrrev_b32 v15, 2, v{vN}
  v_cmp_eq_u32 vcc, v15, v{vQ}
  v_bfe_u32 v15, v{vN}, 1, 1
  v_cndmask_b32 v14, 0, v14, vcc
  v_cmp_eq_u32 vcc, 0, v15
  v_mov_b32 v18, 0
  v_cndmask_b32 v16, 0, v14, vcc
  v_cndmask_b32 v17, v14, 0, vcc
  v_accvgpr_write_b32 {a_(aSEL+0)}, v16
  v_accvgpr_write_b32 {a_(aSEL+1)}, v17
  v_accvgpr_write_b32 {a_(aSEL+2)}, v18
  v_accvgpr_write_b32 {a_(aSEL+3)}, v18
  v_accvgpr_write_b32 {a_(aSEL+4)}, v18
  v_accvgpr_write_b32 {a_(aSEL+5)}, v18
  v_accvgpr_write_b32 {a_(aSEL+6)}, v16
  v_accvgpr_write_b32 {a_(aSEL+7)}, v17""")
        A(f"""  v_mov_b64 v[12:13], 0
  v_mov_b64 v[14:15], 0
  v_lshlrev_b32 v16, 4, v0
  v_add_u32 v17, {DWT + 5760}, v16
  v_add_u32 v16, {DWT}, v16
  v_cmp_gt_u32 vcc, 180, v0
  s_and_saveexec_b64 s[{sT}:{sT+1}], vcc
  s_cbranch_execz L_noz0
  ds_write_b128 v17, v[12:15]
L_noz0:
  s_mov_b64 exec, s[{sT}:{sT+1}]
  v_cmp_gt_u32 vcc, 60, v0
  s_and_saveexec_b64 s[{sT}:{sT+1}], vcc
  s_cbranch_execz L_noz
  ds_write_b128 v16, v[12:15]
L_noz:
  s_mov_b64 exec, s[{sT}:{sT+1}]""")
        self.lg.issue(2)
        self.conv_addr()
        self.ln_addrs()
        self.late_addrs()
        self.stamp('precomp')

    cA, cIDX, cBF, cBG0, cBG1, cYW = 44, 92, 93, 94, 95, 96
    cD = [[208, 212, 216], [220, 224, 228]]
    cT = 232
    cAF, cAG, cML, cMH = 240, 241, 242, 243
    vLN = {'L': 97, 0: 98, 1: 99, 2: 5}
    vRES = [238, 239, 204]

    def conv_addr(self):
        A = self.A; t = 100
        A(f"""; conv addresses
  v_lshrrev_b32 v{t}, 3, v{vN}
  v_and_b32 v{t+1}, 7, v{vN}
  v_lshrrev_b32 v{t+2}, 1, v{vQ}
  v_sub_u32 v{t+2}, v{t+2}, v{t}
  v_add_u32 v{t+2}, 1, v{t+2}
  v_mul_u32_u24 v{t+2}, 960, v{t+2}
  v_and_b32 v{t+3}, 1, v{vQ}
  v_mul_u32_u24 v{t+3}, 384, v{t+3}
  v_add_u32 v{t+2}, v{t+2}, v{t+3}
  v_lshl_add_u32 v{t+2}, v{t+1}, 1, v{t+2}
  s_mul_i32 s{sT}, s{sW}, 48
  s_add_u32 s{sT+1}, s{sT}, {DWT}
  v_add_u32 v{self.cAF}, s{sT+1}, v{t+2}
  v_lshlrev_b32 v{t+3}, 1, v{vQ}
  v_sub_u32 v{t+3}, v{t+3}, v{t}
  v_add_u32 v{t+3}, 1, v{t+3}
  v_mul_u32_u24 v{t+3}, 960, v{t+3}
  v_lshl_add_u32 v{t+3}, v{t+1}, 1, v{t+3}
  s_add_u32 s{sT+1}, s{sT+1}, 768
  v_add_u32 v{self.cAG}, s{sT+1}, v{t+3}
  v_cmp_gt_u32 vcc, 4, v{t+1}
  v_and_b32 v{t+4}, 3, v{t+1}
  v_add_u32 v{t+5}, 1, v{t+4}
  v_and_b32 v{t+5}, 3, v{t+5}
  v_lshl_or_b32 v{t+4}, v{t+5}, 2, v{t+4}
  s_movk_i32 s{sT+2}, 0x1111
  v_mul_u32_u24 v{self.cIDX}, s{sT+2}, v{t+4}
  v_cndmask_b32 v{self.cML}, 0, -1, vcc
  v_not_b32 v{self.cMH}, v{self.cML}
  v_add_u32 v{t+6}, v{vN}, v{vQ}
  v_mul_u32_u24 v{t+6}, 208, v{t+6}
  s_add_u32 s{sT+1}, s{sT}, {XB}
  v_add_u32 v{self.cBF}, s{sT+1}, v{t+6}
  v_mul_u32_u24 v{t+6}, 208, v{vN}
  s_add_u32 s{sT+2}, s{sT+1}, {4*208}
  v_add_u32 v{t+8}, s{sT+2}, v{t+6}
  v_mul_u32_u24 v{t+7}, {XROW}, v{vQ}
  v_add_u32 v{self.cBG0}, v{t+8}, v{t+7}
  v_min_u32 v{t+7}, 1, v{vQ}
  v_add_u32 v{t+7}, 4, v{t+7}
  v_mul_u32_u24 v{t+7}, {XROW}, v{t+7}
  v_add_u32 v{self.cBG1}, v{t+8}, v{t+7}
  v_lshrrev_b32 v{t+7}, 1, v{vQ}
  v_mul_u32_u24 v{t+7}, 3328, v{t+7}
  v_add_u32 v{t+6}, v{t+6}, v{t+7}
  v_and_b32 v{t+7}, 1, v{vQ}
  v_lshl_add_u32 v{t+6}, v{t+7}, 3, v{t+6}
  s_add_u32 s{sT+1}, s{sT}, {YB}
  v_add_u32 v{self.cYW}, s{sT+1}, v{t+6}""")

    def ln_addrs(self):
        A = self.A; t = 100
        for slot in ('L', 0, 1, 2):
            d = self.vLN[slot]
            if slot == 'L': A(f"  v_min_u32 v{t}, 3, v{vN}")
            else:
                A(f"  s_lshl_b32 s{sT}, s{sW}, 4\n  s_add_u32 s{sT}, s{sT}, {4 + 64*slot}\n  v_add_u32 v{t}, s{sT}, v{vN}")
            A(f"""  v_mul_u32_u24 v{t+1}, 4682, v{t}
  v_lshrrev_b32 v{t+1}, 16, v{t+1}
  v_mul_u32_u24 v{t+2}, 14, v{t+1}
  v_sub_u32 v{t}, v{t}, v{t+2}
  v_mul_u32_u24 v{d}, 208, v{t}
  v_lshl_add_u32 v{d}, v{vQ}, 3, v{d}
  v_lshrrev_b32 v{t+2}, 1, v{t+1}
  v_mul_u32_u24 v{t+2}, 7680, v{t+2}
  v_add_u32 v{d}, v{d}, v{t+2}
  v_and_b32 v{t+2}, 1, v{t+1}
  v_mul_u32_u24 v{t+2}, 3328, v{t+2}
  v_add_u32 v{d}, v{d}, v{t+2}
  v_add_u32 v{d}, {YB}, v{d}""")
            if slot != 'L':
                r_ = self.vRES[slot]
                A(f"""  v_mul_u32_u24 v{r_}, 208, v{t}
  v_mul_u32_u24 v{t+2}, {XROW}, v{t+1}
  v_add_u32 v{r_}, v{r_}, v{t+2}
  v_lshl_add_u32 v{r_}, v{vQ}, 4, v{r_}
  v_add_u32 v{r_}, {XB + 2*XROW + 2*208}, v{r_}""")

    SK = {n: k for k, n in enumerate(['p0', 'p1', 'p2', 'rd', 'st', 'o0', 'o1', 'o2', 'r0', 'r1', 'r2', 'd0', 'd1', 'd2',
                                      'b0', 'b1', 'b2', 'b3', 'w2w', 'lp', 'spa', 'w2r', 'br', 'gr',
                                      'ps0', 'ps1', 'ps2', 'ps3', 'ps4', 'ps5', 'psr', 'l1'])}
    def put(self, name, reg): self.A(f"  v_accvgpr_write_b32 a{self.SK[name]}, v{reg}")
    def get(self, reg, name): self.A(f"  v_accvgpr_read_b32 v{reg}, a{self.SK[name]}")
    def late_addrs(self):
        A = self.A
        t = 100
        A(f"  v_lshrrev_b32 v{t+3}, 4, v{vLANE16}")
        for jj in range(3):
            A(f"""  v_add_u32 v{t+4}, {64*jj}, v{t+3}
  v_mul_u32_u24 v{t+5}, 5462, v{t+4}
  v_lshrrev_b32 v{t+5}, 16, v{t+5}
  v_mul_u32_u24 v{t+6}, 12, v{t+5}
  v_sub_u32 v{t+6}, v{t+4}, v{t+6}
  v_lshrrev_b32 v{t+7}, 3, v{t+5}
  v_mul_u32_u24 v{t+7}, 3, v{t+7}
  v_xor_b32 v{t+6}, v{t+6}, v{t+7}
  v_mul_u32_u24 v{t+5}, 192, v{t+5}
  v_lshl_add_u32 v{t+5}, v{t+6}, 4, v{t+5}
  v_subrev_u32 v{t+5}, {1024*jj}, v{t+5}""")
            self.put(f'p{jj}', t + 5)
        if self.o.late == 0: self.late_mid()
        A(f"""  v_and_b32 v{t}, 3, v{vN}
  s_mul_i32 s{sT}, s{sW}, 6
  v_add_u32 v{t}, s{sT}, v{t}
  v_lshrrev_b32 v{t+1}, 2, v{vN}
  v_and_b32 v{t+2}, 1, v{t+1}
  v_lshrrev_b32 v{t+1}, 1, v{t+1}
  v_lshl_or_b32 v{t+1}, v{t+2}, 1, v{t+1}
  v_lshl_add_u32 v{t+1}, v{vQ}, 2, v{t+1}
  v_lshlrev_b32 v{t+1}, 2, v{t+1}
  s_mul_i32 s{sT}, s{sW}, 1536
  s_add_u32 s{sT}, s{sT}, {PS}
  v_add_u32 v{t+1}, s{sT}, v{t+1}""")
        for k in range(6):
            A(f"""  v_add_u32 v{t+2}, {4*k}, v{t}
  v_subrev_u32 v{t+3}, 24, v{t+2}
  v_min_u32 v{t+2}, v{t+2}, v{t+3}
  v_lshl_add_u32 v{t+2}, v{t+2}, 6, v{t+1}""")
            self.put(f'ps{k}', t + 2)
        A(f"  v_lshlrev_b32 v{t}, 2, v0\n  v_add_u32 v{t}, {PS}, v{t}"); self.put('psr', t)
        A(f"""  v_lshlrev_b32 v{t+1}, 12, v0
  s_lshl_b32 s{sT}, s2, 4
  s_add_u32 s{sT}, s{sT}, {L1_OFF}
  v_add_u32 v{t+1}, s{sT}, v{t+1}"""); self.put('l1', t + 1)

    def late_mid(self, t=100):
        A = self.A
        A(f"""  v_lshrrev_b32 v{t}, 6, v{vLANE16}
  v_bfe_u32 v{t+1}, v{vLANE16}, 4, 2
  v_bfe_u32 v{t+2}, v{t}, 1, 2
  v_xor_b32 v{t+2}, v{t+2}, v{t+1}
  v_lshlrev_b32 v{t+3}, 6, v{t}
  v_lshl_add_u32 v{t+3}, v{t+2}, 4, v{t+3}
  s_lshl_b32 s{sT+1}, s{sW}, 11
  s_add_u32 s{sT+1}, s{sT+1}, {OUTS}
  v_add_u32 v{t+3}, s{sT+1}, v{t+3}""")
        self.put('rd', t + 3)
        A(f"""  v_bfe_u32 v{t+3}, v{vN}, 1, 2
  v_xor_b32 v{t+3}, v{t+3}, v{vQ}
  v_lshlrev_b32 v{t+4}, 6, v{vN}
  v_lshl_add_u32 v{t+3}, v{t+3}, 4, v{t+4}""")
        self.put('st', t + 3)
        def pxoff(d, src, sl):
            A(f"""  s_lshl_b32 s{sT}, s{sW}, 4
  s_add_u32 s{sT}, s{sT}, {4 + 64*sl}
  v_add_u32 v{d}, s{sT}, v{src}
  v_mul_u32_u24 v{t+4}, 4682, v{d}
  v_lshrrev_b32 v{t+4}, 16, v{t+4}
  v_mul_u32_u24 v{t+5}, 14, v{t+4}
  v_sub_u32 v{d}, v{d}, v{t+5}
  v_add_u32 v{t+4}, s{sY0}, v{t+4}
  v_mul_u32_u24 v{t+4}, 224, v{t+4}
  v_add_u32 v{d}, v{d}, v{t+4}
  v_add_u32 v{d}, s{sX0}, v{d}
  v_mul_u32_u24 v{d}, 192, v{d}""")
        for sl in range(3):
            pxoff(t + 6, t, sl)
            A(f"  v_lshl_add_u32 v{t+7}, v{t+1}, 4, v{t+6}")
            self.put(f'o{sl}', t + 7)
            pxoff(t + 6, vN, sl)
            A(f"  v_lshl_add_u32 v{t+6}, v{vQ}, 4, v{t+6}")
            self.put(f'd{sl}', t + 6)
        for k in range(4):
            A(f"""  s_add_u32 s{sT}, s{sW}, {k}
  s_and_b32 s{sT}, s{sT}, 3
  s_mul_i32 s{sT}, s{sT}, 3072
  v_add_u32 v{t+6}, s{sT}, v{vLANE16}""")
            self.put(f'b{k}', t + 6)
        A(f"  s_mul_i32 s{sT}, s{sW}, 3072\n  v_add_u32 v{t+6}, s{sT}, v{vLANE16}"); self.put('w2w', t + 6)
        A(f"""  s_mul_i32 s{sT}, s{sW}, 1536
  s_add_u32 s{sT}, s{sT}, {LP}
  v_mul_u32_u24 v{t+6}, 384, v{vN}
  v_lshl_add_u32 v{t+6}, v{vQ}, 5, v{t+6}
  v_add_u32 v{t+6}, s{sT}, v{t+6}"""); self.put('lp', t + 6)
        A(f"""  s_mul_i32 s{sT}, s{sW}, 384
  s_add_u32 s{sT}, s{sT}, {SP}
  v_lshlrev_b32 v{t+6}, 4, v{vQ}
  v_add_u32 v{t+6}, s{sT}, v{t+6}"""); self.put('spa', t + 6)
        A(f"""  s_mul_i32 s{sT}, s{sW}, 18432
  s_add_u32 s{sT}, s{sT}, {W2S}
  v_lshrrev_b32 v{t+3}, 3, v{vN}
  v_mul_u32_u24 v{t+3}, 3, v{t+3}
  v_xor_b32 v{t+3}, v{t+3}, v{vQ}
  v_mul_u32_u24 v{t+6}, 192, v{vN}
  v_lshl_add_u32 v{t+6}, v{t+3}, 4, v{t+6}
  v_add_u32 v{t+6}, s{sT}, v{t+6}"""); self.put('w2r', t + 6)
        A(f"""  s_mul_i32 s{sT}, s{sW}, 192
  s_add_u32 s{sT}, s{sT}, {GBL + 768}
  v_lshlrev_b32 v{t+6}, 3, v{vQ}
  v_add_u32 v{t+6}, s{sT}, v{t+6}"""); self.put('br', t + 6)
        A(f"  v_lshrrev_b32 v{t+6}, 3, v{vLANE16}\n  v_add_u32 v{t+6}, {GBL}, v{t+6}"); self.put('gr', t + 6)

    def a_build(self):
        A = self.A
        self.drain()
        self.wait(vm=self.dwid)
        A("  s_barrier")
        W = 100
        ids = []
        for gl in range(3):
            for f in range(4):
                for z in range(2):
                    r = W + (gl * 4 + f) * 2 + z
                    if f < 3: ids.append(self.ds(f"  ds_read_u16 v{r}, v{self.cAF} offset:{f*1920 + z*192 + 16*gl}"))
                    else: ids.append(self.ds(f"  ds_read_u16 v{r}, v{self.cAG} offset:{z*960 + 16*gl}"))
            self.job()
            if gl == 0: continue
            self.wait(lg=ids[8*gl - 1]); self.a_and(gl - 1, W); self.job()
        self.wait(lg=ids[-1]); self.a_and(2, W); self.job()
    def a_and(self, gl, W):
        for f in range(4):
            r = W + (gl * 4 + f) * 2; d = self.cA + (gl * 4 + f) * 4
            self.A(f"""  v_and_b32 v{d}, v{r}, v{self.cML}
  v_and_b32 v{d+1}, v{r}, v{self.cMH}
  v_and_b32 v{d+2}, v{r+1}, v{self.cML}
  v_and_b32 v{d+3}, v{r+1}, v{self.cMH}""")

    def Freg(self, gl, rho): return aF + (((rho // 2) % 4) * 3 + gl) * 8
    def Greg(self, gl, b): return aG + ((b % 2) * 3 + gl) * 8
    def conv_reads(self, b):
        Y = 2 * b; L = []
        def rd(dst, base, off): L.append(lambda: setattr(self, 'lastrd', self.ds(f"  ds_read_b128 {a_(dst,4)}, v{base} offset:{off}")))
        for gl in range(3):
            rhos = [0, 2, 4] if b == 0 else [Y + 4]
            for rho in rhos:
                rd(self.Freg(gl, rho), self.cBF, rho * XROW + 16 * gl)
                rd(self.Freg(gl, rho) + 4, self.cBF, (rho + 1) * XROW + 16 * gl)
            rd(self.Greg(gl, b), self.cBG0, Y * XROW + 16 * gl)
            rd(self.Greg(gl, b) + 4, self.cBG1, Y * XROW + 16 * gl)
        return L
    def conv_zero(self, b): return [f"  v_mov_b64 {v(self.cD[b%2][gl]+2*h,2)}, 0" for gl in range(3) for h in range(2)]
    def conv_mfmas(self, b):
        Y = 2 * b; L = []
        for f in range(4):
            for gl in range(3):
                B = a_(self.Freg(gl, Y + 2*f), 8) if f < 3 else a_(self.Greg(gl, b), 8)
                L.append(f"  v_smfmac_f32_16x16x64_bf16 {v(self.cD[b%2][gl],4)}, {v(self.cA+(gl*4+f)*4,4)}, {B}, v{self.cIDX}")
        return L
    def conv_epi(self, b):
        L = []
        for gl in range(3):
            d = self.cD[b % 2][gl]; t = self.cT + 2 * gl
            L.append(f"  v_cvt_pk_bf16_f32 v{t}, v{d}, v{d+1}")
            L.append(f"  v_cvt_pk_bf16_f32 v{t+1}, v{d+2}, v{d+3}")
            L.append(lambda t=t, gl=gl: self.ds(f"  ds_write_b64 v{self.cYW}, {v(t,2)} offset:{b*7680 + 16*gl}"))
        return L

    def conv_all(self):
        A = self.A
        self.job()
        self.wait(vm=self.xid[5]); A("  s_barrier")
        rd = self.conv_reads(0)
        for k, r in enumerate(rd):
            r()
            if k == 7: self.emit(self.conv_zero(0))
            if k == 15: self.job()
        for b in range(7):
            A(f"; ==== conv block {b}")
            nxt = []
            if b < 6:
                while 2 * b + 7 not in self.xid: self.job()
                self.wait(vm=self.xid[2 * b + 7]); A("  s_barrier")
                nxt = self.conv_reads(b + 1)
            else:
                A("  s_barrier")
            self.wait(lg=self.lastrd)
            if b == 0:
                A(f"""  s_mul_i32 s{sT}, s{sW}, 208
  s_add_u32 s{sT}, s{sT}, {XB + 2*XROW + 2*208}
  v_lshrrev_b32 v205, 2, v{vLANE16}
  v_min_u32 v205, 188, v205
  v_add_u32 v205, s{sT}, v205""")
                self.ds("  ds_read_b32 a68, v205")
            if b in (0, 2, 4):
                sl = b // 2
                for a in range(3): self.ds(f"  ds_read_b128 {a_(aRES+(sl*3+a)*4,4)}, v{self.vRES[sl]} offset:{64*a}")
            mf = self.conv_mfmas(b)
            for k, m in enumerate(mf):
                A(m)
                if nxt: nxt.pop(0)()
                if k % 3 == 1 and (b < 2 or k != 10): self.job()
            self.emit(nxt)
            if b < 6: self.emit(self.conv_zero(b + 1))
            else: A("  s_nop 4")
            self.emit(self.conv_epi(b))
            if self.o.blkstamp: self.stamp(f'b{b}')
            if b == 5:
                self.ln_tiles(['L', 0], jobs=True)
                if self.o.blkstamp: self.stamp('lnL0')
        while self.jobs: self.job()
        self.drain(); A("  s_barrier")
        self.stamp('conv')
        self.ln_tiles([1, 2])
    def ln_tiles(self, slots, jobs=False):
        A = self.A
        A(f"; ==== LN tiles {slots}")
        bases = [100, 148]
        R = []
        for k, sl in enumerate(slots):
            b = bases[k]
            R.append(dict(sl=sl, U=b, Dg=b + 24, Ds=b + 28, st=b + 32, raw=(192 if k == 0 else 244),
                          dest=(lambda q, sl=sl: YH[sl] + q) if sl != 'L' else (lambda q: YL[q // 4] + q % 4)))
        for r in R:
            for s in range(3):
                for z in range(2):
                    r['id'] = self.ds(f"  ds_read_b64 {v(r['raw']+4*s+2*z,2)}, v{self.vLN[r['sl']]} offset:{64*s + 32*z}")
        def mfs(r):
            raw = r['raw']; mf = []
            for s in range(3):
                mf.append(f"  v_mfma_f32_16x16x32_bf16 {v(r['Dg'],4)}, {v(raw+4*s,4)}, {v(raw+4*s,4)}, " + ("0" if s == 0 else v(r['Dg'],4)))
                mf.append(f"  v_mfma_f32_16x16x32_bf16 {v(r['Ds'],4)}, {a_(aONE,4)}, {v(raw+4*s,4)}, " + ("0" if s == 0 else v(r['Ds'],4)))
            return mf
        def unp(r):
            raw = r['raw']; un = []
            for k in range(12):
                un.append(f"  v_lshlrev_b32 v{r['U']+2*k}, 16, v{raw+k}")
                un.append(f"  v_and_b32 v{r['U']+2*k+1}, 0xffff0000, v{raw+k}")
            return un
        def sel(r):
            st, Dg = r['st'], r['Dg']
            return [f"  v_cndmask_b32 v{st}, v{Dg}, v{Dg+1}, {sp(sM1)}",
                    f"  v_cndmask_b32 v{st}, v{st}, v{Dg+2}, {sp(sM2)}",
                    f"  v_cndmask_b32 v{st}, v{st}, v{Dg+3}, {sp(sM3)}",
                    f"  v_cndmask_b32 v{st}, 0, v{st}, {sp(sDIAG)}",
                    f"  v_mov_b32 v{st+1}, 1.0",
                    f"  v_mul_f32 v{st+2}, {hex(f2u(1.0/96))}, v{r['Ds']}"]
        def f32m(r): return f"  v_mfma_f32_16x16x4_f32 {v(r['Dg'],4)}, v{r['st']+1}, v{r['st']}, 0"
        def stats(r):
            st, Dg = r['st'], r['Dg']
            s_ = [f"  v_mul_f32 v{st+3}, {hex(f2u(1.0/96))}, v{Dg}",
                  f"  v_fma_f32 v{st+3}, -v{st+2}, v{st+2}, v{st+3}",
                  f"  v_max_f32 v{st+3}, 0, v{st+3}",
                  f"  v_add_f32 v{st+3}, {hex(f2u(1e-5))}, v{st+3}",
                  f"  v_rsq_f32 v{st+3}, v{st+3}",
                  f"  v_mul_f32 v{st+2}, {hex(f2u(-ALPHA))}, v{st+2}",
                  f"  v_mul_f32 v{st+4}, {hex(f2u(ALPHA))}, v{st+3}"]
            if r['sl'] == 'L': s_.append(f"  v_cndmask_b32 v{st+4}, 0, v{st+4}, {sp(sLEFT)}")
            s_.append(f"  v_mul_f32 v{st}, v{st+2}, v{st+3}")
            if r['sl'] == 'L': s_.append(f"  v_cndmask_b32 v{st}, 0, v{st}, {sp(sLEFT)}")
            return s_
        def norm(r):
            U, st = r['U'], r['st']
            return [f"  v_pk_fma_f32 {v(U+2*k,2)}, {v(U+2*k,2)}, {v(st+4,2)}, {v(st,2)} op_sel_hi:[1,0,0]" for k in range(12)]
        def cvt(r): return [f"  v_cvt_pk_bf16_f32 v{r['dest'](k)}, v{r['U']+2*k}, v{r['U']+2*k+1}" for k in range(12)]
        a, b = R
        self.wait(lg=a['id'])
        J = (lambda: self.job()) if jobs else (lambda: None)
        self.emit(self.interleave(mfs(a), unp(a), per=2)); J()
        ub = unp(b)
        self.wait(lg=b['id'])
        mb = mfs(b); fill = ub[:6] + sel(a) + ub[6:]
        left = self.interleave(mb, fill, per=2)
        A(f32m(a)); J(); self.emit(left); J()
        self.emit(sel(b)); A(f32m(b)); J()
        self.emit(stats(a))
        sb = stats(b)
        na = norm(a)
        A("  s_nop 1")
        self.emit(sb[:2])
        self.emit(self.interleave(na, sb[2:], per=1))
        self.emit(cvt(a)[:4]); J()
        self.emit(norm(b)); J(); self.emit(cvt(a)[4:]); J(); self.emit(cvt(b)); J()
    def prologue(self):
        self.setup()
        self.a_build()
        self.stamp('abuild')
        self.conv_all()
        self.stamp('ln')

    def a_addr(self, seg):
        self.A(f"""  s_add_u32 s{sT}, s{sW}, {seg}
  s_and_b32 s{sT}, s{sT}, 3
  s_mul_i32 s{sT}, s{sT}, 192
  v_add_u32 v{vAADR}, s{sT}, v6""")
    def a_loads(self, i):
        L = []
        for s in range(3):
            for z in range(2):
                L.append(lambda s=s, z=z: setattr(self, 'afr_id', self.ds(f"  ds_read_b64_tr_b16 {a_(aFR+4*s+2*z,2)}, v{vAADR} offset:{s*32*W1P + z*16*W1P + 32*(i%6)}")))
        return L
    def tiles(self, i): return 4 if i < 6 else 3
    def accregs(self, i):
        base = P0 if i % 2 == 0 else P1
        l = [base, base + 4, base + 8]
        if i < 6: l.append(P0L if i % 2 == 0 else P1L)
        return l
    def gemm1_mfmas(self, i):
        acc = self.accregs(i); out = []
        for s in range(3):
            for tl in range(self.tiles(i)):
                B = v(YH[tl] + 4 * s, 4) if tl < 3 else v(YL[s], 4)
                C = "0" if s == 0 else v(acc[tl], 4)
                out.append(f"  v_mfma_f32_16x16x32_bf16 {v(acc[tl],4)}, {a_(aFR+4*s,4)}, {B}, {C}")
        return out
    def dpp_tail(self, i):
        b0, b1, c = DP, DP + 1, DP + 2
        mj = [sM0, sM1, sM2, sM3][i % 4]
        return [f"  v_add_f32_dpp v{b0}, v{AS}, v{AS} row_ror:8 row_mask:0xf bank_mask:0x3",
                f"  v_add_f32_dpp v{b0}, v{AS+1}, v{AS+1} row_ror:8 row_mask:0xf bank_mask:0xc",
                f"  v_add_f32_dpp v{b1}, v{AS+2}, v{AS+2} row_ror:8 row_mask:0xf bank_mask:0x3",
                f"  v_add_f32_dpp v{b1}, v{AS+3}, v{AS+3} row_ror:8 row_mask:0xf bank_mask:0xc",
                f"  v_add_f32_dpp v{c}, v{b0}, v{b0} row_half_mirror row_mask:0xf bank_mask:0x5",
                f"  v_add_f32_dpp v{c}, v{b1}, v{b1} row_half_mirror row_mask:0xf bank_mask:0xa",
                f"  v_add_f32_dpp v{c}, v{c}, v{c} quad_perm:[1,0,3,2] row_mask:0xf bank_mask:0xf",
                f"  v_add_f32_dpp v{c}, v{c}, v{c} quad_perm:[2,3,0,1] row_mask:0xf bank_mask:0xf",
                f"  v_cndmask_b32 v{ST + i//4}, v{ST + i//4}, v{c}, {sp(mj)}"]
    def hdst(self, i, tl, j): return (H[tl] + 2 * i + j) if tl < 3 else (HL + 2 * i + j)
    def w2dma(self, j):
        gi, jj = j // 3, j % 3
        if jj == 0:
            self.A(f"  s_add_u32 m0, s{sT+11}, {3072*gi}\n  s_add_u32 s{sT+1}, s{sT+10}, {3072*gi}")
        self.w2id = self.vmem(f"  buffer_load_dwordx4 v{93+jj}, {srd(sW2)}, s{sT+1} offen offset:{1024*jj} lds")
    def gelu_iter(self, i, pend):
        A = self.A
        A(f"; ==== gelu iter {i}")
        nt = self.tiles(i); acc = self.accregs(i)
        T = [TT, TT + 4, TT + 8] + ([TTL] if nt == 4 else [])
        pairs = [(tl, h) for tl in range(nt) for h in range(2)]
        U = lambda tl, h: v(acc[tl] + 2 * h, 2)
        TP = lambda tl, h: v(T[tl] + 2 * h, 2)
        seq = [f"  v_pk_fma_f32 {TP(tl,h)}, {U(tl,h)}, {U(tl,h)}, {sp(sBETA)}" for tl, h in pairs] + \
              [f"  v_pk_mul_f32 {TP(tl,h)}, {TP(tl,h)}, {U(tl,h)}" for tl, h in pairs]
        slots = {0: [0, 1], 1: [2, 3], 3: [4, 5], 6: [6], 9: [7], 11: [8]} if pend else {}
        for k, ins in enumerate(seq):
            A(ins)
            for x in slots.get(k, []): A(pend[x])
        exps = [f"  v_exp_f32 v{T[tl]+j}, v{T[tl]+j}" for tl in range(nt) for j in range(4)]
        if i + 1 < 24:
            mf = self.gemm1_mfmas(i + 1)
            self.wait(lg=self.afr_id)
            e = 0
            for k, m in enumerate(mf):
                A(m)
                if self.o.dmapos == 0 and k == 1 and 1 <= i < 19: self.w2dma(i - 1)
                if k < len(mf) - 1: A(exps[e]); e += 1
            if i + 2 < 24:
                if (i + 2) % 6 == 0: self.a_addr((i + 2) // 6)
                self.emit(self.a_loads(i + 2))
            if self.o.dmapos == 3 and 1 <= i < 19: self.w2dma(i - 1)
            while e < len(exps): A(exps[e]); e += 1
        else:
            for x in exps: A(x)
        for tl, h in pairs: A(f"  v_pk_add_f32 {TP(tl,h)}, {TP(tl,h)}, 1.0 op_sel_hi:[1,0]")
        for tl in range(nt):
            for j in range(4): A(f"  v_rcp_f32 v{T[tl]+j}, v{T[tl]+j}")
            if self.o.dmapos == 1 and tl == 1 and 1 <= i < 19: self.w2dma(i - 1)
        if self.o.dmapos == 2 and 1 <= i < 19: self.w2dma(i - 1)
        for tl, h in pairs: A(f"  v_pk_mul_f32 {TP(tl,h)}, {TP(tl,h)}, {U(tl,h)}")
        for tl in range(nt):
            for h in range(2):
                if tl == 0: A(f"  v_pk_mul_f32 {v(AS+2*h,2)}, {TP(tl,h)}, {TP(tl,h)}")
                else: A(f"  v_pk_fma_f32 {v(AS+2*h,2)}, {TP(tl,h)}, {TP(tl,h)}, {v(AS+2*h,2)}")
        for tl, h in pairs: A(f"  v_cvt_pk_bf16_f32 v{self.hdst(i,tl,h)}, v{T[tl]+2*h}, v{T[tl]+2*h+1}")
        return self.dpp_tail(i)
    def gelu(self):
        A = self.A
        A("; ==== gelu prologue")
        A(f"""  v_lshrrev_b32 v6, 2, v{vN}
  v_lshl_add_u32 v6, v{vQ}, 2, v6
  v_mul_u32_u24 v6, {W1P}, v6
  v_and_b32 v7, 3, v{vN}
  v_lshl_add_u32 v6, v7, 3, v6""")
        self.a_addr(0)
        for jj in range(3): self.get(93 + jj, f'p{jj}')
        A(f"""  s_mul_i32 s{sT+10}, s{sW}, 18432
  s_add_u32 s{sT+11}, s{sT+10}, {W2S}""")
        A("  s_waitcnt vmcnt(0)\n  s_barrier")
        self.emit(self.a_loads(0))
        for k in range(6): A(f"  v_mov_b32 v{ST+k}, 0")
        self.wait(lg=self.afr_id)
        for m in self.gemm1_mfmas(0): A(m)
        self.emit(self.a_loads(1))
        A("  s_nop 3")
        if self.o.gpad >= 0:
            A("; @align64")
            for _ in range(self.o.gpad): A("  s_nop 0")
        pend = []
        for i in range(24): pend = self.gelu_iter(i, pend)
        A("; ==== gelu tail")
        for l in pend: A(l)

    def publish(self):
        A = self.A
        self.wait(vm=self.w2id)
        t = TT
        for k in range(6): self.get(t + 4 + k, f'ps{k}')
        self.get(t, 'psr'); self.get(t + 1, 'l1')
        return t
    def publish2(self, t):
        A = self.A
        for k in range(6): self.ds(f"  ds_write_b32 v{t+4+k}, v{ST+k}")
        A(f"""  s_add_u32 s{sTAG}, s{sTAG}, {hex(TAG_STEP)}
  s_cmp_eq_u32 s{sTAG}, 0
  s_cselect_b32 s{sT}, {hex(TAG_STEP)}, 0
  s_add_u32 s{sTAG}, s{sTAG}, s{sT}
  s_waitcnt lgkmcnt(0)
  s_barrier
  s_cmp_ge_u32 s{sW}, 2
  s_cbranch_scc1 L_nopub"""); self.lg.done = self.lg.n
        r = P0
        for w in range(4): A(f"  ds_read2st64_b32 {v(r+2*w,2)}, v{t} offset0:{6*w} offset1:{6*w+2}")
        A(f"  ds_read2st64_b32 {v(r+8,2)}, v{t} offset0:4 offset1:10")
        A(f"  ds_read2st64_b32 {v(r+10,2)}, v{t} offset0:16 offset1:22")
        A(f"""  v_mov_b32 v{t+7}, s{sTAG}
  s_waitcnt lgkmcnt(0)
  v_add_f32 v{t+4}, v{r}, v{r+2}
  v_add_f32 v{t+5}, v{r+1}, v{r+3}
  v_add_f32 v{t+6}, v{r+8}, v{r+9}
  v_add_f32 v{r+4}, v{r+4}, v{r+6}
  v_add_f32 v{r+5}, v{r+5}, v{r+7}
  v_add_f32 v{r+10}, v{r+10}, v{r+11}
  v_add_f32 v{t+4}, v{t+4}, v{r+4}
  v_add_f32 v{t+5}, v{t+5}, v{r+5}
  v_add_f32 v{t+6}, v{t+6}, v{r+10}
  global_store_dwordx4 v{t+1}, {v(t+4,4)}, s[20:21] sc1
L_nopub:""")

    def reducer(self, t, r):
        A = self.A
        A(f"""  s_cmp_lg_u32 s{sW}, 3
  s_cbranch_scc1 L_nored
  s_cmp_ge_u32 s2, 128
  s_cbranch_scc1 L_nored
  s_lshl_b32 s{sT}, s2, 12
  s_add_u32 s{sT}, s{sT}, {L1_OFF}
  v_add_u32 v{t}, s{sT}, v{vLANE16}
  s_mov_b32 s{sT+2}, 0
L_poll1:""")
        for k in range(4): A(f"  global_load_dwordx4 {v(r+4*k,4)}, v{t}, s[20:21] offset:{1024*k} sc1")
        A(f"""  s_add_u32 s{sT+2}, s{sT+2}, 1
  s_waitcnt vmcnt(0)
  v_cmp_eq_u32 vcc, s{sTAG}, v{r+3}
  v_cmp_eq_u32 s[{sT+4}:{sT+5}], s{sTAG}, v{r+7}
  v_cmp_eq_u32 s[{sT+6}:{sT+7}], s{sTAG}, v{r+11}
  v_cmp_eq_u32 s[{sT+8}:{sT+9}], s{sTAG}, v{r+15}
  s_and_b64 vcc, vcc, s[{sT+4}:{sT+5}]
  s_and_b64 s[{sT+6}:{sT+7}], s[{sT+6}:{sT+7}], s[{sT+8}:{sT+9}]
  s_and_b64 vcc, vcc, s[{sT+6}:{sT+7}]
  s_cmp_eq_u64 vcc, exec
  s_cbranch_scc1 L_red_go
  s_cmp_lt_u32 s{sT+2}, {self.o.spin}
  s_cbranch_scc1 L_poll1
L_red_go:""")
        for c in range(3): A(f"  v_add_f32 v{r+c}, v{r+c}, v{r+4+c}\n  v_add_f32 v{r+8+c}, v{r+8+c}, v{r+12+c}")
        for c in range(3): A(f"  v_add_f32 v{r+c}, v{r+c}, v{r+8+c}")
        for d in ("row_shr:1 row_mask:0xf", "row_shr:2 row_mask:0xf", "row_shr:4 row_mask:0xf", "row_shr:8 row_mask:0xf", "row_bcast:15 row_mask:0xa", "row_bcast:31 row_mask:0xc"):
            for c in range(3): A(f"  v_add_f32_dpp v{r+c}, v{r+c}, v{r+c} {d} bank_mask:0xf")
        for c in range(3): A(f"  v_readlane_b32 s{sT+4+c}, v{r+c}, 63")
        A(f"""  s_lshl_b32 s{sT}, s2, 4
  s_add_u32 s{sT}, s{sT}, {FIN_OFF}
  v_lshlrev_b32 v{t}, 11, v{vN}
  v_add_u32 v{t}, s{sT}, v{t}
  v_mov_b32 v{r}, s{sT+4}
  v_mov_b32 v{r+1}, s{sT+5}
  v_mov_b32 v{r+2}, s{sT+6}
  v_mov_b32 v{r+3}, s{sTAG}
  s_mov_b64 exec, {(1<<NREP)-1}
  global_store_dwordx4 v{t}, {v(r,4)}, s[20:21] sc1
  s_mov_b64 exec, -1
L_nored:""")

    XC = 8
    vOUT = 92
    vB2 = 95
    vW2W, vLP, vSPA = 99, 5, 6
    vST, vRD = 4, 7
    vOD = [0, 2, 3]
    def spr(self, tl): return (80 + 4 * tl) if tl < 3 else (244 + 4 * (tl - 3))
    def dw2(self, tl, a, b): return 100 + a * 48 + (b * 6 + tl) * 4
    def xc(self, sl, a, b): return self.XC + (sl * 3 + a) * 8 + 4 * b

    def wait_work_a(self):
        A = self.A
        if self.o.late == 1: self.late_mid(t=56)
        self.get(50, 'w2r'); self.get(51, 'br'); self.get(53, 'gr')
        for ul in range(3):
            for z in range(2):
                self.ds(f"  ds_read_b64 {a_(aFR+4*ul+2*z,2)}, v51 offset:{64*ul + 32*z}")
        for z in range(2):
            for c in range(3):
                self.ds(f"  ds_read_u16 v{80 + z*3 + c}, v53 offset:{128*z + 256*c}")
        self.get(self.vRD, 'rd'); self.get(self.vST, 'st')
        for sl in range(3): self.get(self.vOUT + sl, f'o{sl}')
        for k in range(4): self.get(self.vB2 + k, f'b{k}')
        self.get(self.vW2W, 'w2w'); self.get(self.vLP, 'lp'); self.get(self.vSPA, 'spa')
        for sl in range(3): self.get(54 + sl, f'd{sl}'); A(f"  v_accvgpr_write_b32 {a_(aOUT+sl)}, v{54+sl}")
        self.order = [(tl, a) for a in range(3) for tl in range(6)]
        self.nids = {}
        for k in range(8):
            tl, a = self.order[k]
            self.nids[k] = self.ds(f"  ds_read_b128 {a_(4*(k%8),4)}, v50 offset:{tl*3072 + 64*a}")
        for k in range(100, 256): A(f"  v_accvgpr_write_b32 a{k}, v{k}")
    def wait_work_b(self):
        A = self.A
        order = self.order
        for k in range(18):
            ptl, pa = order[k]
            self.wait(lg=self.nids[k])
            for b in range(2): A(f"  v_mfma_f32_16x16x32_bf16 {v(self.dw2(ptl,pa,b),4)}, {a_(4*(k%8),4)}, {a_(aSEL+4*b,4)}, 0")
            if k + 8 < 18:
                tl, a = order[k + 8]
                self.nids[k + 8] = self.ds(f"  ds_read_b128 {a_(4*(k%8),4)}, v50 offset:{tl*3072 + 64*a}")
        if self.o.redearly:
            self.stamp('tr')
            self.reducer(58, 32)
            self.stamp('red')
        Q = [244, 248]
        jobs = [(t_, ul) for ul in range(3) for t_ in range(6)]
        for k, (t_, ul) in enumerate(jobs):
            a, b = t_ // 2, t_ % 2
            q = Q[k % 2]
            d0, d1 = self.dw2(2*ul, a, b), self.dw2(2*ul+1, a, b)
            A(f"""  v_cvt_pk_bf16_f32 v{q}, v{d0}, v{d0+1}
  v_cvt_pk_bf16_f32 v{q+1}, v{d0+2}, v{d0+3}""")
            if k > 0:
                pt, pul = jobs[k-1]; pq = Q[(k-1) % 2]; c = self.xc(0, pt // 2, pt % 2)
                A(f"  v_mfma_f32_16x16x32_bf16 {v(c,4)}, {v(pq,4)}, {a_(aFR+4*pul,4)}, " + ("0" if pul == 0 else v(c,4)))
            A(f"""  v_cvt_pk_bf16_f32 v{q+2}, v{d1}, v{d1+1}
  v_cvt_pk_bf16_f32 v{q+3}, v{d1+2}, v{d1+3}""")
        pt, pul = jobs[-1]; c = self.xc(0, pt // 2, pt % 2)
        A(f"  s_nop 1\n  v_mfma_f32_16x16x32_bf16 {v(c,4)}, {v(Q[(len(jobs)-1)%2],4)}, {a_(aFR+4*pul,4)}, {v(c,4)}")
        A(f"""  s_mul_i32 s{sT}, s{sW}, 384
  s_add_u32 s{sT}, s{sT}, {CP}
  v_lshlrev_b32 v252, 5, v{vQ}
  v_add_u32 v253, {CP}, v252
  v_add_u32 v252, s{sT}, v252
  s_mov_b32 exec_lo, 0x00010001
  s_mov_b32 exec_hi, 0x00010001
  s_nop 2""")
        for t_ in range(6):
            a, b = t_ // 2, t_ % 2
            self.ds(f"  ds_write_b128 v252, {v(self.xc(0,a,b),4)} offset:{128*a + 16*b}")
        A("  s_mov_b64 exec, -1")
        self.stamp('cpart')
        if not self.o.redearly:
            self.reducer(58, 32)
            self.stamp('red')
        self.drain(); A("  s_barrier")
        for half in range(2):
            ts = [3*half + j for j in range(3)]
            ids = []
            for j, t_ in enumerate(ts):
                a, b = t_ // 2, t_ % 2
                for w in range(4):
                    dst = self.xc(0, a, b) if w == 0 else 32 + (j * 3 + (w - 1)) * 4
                    ids.append(self.ds(f"  ds_read_b128 {v(dst,4)}, v253 offset:{w*384 + 128*a + 16*b}"))
            for j, t_ in enumerate(ts):
                a, b = t_ // 2, t_ % 2
                self.wait(lg=ids[4*j+3])
                c = self.xc(0, a, b); o = 32 + j * 12
                for h in range(2):
                    A(f"  v_pk_add_f32 {v(c+2*h,2)}, {v(c+2*h,2)}, {v(o+2*h,2)}\n  v_pk_add_f32 {v(o+4+2*h,2)}, {v(o+4+2*h,2)}, {v(o+8+2*h,2)}")
                for h in range(2): A(f"  v_pk_add_f32 {v(c+2*h,2)}, {v(c+2*h,2)}, {v(o+4+2*h,2)}")
        A(f"""  s_cmp_lg_u32 s{sW}, 0
  s_cbranch_scc1 L_nocv
  v_add_u32 v253, {CV - CP}, v253
  s_mov_b32 exec_lo, 0x00010001
  s_mov_b32 exec_hi, 0x00010001""")
        for t_ in range(6):
            a, b = t_ // 2, t_ % 2
            A(f"  ds_write_b128 v253, {v(self.xc(0,a,b),4)} offset:{128*a + 16*b}")
        A("  s_mov_b64 exec, -1\n  s_waitcnt lgkmcnt(0)\nL_nocv:"); self.lg.done = self.lg.n
        k = 0
        for sl in (1, 2, 0):
            for a in range(3):
                for j in range(4): A(f"  v_accvgpr_read_b32 v{244+4*(k%2)+j}, {a_(aRES+(sl*3+a)*4+j)}")
                for j in range(4):
                    b, r = j // 2, (j % 2) * 2
                    c = self.xc(0, a, b) + r; d = self.xc(sl, a, b) + r; x = 244 + 4*(k%2) + j
                    tt = 90 if j % 2 == 0 else 86
                    A(f"""  v_lshlrev_b32 v{tt}, 16, v{x}
  v_and_b32 v{tt+1}, 0xffff0000, v{x}
  v_pk_add_f32 {v(d,2)}, {v(c,2)}, {v(tt,2)}""")
                k += 1
        A(f"""  s_lshl_b32 s{sT}, s{sW}, 11
  s_add_u32 s{sT}, s{sT}, {OUTS}
  v_add_u32 v{self.vST}, s{sT}, v{self.vST}""")
        for sl in range(3): A(f"  v_accvgpr_read_b32 v{self.vOD[sl]}, {a_(aOUT+sl)}")
    def final_poll(self):
        A = self.A
        r = 244; t = 86
        A(f"""  s_cmp_lg_u32 s{sW}, 0
  s_cbranch_scc1 L_nofin
  s_and_b32 s{sT}, s2, {NREP-1}
  s_lshl_b32 s{sT}, s{sT}, 11
  s_add_u32 s{sT}, s{sT}, {FIN_OFF}
  v_add_u32 v{t}, s{sT}, v{vLANE16}
  s_mov_b32 s{sT+2}, 0""")
        for k in range(6): A(f"  v_lshlrev_b32 v{80+k}, 16, v{80+k}")
        A(f"""  s_mov_b32 s{sT+10}, {hex(f2u(1.0/(ALPHA*ALPHA)))}
  v_mov_b32 v{t+1}, {hex(f2u(1e-6))}
  v_mov_b32 v{t+4}, {hex(f2u(1.0/384))}
  v_mov_b32 v{t+3}, {hex(f2u(1.0/ALPHA))}
  v_lshrrev_b32 v{t+5}, 2, v{vLANE16}
  v_add_u32 v{t+5}, {SP}, v{t+5}
L_poll2:
  global_load_dwordx4 {v(r,4)}, v{t}, s[20:21] sc1
  global_load_dwordx4 {v(r+4,4)}, v{t}, s[20:21] offset:1024 sc1
  s_add_u32 s{sT+2}, s{sT+2}, 1
  s_waitcnt vmcnt(0)
  v_cmp_eq_u32 vcc, s{sTAG}, v{r+3}
  v_cmp_eq_u32 s[{sT+4}:{sT+5}], s{sTAG}, v{r+7}
  s_and_b64 vcc, vcc, s[{sT+4}:{sT+5}]
  s_cmp_eq_u64 vcc, exec
  s_cbranch_scc1 L_fin_go
  s_cmp_lt_u32 s{sT+2}, {self.o.spin}
  s_cbranch_scc1 L_poll2
L_fin_go:""")
        vals = [r, r+1, r+2, r+4, r+5, r+6]
        for x in vals: A(f"  v_fma_f32 v{x}, v{x}, s{sT+10}, v{t+1}")
        for x in vals: A(f"  v_sqrt_f32 v{x}, v{x}")
        A(f"""  v_add_f32 v{t+2}, v{r}, v{r+1}
  v_add_f32 v{r+3}, v{r+2}, v{r+4}
  v_add_f32 v{r+7}, v{r+5}, v{r+6}
  v_add_f32 v{t+2}, v{t+2}, v{r+3}
  v_add_f32 v{t+2}, v{t+2}, v{r+7}""")
        gm = [f"  v_mul_f32 v{80+k}, v{80+k}, v{x}" for k, x in enumerate(vals)]
        for k, d in enumerate(("row_shr:1 row_mask:0xf", "row_shr:2 row_mask:0xf", "row_shr:4 row_mask:0xf", "row_shr:8 row_mask:0xf", "row_bcast:15 row_mask:0xa", "row_bcast:31 row_mask:0xc")):
            A(gm[k])
            A(f"  v_add_f32_dpp v{t+2}, v{t+2}, v{t+2} {d} bank_mask:0xf")
        A(f"""  v_readlane_b32 s{sT+4}, v{t+2}, 63
  v_fma_f32 v{t+2}, s{sT+4}, v{t+4}, v{t+1}
  v_rcp_f32 v{t+2}, v{t+2}
  s_nop 0
  v_mul_f32 v{t+2}, v{t+2}, v{t+3}""")
        for k in range(6): A(f"  v_fma_f32 v{80+k}, v{80+k}, v{t+2}, v{t+3}")
        for z in range(2):
            for c in range(3): A(f"  ds_write_b32 v{t+5}, v{80+3*z+c} offset:{256*z + 512*c}")
        A(f"""  s_cmp_lg_u32 s2, 0
  s_cbranch_scc1 L_noepoch
  v_mov_b32 v{t}, {EPOCH_OFF}
  v_mov_b32 v{t+1}, s{sTAG}
  s_mov_b64 exec, 1
  global_store_dword v{t}, v{t+1}, s[20:21] sc1
  s_mov_b64 exec, -1
L_noepoch:
L_nofin:
  s_waitcnt lgkmcnt(0)
  s_barrier"""); self.lg.done = self.lg.n

    def prep_round(self, a, pk):
        L = []
        for b in range(2):
            for ul in range(3):
                M = []
                for z in range(2):
                    d = self.dw2(2*ul+z, a, b); s_ = self.spr(2*ul+z)
                    if pk:
                        M.append(('v', f"  v_pk_mul_f32 {v(d,2)}, {v(d,2)}, {v(s_,2)}"))
                        M.append(('v', f"  v_pk_mul_f32 {v(d+2,2)}, {v(d+2,2)}, {v(s_+2,2)}"))
                    else:
                        for j in range(4): M.append(('v', f"  v_mul_f32 v{d+j}, v{d+j}, v{s_+j}"))
                d0 = self.dw2(2*ul, a, b); d1 = self.dw2(2*ul+1, a, b)
                M.append(('v', f"  v_cvt_pk_bf16_f32 v{d0}, v{d0}, v{d0+1}"))
                M.append(('v', f"  v_cvt_pk_bf16_f32 v{d0+1}, v{d0+2}, v{d0+3}"))
                M.append(('v', f"  v_cvt_pk_bf16_f32 v{d0+2}, v{d1}, v{d1+1}"))
                M.append(('v', f"  v_cvt_pk_bf16_f32 v{d0+3}, v{d1+2}, v{d1+3}"))
                wf = (lambda d0=d0, b=b, ul=ul: setattr(self, 'prep_id', self.ds(f"  ds_write_b128 v{self.vW2W}, {v(d0,4)} offset:{(2*a+b)*12288 + ul*1024}")))
                wf.prep = True
                M.append(('w', wf))
                L += M
        return L
    def w2_prep0(self):
        A = self.A
        ids = [self.ds(f"  ds_read_b128 {v(self.spr(tl),4)}, v{self.vSPA} offset:{64*tl}") for tl in range(6)]
        items = self.prep_round(0, True)
        muls = [x for kind, x in items if kind == 'v' and 'pk_mul' in x]
        order = [(b * 3 + ul) for ul in range(3) for b in range(2)]
        for n_, f in enumerate(order):
            ul = f % 3
            self.wait(lg=ids[2 * ul + 1])
            for x in muls[4 * f:4 * f + 4]: A(x)

    def gemm2(self):
        A = self.A
        A("; ==== gemm2")
        R = [100, 148, 196]
        FREE = [4, 12, 20, 28, 36, 44]
        def acc(a, sl, b): return self.xc(sl, a, b)
        def own(a, k): return R[a] + 24 * (k % 2) + 8 * ((k % 6) // 2)
        aL = 0
        LOOK = 3
        rid = {}
        def rd(a, k):
            u, b = k // 2, k % 2
            rid[(a, k)] = self.ds(f"  ds_read_b128 {v(own(a, k),4)}, v{self.vB2+u//3} offset:{(2*a+b)*12288 + (u%3)*1024}")
        def cvt8(dst, a, sl):
            return [f"  v_cvt_pk_bf16_f32 v{dst+j}, v{acc(a, sl, j//2) + 2*(j%2)}, v{acc(a, sl, j//2) + 2*(j%2) + 1}" for j in range(4)]
        def epilogue_direct(a):
            L = []
            for sl in range(3):
                tq = R[a] + 4 * (sl % 2)
                L += cvt8(tq, a, sl)
                L.append(lambda sl=sl, tq=tq: self.vmem(f"  buffer_store_dwordx4 {v(tq,4)}, v{self.vOD[sl]}, {srd(sO)}, 0 offen offset:{64*a}{self.o.stmod}"))
            return L
        def epilogue_staged_mid(a):
            L = []; st = {}
            for sl in range(3):
                tq = R[a] + 8 * sl; rq = tq + 4
                L += [('v', x) for x in cvt8(tq, a, sl)]
                L.append(('w', lambda tq=tq: self.ds(f"  ds_write_b128 v{self.vST}, {v(tq,4)}")))
                L.append(('v', lambda sl=sl, rq=rq: st.__setitem__(sl, self.ds(f"  ds_read_b128 {v(rq,4)}, v{self.vRD}"))))
                if sl > 0: L.append(('v', lambda sl=sl: self.out_store(a, sl - 1, R[a] + 8 * (sl - 1) + 4, st[sl - 1])))
            L += [('n', None)] * 6
            L.append(('v', lambda: self.out_store(a, 2, R[a] + 8 * 2 + 4, st[2])))
            return L
        def staged(a, sl, st):
            tq = R[1] + 8 * sl; rq = R[1] + 8 * sl + 4
            return cvt8(tq, a, sl) + [lambda: self.ds(f"  ds_write_b128 v{self.vST}, {v(tq,4)}"),
                                      lambda: st.__setitem__(sl, self.ds(f"  ds_read_b128 {v(rq,4)}, v{self.vRD}"))]
        def leftover_write(a):
            def go():
                A("  s_mov_b32 exec_lo, 0x000f000f\n  s_mov_b32 exec_hi, 0x000f000f")
                self.ds(f"  ds_write_b128 v{self.vLP}, {a_(aL,4)} offset:{128*a}")
                self.lw_id = self.ds(f"  ds_write_b128 v{self.vLP}, {a_(aL+4,4)} offset:{128*a+16}")
                A("  s_mov_b64 exec, -1")
            return go
        def norm(L): return [x if isinstance(x, tuple) else (('n', None) if x is None else (('v', x))) for x in L]
        def pop(fill, wslot=False):
            if not fill: return
            kind, f = fill[0]
            if kind == 'w' and not wslot: return
            fill.pop(0)
            if f is None: return
            f() if callable(f) else A(f)
        def flush(fill):
            while fill: pop(fill, True)
        def frag_items(a, mul):
            it = self.prep_round(a, False)
            per = [it[13 * f:13 * f + 13] for f in range(6)]
            out = []
            for ul in range(3):
                for b in range(2):
                    x = per[b * 3 + ul]
                    out.append(x if mul else x[8:])
            return out
        f0 = frag_items(0, False)
        p1 = sum(frag_items(1, True), []); p2 = sum(frag_items(2, True), [])
        A("; @nopad")
        for kind, x in f0[0][:4]: A(x)
        fill = [f0[0][4]]
        for k in range(1, 6): fill += f0[k]
        must = {}
        for a in range(3):
            A(f"; ---- gemm2 round {a}")
            if self.o.g2stamp and a > 0: self.stamp(f'g2r{a-1}')
            epi = epilogue_staged_mid if self.o.stageall else (lambda a_: norm(epilogue_direct(a_)))
            if a == 1: fill = epi(0) + fill
            if a == 2: fill = epi(1) + fill
            bar_at = 4 if a == 0 else 3
            for k in range(24):
                u, b = k // 2, k % 2
                last_round_tail = (a == 2 and k >= 18)
                if last_round_tail: break
                if a == 0 and 1 <= k < 6:
                    need = own(0, k) + 3
                    while any(kind == 'v' and isinstance(f, str) and f.strip().startswith('v_cvt') and int(f.split()[1].strip('v,')) <= need and int(f.split()[1].strip('v,')) >= own(0, k) for kind, f in fill):
                        pop(fill, True)
                if k == bar_at:
                    if a == 0:
                        while any(kind == 'w' for kind, f in fill): pop(fill, True)
                    else:
                        while any(kind == 'w' and getattr(f, 'prep', False) for kind, f in fill): pop(fill, True)
                    self.wait(lg=self.prep_id); A("  s_barrier")
                    for kk in range(6, min(24, k + LOOK)): rd(a, kk)
                    if a == 0: fill = fill + p1
                    if a == 1: fill = fill + p2
                if k >= 6: self.wait(lg=rid[(a, k)])
                fr = v(own(a, k), 4)
                first = (k == 0)
                for sl in range(3):
                    d = acc(a, sl, b)
                    A(f"  v_mfma_f32_16x16x32_bf16 {v(d,4)}, {fr}, {a_(H[sl]+4*u,4)}, {v(d,4)}")
                    nk = k + LOOK
                    if sl == 0 and k >= bar_at and 6 <= nk < 24 and (a, nk) not in rid:
                        rd(a, nk)
                        if not first: pop(fill)
                    elif not (first and a > 0):
                        pop(fill, wslot=(sl == 1))
                        if sl != 2: pop(fill)
                if u < 3:
                    d = aL + 4*b
                    A(f"  v_mfma_f32_16x16x32_bf16 {a_(d,4)}, {fr}, {a_(HL+4*u,4)}, " + ("0" if u == 0 else a_(d,4)))
                    if not (first and a > 0): pop(fill, wslot=True); pop(fill)
                if u == 4 and b == 1: fill = [('w', leftover_write(a))] + fill
                if a == 2 and k == 13:
                    flush(fill)
                    self.wait(lg=self.lw_id); A("  s_barrier")
                    fill = norm(self.leftover_combine())
            if a < 2:
                nxt = R[a + 1]
                while any(kind == 'v' and isinstance(f, str) and (f.strip().startswith('v_mul') or f.strip().startswith('v_cvt')) for kind, f in fill):
                    pop(fill, True)
        a = 2
        for kk in range(18, 24):
            if (a, kk) not in rid: rd(a, kk)
        self.wait(lg=rid[(a, 23)])
        st = {}; pend = []
        for sl in range(3):
            for k in range(18, 24):
                u, b = k // 2, k % 2
                d = acc(a, sl, b)
                A(f"  v_mfma_f32_16x16x32_bf16 {v(d,4)}, {v(own(a,k),4)}, {a_(H[sl]+4*u,4)}, {v(d,4)}")
                if fill: pop(fill, True)
                elif pend and k >= 20:
                    for _ in range(2):
                        if pend:
                            f = pend.pop(0); f() if callable(f) else A(f)
            self.emit(pend)
            pend = staged(a, sl, st)
            if sl > 0: pend.append(lambda sl=sl: self.out_store(a, sl - 1, R[1] + 8 * (sl - 1) + 4, st[sl - 1]))
        flush(fill)
        A("; @pad")
        if self.o.g2stamp: self.stamp('g2r2')
        A("  s_nop 5")
        self.emit(pend)
        self.out_store(a, 2, R[1] + 8 * 2 + 4, st[2])

    def out_store(self, a, sl, rq, lid):
        self.wait(lg=lid)
        self.vmem(f"  buffer_store_dwordx4 {v(rq,4)}, v{self.vOUT+sl}, {srd(sO)}, 0 offen offset:{64*a}{self.o.stmod}")

    def leftover_combine(self):
        A = self.A
        L = []; st = {}
        L += [f"  v_lshrrev_b32 v100, 4, v{vLANE16}",
              f"  s_mul_i32 s{sT}, s{sW}, 384", f"  s_add_u32 s{sT}, s{sT}, {LP}",
              f"  v_min_u32 v100, 47, v100",
              f"  v_lshlrev_b32 v101, 3, v100", f"  v_add_u32 v102, {CV}, v101", f"  v_add_u32 v101, s{sT}, v101",
              f"  s_mul_i32 s{sT}, s{sY0}, 224", f"  s_add_u32 s{sT}, s{sT}, s{sX0}", f"  s_add_u32 s{sT}, s{sT}, s{sW}", f"  s_mul_i32 s{sT}, s{sT}, 192",
              f"  v_lshlrev_b32 v103, 2, v100", f"  v_add_u32 v103, s{sT}, v103"]
        L.append("  v_accvgpr_read_b32 v104, a68")
        for w in range(4): L.append(lambda w=w: self.ds(f"  ds_read_b64 {v(108+2*w,2)}, v101 offset:{w*1536}"))
        L.append(lambda: st.__setitem__('l', self.ds("  ds_read_b64 v[116:117], v102")))
        L += [None] * 8
        L.append(lambda: self.wait(lg=st['l']))
        L += ["  v_add_f32 v108, v108, v110", "  v_add_f32 v109, v109, v111", "  v_add_f32 v112, v112, v114", "  v_add_f32 v113, v113, v115",
              "  v_add_f32 v108, v108, v116", "  v_add_f32 v109, v109, v117", "  v_add_f32 v108, v108, v112", "  v_add_f32 v109, v109, v113"]
        L += ["  v_lshlrev_b32 v116, 16, v104", "  v_and_b32 v117, 0xffff0000, v104", "  v_add_f32 v108, v108, v116", "  v_add_f32 v109, v109, v117",
              "  v_cvt_pk_bf16_f32 v120, v108, v109"]
        def store():
            A("  s_mov_b32 exec_hi, 0xffff")
            self.vmem(f"  buffer_store_dword v120, v103, {srd(sO)}, 0 offen{self.o.stmod}")
            A("  s_mov_b32 exec_hi, -1")
        L.append(store)
        return L

    def stamp_dump(self):
        if not self.o.prof: return
        A = self.A
        A(f"""  s_mov_b64 exec, -1
  s_memrealtime s[78:79]
  s_lshl_b32 s{sT}, s2, 2
  s_add_u32 s{sT}, s{sT}, s{sW}
  s_lshl_b32 s{sT}, s{sT}, 7
  s_add_u32 s{sT}, s{sT}, {DBG_OFF}
  v_mov_b32 v5, s{sT}
  s_waitcnt lgkmcnt(0)
  s_mov_b64 exec, 1""")
        for k in range(len(self.stamps)):
            A(f"  v_mov_b32 v6, s{80+k}\n  global_store_dword v5, v6, s[20:21] offset:{4*k}")
        A(f"  v_mov_b32 v6, s78\n  global_store_dword v5, v6, s[20:21] offset:{4*30}")
        A(f"  v_mov_b32 v6, s49\n  global_store_dword v5, v6, s[20:21] offset:{4*31}")
        if self.o.dbgstamp:
            A(f"  s_cmp_lg_u32 s2, 100\n  s_cbranch_scc1 L_nodbg\n  s_cmp_lg_u32 s{sW}, 0\n  s_cbranch_scc1 L_nodbg\n  v_mov_b32 v7, 0")
            for j in range(min(16, len(self.stamps) - 1)):
                A(f"  s_sub_u32 s78, s{81+j}, s80\n  v_mov_b32 v6, s78\n  global_store_dword v7, v6, s[18:19] offset:{4*j}")
            A("L_nodbg:")
    def dump_regs(self, label, regs, wsoff):
        A = self.A
        n = len(regs)
        A(f"""  s_waitcnt vmcnt(0) lgkmcnt(0)
  v_lshlrev_b32 v6, 2, v0
  s_mul_i32 s{sT}, s2, {n*1024}
  s_add_u32 s{sT}, s{sT}, {wsoff}
  v_add_u32 v6, s{sT}, v6""")
        for k, r in enumerate(regs):
            A(f"  global_store_dword v6, v{r}, s[20:21]\n  v_add_u32 v6, 1024, v6")
            if k % 32 == 31: A("  s_waitcnt vmcnt(0)")
        A("  s_waitcnt vmcnt(0)")

    def build(self):
        o = self.o; A = self.A
        self.prologue()
        if o.stop == 'ln':
            self.dump_regs('yhat', list(range(YH[0], YH[0]+36)) + [YL[0]+k for k in range(4)] + [YL[1]+k for k in range(4)] + [YL[2]+k for k in range(4)], DBG_OFF)
            A("  s_branch L_end")
        self.gelu()
        t = self.publish()
        self.stamp('gelu')
        if o.stop == 'gelu':
            self.dump_regs('h', list(range(100, 256)) + list(range(ST, ST+6)), DBG_OFF)
            A("  s_branch L_end")
        self.publish2(t)
        self.stamp('pub')
        self.wait_work_a()
        self.stamp('wwa')
        self.wait_work_b()
        self.stamp('wwb')
        self.final_poll()
        self.stamp('fin')
        self.w2_prep0()
        self.stamp('prep')
        self.gemm2()
        self.stamp('gemm2')
        self.stamp_dump()
        A("L_end:\n  s_endpgm")
        body = A.finalize(verbose=not o.quiet, align=o.align)
        hdr = f"""; Fused block: 5x5 depthwise conv + LayerNorm + GEMM(96->384) + GELU + GRN + GEMM(384->96) + residual.
; @launch grid=(256,1,1) block=(256,1,1) lds={LDS_BYTES}
.amdgcn_target "amdgcn-amd-amdhsa--gfx950"
.text
.globl {KNAME}
.p2align 8
.type {KNAME},@function
{KNAME}:
"""
        tail = f""".section .rodata,"a"
.p2align 6
.amdhsa_kernel {KNAME}
  .amdhsa_next_free_vgpr 512
  .amdhsa_next_free_sgpr 102
  .amdhsa_accum_offset 256
  .amdhsa_group_segment_fixed_size 0
  .amdhsa_kernarg_size 72
  .amdhsa_user_sgpr_count 2
  .amdhsa_user_sgpr_kernarg_segment_ptr 1
  .amdhsa_system_sgpr_workgroup_id_x 1
  .amdhsa_float_denorm_mode_32 3
.end_amdhsa_kernel
"""
        if o.names: open(o.names, 'w').write(",".join(self.stamps))
        return hdr + body + tail

if __name__ == '__main__':
    ap = argparse.ArgumentParser()
    ap.add_argument('-o', default='out.s')
    ap.add_argument('--stop', default='')
    ap.add_argument('--spin', type=int, default=200000)
    ap.add_argument('--quiet', action='store_true')
    ap.add_argument('--prof', action='store_true')
    ap.add_argument('--dbgstamp', action='store_true')
    ap.add_argument('--align', action='store_true')
    ap.add_argument('--lnsplit', action='store_true')
    ap.add_argument('--stmod', default='')
    ap.add_argument('--names', default='')
    ap.add_argument('--redearly', action='store_true')
    ap.add_argument('--stageall', action='store_true')
    ap.add_argument('--n0', type=int, default=8)
    ap.add_argument('--late', type=int, default=0)
    ap.add_argument('--gpad', type=int, default=-1)
    ap.add_argument('--dmapos', type=int, default=0)
    ap.add_argument('--w1mask', action='store_true')
    ap.add_argument('--tlb', action='store_true')
    ap.add_argument('--g2stamp', action='store_true')
    ap.add_argument('--blkstamp', action='store_true')
    ap.add_argument('--nojobs', action='store_true')
    ap.add_argument('--codekb', type=int, default=0)
    o = ap.parse_args()
    if o.stmod: o.stmod = ' ' + o.stmod
    g = G(o)
    open(o.o, 'w').write(g.build())
    print("wrote", o.o)
```
